```python
import torch

def _softmax(x, axis=-1):
    return torch.softmax(x, dim=axis)
def _gelu(x):
    return torch.nn.functional.gelu(x, approximate="tanh")
def _silu(x):
    return torch.nn.functional.silu(x)
def _sigmoid(x):
    return torch.sigmoid(x)
def _layernorm(x, axis=-1, eps=1e-5):
    m = x.mean(dim=axis, keepdim=True)
    v = x.var(dim=axis, keepdim=True, unbiased=False)
    return (x - m) / torch.sqrt(v + eps)
def _scatter_add(tgt, idx, src, axis=0):
    return tgt.clone().index_add_(axis, idx, src)
def _segment_sum(src, seg, n):
    out = torch.zeros((n,) + src.shape[1:], dtype=src.dtype)
    return out.index_add_(0, seg, src)
def _pad(x, pw):
    flat = tuple(v for pair in reversed(pw) for v in pair)
    return torch.nn.functional.pad(x, flat)

kernel_name = 'recurrent_scan__gqa_block_cached__dense_activation_relu__decode'

def setup_inputs():

    _w = (lambda a: (lambda t: t.to(torch.bfloat16) if t.is_floating_point() else t)(torch.as_tensor(a)))
    def _A_setup():
        B, Sq, D = 1, 1, 512
        Hq, Hkv, Sk, Dh = 32, 32, 32768, 128
        assert Hq % Hkv == 0, (Hq, Hkv)
        return {
            "x": _w((lambda *s: torch.randn(*s, dtype=torch.bfloat16) * 0.05)(B, Sq, D)),
            "k_cache": _w((lambda *s: torch.randn(*s, dtype=torch.bfloat16) * 0.8)(B, Hkv, Sk, Dh)),
            "v_cache": _w((lambda *s: torch.randn(*s, dtype=torch.bfloat16) * 0.8)(B, Hkv, Sk, Dh)),
            "wq": _w((lambda *s: torch.randn(*s, dtype=torch.bfloat16) * 0.8)(D, Hq * Dh) * (D ** -0.5)),
            "wo": _w((lambda *s: torch.randn(*s, dtype=torch.bfloat16) * 0.8)(Hq * Dh, D) * ((Hq * Dh) ** -0.5)),
        }
    _A_in = _A_setup()

    def _B_setup():
        B, S, D, Dff = 1, 1, 512, 1376
        return {
            "x": _w((lambda *s: torch.randn(*s, dtype=torch.bfloat16) * 0.05)(B, S, D)),
            "w1": _w((lambda *s: torch.randn(*s, dtype=torch.bfloat16) * 0.2)(D, Dff)),
            "w2": _w((lambda *s: torch.randn(*s, dtype=torch.bfloat16) * 0.2)(Dff, D)),
        }
    _B_in = _B_setup()

    return {
        "A_x": _A_in["x"],
        "A_k_cache": _A_in["k_cache"],
        "A_v_cache": _A_in["v_cache"],
        "A_wq": _A_in["wq"],
        "A_wo": _A_in["wo"],
        "B_x": _B_in["x"],
        "B_w1": _B_in["w1"],
        "B_w2": _B_in["w2"],
    }

def reference(A_x, A_k_cache, A_v_cache, A_wq, A_wo, B_x, B_w1, B_w2):
    def _A_ref(x, k_cache, v_cache, wq, wo):
        B, Sq, D = x.shape
        Hq, Dh = 32, 128
        Hkv = k_cache.shape[1]
        rep = Hq // Hkv
        q = (lambda x, *d: x.permute(*d))((x @ wq).reshape(B, Sq, Hq, Dh), 0, 2, 1, 3)
        k = (lambda x, n, axis: torch.repeat_interleave(x, n, dim=axis))(k_cache, rep, axis=1)
        v = (lambda x, n, axis: torch.repeat_interleave(x, n, dim=axis))(v_cache, rep, axis=1)
        scores = torch.einsum("bhqd,bhkd->bhqk", q, k) * (Dh ** -0.5)
        p = _softmax(scores, axis=-1)
        o = torch.einsum("bhqk,bhkd->bhqd", p, v)
        return (lambda x, *d: x.permute(*d))(o, 0, 2, 1, 3).reshape(B, Sq, Hq * Dh) @ wo

    def _B_ref(x, w1, w2):
        h = torch.einsum("bsd,df->bsf", x, w1)
        zero = torch.zeros_like(h)
        h = torch.maximum(h, zero)
        return torch.einsum("bsf,fd->bsd", h, w2)

    x = A_x
    xn = _layernorm(x, axis=-1)
    s = _A_ref(xn, A_k_cache, A_v_cache, A_wq, A_wo)
    g = _silu(_B_ref(xn, B_w1, B_w2))
    return x + s * g
```

```python
import sys, struct
KNAME = "recurrent_scan__gqa_block_cached__dense_activation_relu__decode_kernel"
HEADER = open("recurrent_scan__gqa_block_cached__dense_activation_relu__decode.s.ref").read().split("; Override launch")[0]

def f32(x): return "0x%08x" % struct.unpack("<I", struct.pack("<f", x))[0]

class E:
    def __init__(self): self.L = []; self.vm = []
    def __call__(self, s): self.L.append("  " + s)
    def label(self, s): self.L.append(s + ":")
    def raw(self, s): self.L.append(s)
    def mem(self, s, tag):
        self.L.append("  " + s); self.vm.append(tag)
    def wait(self, tag):
        idx = max(i for i, t in enumerate(self.vm) if t == tag)
        n = len(self.vm) - 1 - idx
        self(f"s_waitcnt vmcnt({min(63, n)})")
    def text(self): return "\n".join(self.L) + "\n"

YP_OFF = 0x0; ML_OFF = 0x80000; ZP_OFF = 0x100000
NFFN = 172

def dpp(ctrl): return f"{ctrl} row_mask:0xf bank_mask:0xf"

def wave_sum(e, v, sa):
    for c in ("quad_perm:[1,0,3,2]", "quad_perm:[2,3,0,1]", "row_half_mirror", "row_mirror"):
        e("s_nop 1")
        e(f"v_add_f32_dpp v{v}, v{v}, v{v} {dpp(c)}")
    e("s_nop 0")
    for i in range(4): e(f"v_readlane_b32 s{sa+i}, v{v}, {16*i}")
    e("s_nop 1")
    e(f"v_mov_b32 v{v}, s{sa}")
    for i in range(1, 4): e(f"v_add_f32 v{v}, s{sa+i}, v{v}")

def round_bf16(e, vd, vs):
    e(f"v_cvt_pk_bf16_f32 v{vd}, v{vs}, v{vs}")
    e(f"v_and_b32 v{vd}, 0xffff0000, v{vd}")

def srd(e, d, b, nbytes):
    e(f"s_mov_b32 s{d}, s{b}"); e(f"s_mov_b32 s{d+1}, s{b+1}")
    e(f"s_mov_b32 s{d+2}, {nbytes}"); e(f"s_mov_b32 s{d+3}, 0x00020000")

def gen_main(e, D=8, ts=False, wpol=""):
    NG = 64
    assert NG % D == 0
    sK, sV, sWQ, sWO, sX, sW1, sW2, sWS = 28, 32, 36, 40, 44, 48, 52, 56
    sH, sS, sWave = 60, 61, 3
    sKoff, sVoff, sRound, sT0 = 62, 63, 64, 66
    sU = 65
    sZ = 76
    vLane, vKo, vVo = 1, 2, 3
    vM, vL, vC, vT, vP, vM0, vM1 = 4, 5, 6, 7, 8, 9, 10
    vB = 12
    vS = 16
    vMk = 20
    vA4 = 24
    vA4b = 28
    vBq = 32
    vO = 48
    vW = 80
    vF = 208
    vX4 = 224
    vXd = 228
    vPP0, vPP1 = 229, 230
    vTmp = 232
    def ring(slot, i): r = (slot*8 + i)*4; return f"a[{r}:{r+3}]"
    def ringh(slot, i, half): r = (slot*8 + i)*4 + 2*half; return f"a[{r}:{r+1}]"

    e.raw(f".globl {KNAME}"); e.raw(".p2align 8"); e.raw(f".type {KNAME},@function"); e.label(KNAME)
    e("s_cmp_ge_u32 s2, 256")
    e("s_cbranch_scc1 L_main_end")
    e("s_load_dwordx16 s[4:19], s[0:1], 0")
    e("s_load_dwordx2 s[24:25], s[0:1], 80")
    if ts: e("s_memrealtime s[80:81]")
    e("v_lshrrev_b32 v1, 6, v0")
    e("v_and_b32 v0, 63, v0")
    e(f"s_and_b32 s{sH}, s2, 31")
    e(f"v_readfirstlane_b32 s{sWave}, v1")
    e(f"s_lshr_b32 s{sS}, s2, 5")
    e("v_lshrrev_b32 v14, 4, v0")
    e("v_and_b32 v15, 15, v0")
    e(f"v_lshlrev_b32 v{vVo}, 4, v0")
    e(f"v_bfe_u32 v{vTmp}, v0, 2, 2")
    e(f"v_lshlrev_b32 v{vKo}, 8, v{vTmp}")
    e(f"v_lshl_add_u32 v{vKo}, v14, 6, v{vKo}")
    e(f"v_and_b32 v{vTmp+1}, 3, v0")
    e(f"v_lshl_add_u32 v{vKo}, v{vTmp+1}, 4, v{vKo}")
    e(f"s_lshl_b32 s{sKoff}, s{sH}, 23")
    e(f"s_lshl_b32 s{sT0}, s{sS}, 20")
    e(f"s_add_u32 s{sKoff}, s{sKoff}, s{sT0}")
    e(f"s_lshl_b32 s{sT0}, s{sWave}, 12")
    e(f"s_add_u32 s{sKoff}, s{sKoff}, s{sT0}")
    e(f"s_mov_b32 s{sVoff}, s{sKoff}")
    e(f"s_and_b32 s{sT0}, s2, 7")
    e(f"s_lshr_b32 s{sT0+1}, s2, 3")
    e(f"s_mul_i32 s{sU}, s{sT0}, 22")
    e(f"s_add_u32 s{sU}, s{sU}, s{sT0+1}")
    e(f"s_cmp_lt_u32 s{sT0+1}, 22")
    e(f"s_cselect_b32 s{sT0+2}, s{sU}, 999")
    e(f"s_cmp_lt_u32 s{sT0+2}, {NFFN}")
    e(f"s_cselect_b32 s{sT0+2}, 1, 0")
    e(f"s_cselect_b32 s{sU}, s{sU}, 0")
    e(f"s_lshl_b32 s{sT0+3}, s{sWave}, 8")
    e(f"v_lshlrev_b32 v{vTmp}, 2, v0")
    e(f"v_mul_u32_u24 v{vTmp+1}, 5504, v0")
    e(f"s_mul_i32 s{sT0+4}, s{sWave}, {128*2752}")
    e(f"s_lshl_b32 s{sT0+5}, s{sU}, 4")
    e(f"s_add_u32 s{sT0+4}, s{sT0+4}, s{sT0+5}")
    e(f"v_lshlrev_b32 v{vTmp+2}, 4, v15")
    e(f"v_lshl_add_u32 v{vTmp+3}, v14, 11, v{vTmp+2}")
    e(f"s_lshl_b32 s{sT0+5}, s{sU}, 13")
    e(f"s_add_u32 s{sT0+5}, s{sT0+5}, s{sT0+3}")
    e(f"v_lshl_add_u32 v{vTmp+4}, v14, 18, v{vTmp+2}")
    e(f"s_lshl_b32 s{sT0+6}, s{sWave}, 20")
    e(f"s_lshl_b32 s{sT0+7}, s{sH}, 8")
    e(f"s_add_u32 s{sT0+6}, s{sT0+6}, s{sT0+7}")
    e(f"v_lshl_add_u32 v{vTmp+5}, v14, 15, v{vTmp+2}")
    e("s_waitcnt lgkmcnt(0)")
    srd(e, sX, 4, 1024)
    e.mem(f"buffer_load_dword v{vXd}, v{vTmp}, s[{sX}:{sX+3}], s{sT0+3} offen", "xd")
    e.mem(f"buffer_load_dwordx4 v[{vX4}:{vX4+3}], v{vVo}, s[{sX}:{sX+3}], 0 offen", "x4")
    srd(e, sW1, 16, 512*1376*2); srd(e, sW2, 18, 1376*512*2)
    e(f"s_cmp_eq_u32 s{sT0+2}, 1")
    e(f"s_cselect_b32 s{sW1+2}, s{sW1+2}, 0")
    e(f"s_cselect_b32 s{sW2+2}, s{sW2+2}, 0")
    e.mem(f"buffer_load_dwordx4 v[{vF}:{vF+3}], v{vTmp+1}, s[{sW1}:{sW1+3}], s{sT0+4} offen {wpol}", "w1")
    e.mem(f"buffer_load_dwordx4 v[{vF+4}:{vF+7}], v{vTmp+1}, s[{sW1}:{sW1+3}], s{sT0+4} offen offset:2752 {wpol}", "w1")
    e.mem(f"buffer_load_dwordx4 v[{vF+8}:{vF+11}], v{vTmp+3}, s[{sW2}:{sW2+3}], s{sT0+5} offen {wpol}", "w2")
    e.mem(f"buffer_load_dwordx4 v[{vF+12}:{vF+15}], v{vTmp+3}, s[{sW2}:{sW2+3}], s{sT0+5} offen offset:1024 {wpol}", "w2")
    srd(e, sWQ, 10, 512*4096*2); srd(e, sK, 6, 0x10000000); srd(e, sV, 8, 0x10000000)
    srd(e, sWO, 12, 4096*512*2)
    srd(e, sWS, 24, 0x100000)
    e(f"s_add_u32 s{sZ}, s24, {ZP_OFF}"); e(f"s_addc_u32 s{sZ+1}, s25, 0")
    e(f"s_cmp_eq_u32 s{sT0+2}, 1")
    e(f"s_cselect_b32 s{sZ+2}, {NFFN*2048}, 0"); e(f"s_mov_b32 s{sZ+3}, 0x00020000")

    vWQo, vWOo = vTmp+4, vTmp+5
    def issue_wq(batch):
        for i in range(8):
            idx = batch*8 + i
            e.mem(f"buffer_load_dwordx4 v[{vW+idx*4}:{vW+idx*4+3}], v{vWQo}, s[{sWQ}:{sWQ+3}], s{sT0+6} offen {wpol}", f"wq{batch}")
            e(f"s_add_u32 s{sT0+6}, s{sT0+6}, 8192")
    def issue_K(slot, tag="ring"):
        for i in range(4):
            e.mem(f"buffer_load_dwordx4 {ring(slot,i)}, v{vKo}, s[{sK}:{sK+3}], s{sKoff} offen offset:{i*1024} nt", tag)
        e(f"s_add_u32 s{sKoff}, s{sKoff}, 16384")
    def issue_V(slot, tag="ring"):
        for i in range(4):
            e.mem(f"buffer_load_dwordx4 {ring(slot,4+i)}, v{vVo}, s[{sV}:{sV+3}], s{sVoff} offen offset:{i*1024} nt", tag)
        e(f"s_add_u32 s{sVoff}, s{sVoff}, 16384")
    def issue_R(slot): issue_K(slot); issue_V(slot)

    issue_wq(0); issue_R(0); issue_wq(1); issue_R(1)

    t = vTmp+8
    e(f"v_and_b32 v{t}, 1, v0")
    e(f"v_lshlrev_b32 v{t}, 4, v{t}")
    e(f"v_mov_b32 v{t+1}, 0xffff")
    e(f"v_lshlrev_b32 v{t+1}, v{t}, v{t+1}")
    e(f"v_and_b32 v{t+2}, 2, v0")
    e(f"v_cmp_eq_u32 vcc, 0, v{t+2}")
    e("s_nop 1")
    e(f"v_cndmask_b32 v{vM0}, 0, v{t+1}, vcc")
    e(f"v_cndmask_b32 v{vM1}, v{t+1}, 0, vcc")
    e(f"v_lshrrev_b32 v{t+2}, 1, v15")
    for r in range(4):
        e(f"v_cmp_eq_u32 vcc, {r}, v{t+2}")
        e("s_nop 1")
        e(f"v_cndmask_b32 v{vMk+r}, 0, v{t+1}, vcc")
    e(f"v_mov_b32 v{vC}, {f32((128**-0.5)*1.4426950408889634)}")
    e(f"v_mov_b32 v{vM}, {f32(-3.0e38)}")
    e(f"v_mov_b32 v{vL}, 0")
    for i in range(32): e(f"v_mov_b32 v{vO+i}, 0")

    e.wait("x4")
    x = vTmp+8
    for i in range(4):
        e(f"v_lshlrev_b32 v{x+2*i}, 16, v{vX4+i}")
        e(f"v_and_b32 v{x+2*i+1}, 0xffff0000, v{vX4+i}")
    a = vTmp+16
    e(f"v_add_f32 v{a}, v{x}, v{x+1}")
    for i in range(2, 8): e(f"v_add_f32 v{a}, v{a}, v{x+i}")
    wave_sum(e, a, 84)
    e(f"v_mul_f32 v{a}, {f32(1/512)}, v{a}")
    b_ = vTmp+17
    e(f"v_mov_b32 v{b_}, 0")
    for i in range(8):
        e(f"v_sub_f32 v{x+i}, v{x+i}, v{a}")
        e(f"v_fmac_f32 v{b_}, v{x+i}, v{x+i}")
    wave_sum(e, b_, 84)
    e(f"v_mul_f32 v{b_}, {f32(1/512)}, v{b_}")
    round_bf16(e, a, a)
    round_bf16(e, b_, b_)
    e(f"v_add_f32 v{b_}, {f32(1e-5)}, v{b_}")
    round_bf16(e, b_, b_)
    e(f"v_sqrt_f32 v{b_}, v{b_}")
    e("s_nop 0")
    round_bf16(e, b_, b_)
    e(f"v_rcp_f32 v{b_}, v{b_}")
    e(f"v_lshlrev_b32 v{x}, 16, v{vXd}")
    e(f"v_and_b32 v{x+1}, 0xffff0000, v{vXd}")
    for i in range(2):
        e(f"v_sub_f32 v{x+i}, v{x+i}, v{a}")
        round_bf16(e, x+i, x+i)
        e(f"v_mul_f32 v{x+i}, v{x+i}, v{b_}")
    e(f"v_cvt_pk_bf16_f32 v{vPP0}, v{x}, v{x}")
    e(f"v_cvt_pk_bf16_f32 v{vPP1}, v{x+1}, v{x+1}")
    e(f"v_and_b32 v{x}, 0xffff0000, v{vPP0}")
    e(f"v_and_b32 v{x+1}, 0xffff0000, v{vPP1}")
    e.wait("w1")
    hacc = vA4
    u0, u1 = x+2, x+3
    for i in range(4):
        e(f"v_lshlrev_b32 v{u0}, 16, v{vF+i}")
        e(f"v_and_b32 v{u1}, 0xffff0000, v{vF+i}")
        e(f"v_mul_f32 v{hacc+2*i}, v{x}, v{u0}")
        e(f"v_mul_f32 v{hacc+2*i+1}, v{x}, v{u1}")
        e(f"v_lshlrev_b32 v{u0}, 16, v{vF+4+i}")
        e(f"v_and_b32 v{u1}, 0xffff0000, v{vF+4+i}")
        e(f"v_fmac_f32 v{hacc+2*i}, v{x+1}, v{u0}")
        e(f"v_fmac_f32 v{hacc+2*i+1}, v{x+1}, v{u1}")
    for c in ("quad_perm:[1,0,3,2]", "quad_perm:[2,3,0,1]", "row_half_mirror", "row_mirror"):
        e("s_nop 1")
        for j in range(8):
            e(f"v_add_f32_dpp v{hacc+j}, v{hacc+j}, v{hacc+j} {dpp(c)}")
    e(f"s_lshl_b32 s{sT0}, s{sWave}, 7")
    e(f"v_lshl_add_u32 v{u0}, v14, 5, s{sT0}")
    e("v_cmp_eq_u32 vcc, 0, v15")
    e("s_and_saveexec_b64 s[90:91], vcc")
    e(f"ds_write_b128 v{u0}, v[{hacc}:{hacc+3}]")
    e(f"ds_write_b128 v{u0}, v[{hacc+4}:{hacc+7}] offset:16")
    e("s_mov_b64 exec, s[90:91]")

    vQ = vS
    def consume_wq(batch):
        e.wait(f"wq{batch}")
        for i in range(8):
            idx = batch*8 + i
            k, ee = idx >> 1, idx & 1
            A4 = vA4 if (i & 1) == 0 else vA4b
            for r in range(4):
                e(f"v_and_b32_dpp v{A4+r}, v{vPP0+ee}, v{vMk+r} {dpp(f'row_newbcast:{k}')}")
            e("s_nop 1")
            c = "0" if idx == 0 else f"v[{vQ}:{vQ+3}]"
            e(f"v_mfma_f32_16x16x32_bf16 v[{vQ}:{vQ+3}], v[{A4}:{A4+3}], v[{vW+idx*4}:{vW+idx*4+3}], {c}")
    e("s_waitcnt lgkmcnt(0)")
    consume_wq(0)
    issue_wq(2); issue_R(2)
    e("s_barrier")
    e(f"v_lshlrev_b32 v{u0}, 3, v14")
    hp = vO
    for p in range(16):
        e(f"ds_read_b64 v[{hp+2*p}:{hp+2*p+1}], v{u0} offset:{p*32}")
    e("s_waitcnt lgkmcnt(0)")
    for p in range(1, 16):
        e(f"v_add_f32 v{hp}, v{hp}, v{hp+2*p}")
        e(f"v_add_f32 v{hp+1}, v{hp+1}, v{hp+2*p+1}")
    e(f"v_max_f32 v{hp}, 0, v{hp}")
    e(f"v_max_f32 v{hp+1}, 0, v{hp+1}")
    e(f"v_cvt_pk_bf16_f32 v{hp+2}, v{hp}, v{hp}")
    e(f"v_cvt_pk_bf16_f32 v{hp+3}, v{hp+1}, v{hp+1}")
    for r in range(4): e(f"v_and_b32 v{hp+4+r}, v{hp+2}, v{vMk+r}")
    for r in range(4): e(f"v_and_b32 v{hp+8+r}, v{hp+3}, v{vMk+r}")
    e.wait("w2")
    e("s_nop 0")
    e(f"v_mfma_f32_16x16x32_bf16 v[{hp+12}:{hp+15}], v[{hp+4}:{hp+7}], v[{vF+8}:{vF+11}], 0")
    e(f"v_mfma_f32_16x16x32_bf16 v[{hp+12}:{hp+15}], v[{hp+8}:{hp+11}], v[{vF+12}:{vF+15}], v[{hp+12}:{hp+15}]")
    vSt = vTmp+6
    e(f"v_lshlrev_b32 v{vSt}, 5, v15")
    e(f"v_lshl_add_u32 v{vSt}, v14, 4, v{vSt}")
    e(f"s_lshl_b32 s{sT0}, s{sU}, 11")
    e(f"s_lshl_b32 s{sT0+1}, s{sWave}, 9")
    e(f"s_add_u32 s{sT0}, s{sT0}, s{sT0+1}")
    e("s_nop 4")
    e("s_mov_b32 exec_hi, 0")
    e.mem(f"buffer_store_dwordx4 v[{hp+12}:{hp+15}], v{vSt}, s[{sZ}:{sZ+3}], s{sT0} offen", "zst")
    e("s_mov_b64 exec, -1")
    consume_wq(1)
    issue_wq(3); issue_R(3)
    for i in range(32): e(f"v_mov_b32 v{vO+i}, 0")
    consume_wq(2)
    issue_R(4)
    consume_wq(3)
    issue_R(5)
    e(f"s_lshl_b32 s{sT0+1}, s{sWave}, 9")
    e(f"v_add_u32 v{u0}, s{sT0+1}, v{vSt}")
    e("s_mov_b32 exec_hi, 0")
    e(f"ds_write_b128 v{u0}, v[{vQ}:{vQ+3}] offset:512")
    e("s_mov_b64 exec, -1")
    e("s_waitcnt lgkmcnt(0)")
    e("s_barrier")
    e(f"v_and_b32 v{u0}, 3, v0")
    e(f"v_lshl_add_u32 v{u0}, v14, 2, v{u0}")
    e(f"v_lshlrev_b32 v{u0}, 5, v{u0}")
    qp = vW
    for p in range(4):
        e(f"ds_read_b128 v[{qp+8*p}:{qp+8*p+3}], v{u0} offset:{512+p*512}")
        e(f"ds_read_b128 v[{qp+8*p+4}:{qp+8*p+7}], v{u0} offset:{512+p*512+16}")
    e("s_waitcnt lgkmcnt(0)")
    for p in range(1, 4):
        for j in range(8): e(f"v_add_f32 v{qp+j}, v{qp+j}, v{qp+8*p+j}")
    for r in range(4): e(f"v_cvt_pk_bf16_f32 v{qp+8+r}, v{qp+2*r}, v{qp+2*r+1}")
    e(f"v_bfe_u32 v{u0}, v0, 2, 2")
    for u in range(4):
        e(f"v_cmp_eq_u32 vcc, {u}, v{u0}")
        e("s_nop 1")
        for r in range(4): e(f"v_cndmask_b32 v{vBq+4*u+r}, 0, v{qp+8+r}, vcc")
    for sl in range(6, D): issue_R(sl)
    e(f"s_lshl_b32 s{sT0}, s{sH}, 17")
    e(f"s_lshl_b32 s{sT0+1}, s{sWave}, 8")
    e(f"s_add_u32 s{sT0}, s{sT0}, s{sT0+1}")
    for idx in range(32):
        e.mem(f"buffer_load_dwordx4 v[{vW+idx*4}:{vW+idx*4+3}], v{vWOo}, s[{sWO}:{sWO+3}], s{sT0} offen offset:{(idx&3)*1024} {wpol}", "wo")
        if idx & 3 == 3: e(f"s_add_u32 s{sT0}, s{sT0}, 4096")
    if ts: e("s_memrealtime s[82:83]")
    e(f"s_mov_b32 s{sRound}, {NG//D}")
    NW = 8*(D-1) + 4
    e.label("L_loop")
    e(f"s_cmp_eq_u32 s{sRound}, 1")
    e(f"s_cselect_b32 s{sK+2}, 0, 0x10000000")
    e(f"s_cselect_b32 s{sV+2}, 0, 0x10000000")
    e(f"s_cselect_b32 s{sKoff}, 0, s{sKoff}")
    e(f"s_cselect_b32 s{sVoff}, 0, s{sVoff}")
    for d in range(D):
        e(f"s_waitcnt vmcnt({NW})")
        for u in range(4):
            c = "0" if u == 0 else f"v[{vS}:{vS+3}]"
            e(f"v_mfma_f32_16x16x32_bf16 v[{vS}:{vS+3}], {ring(d,u)}, v[{vBq+4*u}:{vBq+4*u+3}], {c}")
        issue_K(d)
        e("s_nop 2")
        e(f"v_mul_f32_dpp v{vT}, v{vS}, v{vC} {dpp('quad_perm:[0,0,0,0]')}")
        for r in range(1, 4):
            e(f"v_fmac_f32_dpp v{vT}, v{vS+r}, v{vC} {dpp(f'quad_perm:[{r},{r},{r},{r}]')}")
        e(f"v_cmp_gt_f32 vcc, v{vT}, v{vM}")
        e(f"s_cbranch_vccnz L_resc{d}")
        e.label(f"L_back{d}")
        e(f"v_sub_f32 v{vT}, v{vT}, v{vM}")
        e(f"v_exp_f32 v{vP}, v{vT}")
        e("s_nop 0")
        e(f"v_add_f32 v{vL}, v{vL}, v{vP}")
        e(f"v_cvt_pk_bf16_f32 v{vP}, v{vP}, v{vP}")
        e(f"v_and_b32 v{vB}, v{vP}, v{vM0}")
        e(f"v_and_b32 v{vB+1}, v{vP}, v{vM1}")
        e(f"s_waitcnt vmcnt({NW})")
        e("s_nop 0")
        for u in range(4):
            for hf in range(2):
                o = vO + (u*2+hf)*4
                e(f"v_mfma_f32_16x16x16_bf16 v[{o}:{o+3}], {ringh(d,4+u,hf)}, v[{vB}:{vB+1}], v[{o}:{o+3}]")
        issue_V(d)
    e(f"s_sub_u32 s{sRound}, s{sRound}, 1")
    e(f"s_cmp_lg_u32 s{sRound}, 0")
    e("s_cbranch_scc1 L_loop")
    if ts: e("s_memrealtime s[84:85]")
    e("s_nop 7")
    e(f"v_bfe_u32 v{vT}, v0, 2, 2")
    for u in range(1, 4):
        e(f"v_cmp_eq_u32 vcc, {u}, v{vT}")
        e("s_nop 1")
        for j in range(8):
            e(f"v_cndmask_b32 v{vO+j}, v{vO+j}, v{vO+8*u+j}, vcc")
    for c in ("row_ror:4", "row_ror:8"):
        e("s_nop 1")
        for j in range(8):
            e(f"v_add_f32_dpp v{vO+j}, v{vO+j}, v{vO+j} {dpp(c)}")
    wave_sum(e, vL, 86)
    e(f"v_mul_f32 v{vL}, 0.25, v{vL}") if False else e(f"v_mul_f32 v{vL}, {f32(0.25)}, v{vL}")
    e(f"s_lshl_b32 s{sT0+1}, s{sWave}, 9")
    e(f"v_lshlrev_b32 v{vT}, 7, v14")
    e(f"v_lshl_add_u32 v{vT}, v15, 2, v{vT}")
    e(f"v_add_u32 v{vT}, s{sT0+1}, v{vT}")
    e("v_cmp_gt_u32 vcc, 4, v15")
    e("s_and_saveexec_b64 s[90:91], vcc")
    for hf in range(2):
        for r in range(4):
            e(f"ds_write_b32 v{vT}, v{vO+hf*4+r} offset:{0xA00 + r*32 + hf*16}")
    e("s_mov_b64 exec, 1")
    e(f"s_lshl_b32 s{sT0+1}, s{sWave}, 3")
    e(f"v_mov_b32 v{vT}, s{sT0+1}")
    e(f"ds_write_b64 v{vT}, v[{vM}:{vM+1}] offset:{0x1200}")
    e("s_mov_b64 exec, -1")
    e("s_waitcnt lgkmcnt(0)")
    e("s_barrier")
    ml = vO
    op = vO + 8
    e(f"v_mov_b32 v{vT}, 0")
    e(f"ds_read_b128 v[{ml}:{ml+3}], v{vT} offset:{0x1200}")
    e(f"ds_read_b128 v[{ml+4}:{ml+7}], v{vT} offset:{0x1210}")
    e(f"v_lshlrev_b32 v{vP}, 3, v0")
    for p in range(4):
        e(f"ds_read_b64 v[{op+2*p}:{op+2*p+1}], v{vP} offset:{0xA00+p*512}")
    e("s_waitcnt lgkmcnt(4)")
    e(f"v_max_f32 v{vM}, v{ml}, v{ml+2}")
    e(f"v_max3_f32 v{vM}, v{ml+4}, v{ml+6}, v{vM}")
    for p in range(4):
        e(f"v_sub_f32 v{ml+2*p}, v{ml+2*p}, v{vM}")
    for p in range(4):
        e(f"v_exp_f32 v{ml+2*p}, v{ml+2*p}")
    e("s_nop 0")
    e(f"v_mul_f32 v{vL}, v{ml}, v{ml+1}")
    for p in range(1, 4): e(f"v_fmac_f32 v{vL}, v{ml+2*p}, v{ml+2*p+1}")
    e("s_waitcnt lgkmcnt(0)")
    e(f"v_mul_f32 v{vT}, v{ml}, v{op}")
    e(f"v_mul_f32 v{vP}, v{ml}, v{op+1}")
    for p in range(1, 4):
        e(f"v_fmac_f32 v{vT}, v{ml+2*p}, v{op+2*p}")
        e(f"v_fmac_f32 v{vP}, v{ml+2*p}, v{op+2*p+1}")
    e(f"v_rcp_f32 v{vC}, v{vL}")
    e("s_nop 0")
    e(f"v_mul_f32 v{vT}, v{vT}, v{vC}")
    e(f"v_mul_f32 v{vP}, v{vP}, v{vC}")
    e(f"v_cvt_pk_bf16_f32 v{vPP0}, v{vT}, v{vT}")
    e(f"v_cvt_pk_bf16_f32 v{vPP1}, v{vP}, v{vP}")
    e("s_waitcnt vmcnt(0)")
    e("s_nop 0")
    for idx in range(32):
        k, ee = idx >> 1, idx & 1
        A4 = vA4 if (idx & 1) == 0 else vA4b
        for r in range(4):
            e(f"v_and_b32_dpp v{A4+r}, v{vPP0+ee}, v{vMk+r} {dpp(f'row_newbcast:{k}')}")
        e("s_nop 1")
        c = "0" if idx == 0 else f"v[{vS}:{vS+3}]"
        e(f"v_mfma_f32_16x16x32_bf16 v[{vS}:{vS+3}], v[{A4}:{A4+3}], v[{vW+idx*4}:{vW+idx*4+3}], {c}")
    e(f"s_lshl_b32 s{sT0}, s{sH}, 3")
    e(f"s_add_u32 s{sT0}, s{sT0}, s{sS}")
    e(f"s_lshl_b32 s{sT0+2}, s{sT0}, 3")
    e(f"s_add_u32 s{sT0+2}, s{sT0+2}, {ML_OFF}")
    e(f"s_lshl_b32 s{sT0}, s{sT0}, 11")
    e(f"s_lshl_b32 s{sT0+1}, s{sWave}, 9")
    e(f"s_add_u32 s{sT0}, s{sT0}, s{sT0+1}")
    e(f"v_mov_b32 v{vT}, 0")
    e("s_nop 2")
    e("s_mov_b32 exec_hi, 0")
    e(f"buffer_store_dwordx4 v[{vS}:{vS+3}], v{vSt}, s[{sWS}:{sWS+3}], s{sT0} offen")
    e(f"s_cmp_lg_u32 s{sWave}, 0")
    e("s_cbranch_scc1 L_skipml")
    e("s_mov_b64 exec, 1")
    e(f"buffer_store_dwordx2 v[{vM}:{vM+1}], v{vT}, s[{sWS}:{sWS+3}], s{sT0+2} offen")
    e.label("L_skipml")
    if ts:
        e("s_memrealtime s[86:87]")
        e("s_waitcnt lgkmcnt(0)")
        e("s_lshl_b32 s88, s2, 2"); e(f"s_add_u32 s88, s88, s{sWave}"); e("s_lshl_b32 s88, s88, 5")
        e("s_add_u32 s88, s88, 0x20000000")
        e("s_add_u32 s24, s24, s88"); e("s_addc_u32 s25, s25, 0")
        e("s_mov_b64 exec, 1")
        for i in range(8): e(f"v_mov_b32 v{vO+i}, s{80+i}")
        e(f"v_mov_b32 v{vT}, 0")
        e(f"global_store_dwordx4 v{vT}, v[{vO}:{vO+3}], s[24:25]")
        e(f"global_store_dwordx4 v{vT}, v[{vO+4}:{vO+7}], s[24:25] offset:16")
    e.label("L_main_end")
    e("s_endpgm")
    for d in range(D):
        e.label(f"L_resc{d}")
        e("s_nop 0")
        e(f"v_max_f32_dpp v{vP}, v{vT}, v{vT} {dpp('row_ror:4')}")
        e("s_nop 1")
        e(f"v_max_f32_dpp v{vP}, v{vP}, v{vP} {dpp('row_ror:8')}")
        e("s_nop 0")
        for i in range(4): e(f"v_readlane_b32 s{92+i}, v{vP}, {16*i}")
        e("s_nop 1")
        e(f"v_max_f32 v{vP}, s92, v{vM}")
        for i in range(1, 4): e(f"v_max_f32 v{vP}, s{92+i}, v{vP}")
        e(f"v_sub_f32 v{vA4}, v{vM}, v{vP}")
        e(f"v_exp_f32 v{vA4}, v{vA4}")
        e(f"v_mov_b32 v{vM}, v{vP}")
        e(f"v_mul_f32 v{vL}, v{vL}, v{vA4}")
        for i in range(32): e(f"v_mul_f32 v{vO+i}, v{vO+i}, v{vA4}")
        e(f"s_branch L_back{d}")

def gen_fin(e):
    N = "fin_kernel"
    e.raw(f".globl {N}"); e.raw(".p2align 8"); e.raw(f".type {N},@function"); e.label(N)
    e("s_cmp_ge_u32 s2, 32")
    e("s_cbranch_scc1 L_fin_end")
    e("s_load_dwordx2 s[4:5], s[0:1], 0")
    e("s_load_dwordx2 s[6:7], s[0:1], 64")
    e("s_load_dwordx2 s[8:9], s[0:1], 80")
    e("v_lshrrev_b32 v1, 6, v0")
    e("v_and_b32 v0, 63, v0")
    e("s_nop 0")
    e("v_readfirstlane_b32 s3, v1")
    e("v_lshrrev_b32 v2, 2, v0")
    e("v_and_b32 v3, 3, v0")
    e("s_and_b32 s10, s3, 1")
    e("s_lshr_b32 s11, s3, 1")
    e("s_lshl_b32 s12, s10, 10")
    e("v_lshlrev_b32 v4, 6, v2")
    e(f"s_add_u32 s12, s12, {ML_OFF}")
    e("v_lshlrev_b32 v5, 14, v2")
    e("v_lshl_add_u32 v5, v3, 4, v5")
    e("s_lshl_b32 s13, s10, 18")
    e("s_lshl_b32 s14, s11, 13")
    e("s_add_u32 s13, s13, s14")
    e("s_lshl_b32 s14, s2, 6")
    e("s_add_u32 s13, s13, s14")
    e("s_add_u32 s15, s13, 4096")
    e("v_lshlrev_b32 v6, 11, v2")
    e("v_lshl_add_u32 v6, v3, 4, v6")
    e("s_lshl_b32 s16, s3, 15")
    e("s_add_u32 s16, s16, s14")
    e("v_add_u32 v6, s16, v6")
    e("v_add_u32 v7, 0x20000, v6")
    e("v_add_u32 v8, 0x40000, v6")
    e("v_and_b32 v9, 15, v0")
    e("s_lshl_b32 s17, s2, 5")
    e("v_lshl_add_u32 v9, v9, 1, s17")
    e("s_waitcnt lgkmcnt(0)")
    srd(e, 20, 8, 0x100000)
    e(f"s_add_u32 s24, s8, {ZP_OFF}"); e("s_addc_u32 s25, s9, 0"); e(f"s_mov_b32 s26, {NFFN*2048}"); e("s_mov_b32 s27, 0x00020000")
    srd(e, 28, 4, 1024); srd(e, 32, 6, 1024)
    for i in range(4): e(f"buffer_load_dwordx4 v[{12+4*i}:{15+4*i}], v4, s[20:23], s12 offen offset:{16*i}")
    for j in range(4):
        e(f"buffer_load_dwordx4 v[{28+4*j}:{31+4*j}], v5, s[20:23], s{13 if j<2 else 15} offen offset:{(j&1)*2048}")
    for j in range(3): e(f"buffer_load_dwordx4 v[{44+4*j}:{47+4*j}], v{6+j}, s[24:27], 0 offen")
    e("buffer_load_ushort v10, v9, s[28:31], 0 offen")
    e("s_waitcnt vmcnt(8)")
    e("v_max3_f32 v56, v12, v14, v16")
    e("v_max3_f32 v56, v18, v20, v56")
    e("v_max3_f32 v56, v22, v24, v56")
    e("v_max_f32 v56, v26, v56")
    for j in range(8): e(f"v_sub_f32 v{12+2*j}, v{12+2*j}, v56")
    for j in range(8): e(f"v_exp_f32 v{12+2*j}, v{12+2*j}")
    e("s_nop 0")
    for j in range(8): e(f"v_mul_f32 v{12+2*j}, v{12+2*j}, v{13+2*j}")
    e("v_add_f32 v57, v12, v14")
    for j in range(2, 8): e(f"v_add_f32 v57, v57, v{12+2*j}")
    e("v_rcp_f32 v57, v57")
    e("s_cmp_eq_u32 s11, 0")
    e("s_cselect_b64 vcc, -1, 0")
    e("s_nop 1")
    for jj in range(4):
        e(f"v_cndmask_b32 v{58+jj}, v{20+2*jj}, v{12+2*jj}, vcc")
    for jj in range(4): e(f"v_mul_f32 v{58+jj}, v{58+jj}, v57")
    e("s_waitcnt vmcnt(4)")
    for c in range(4): e(f"v_mul_f32 v{64+c}, v58, v{28+c}")
    for jj in range(1, 4):
        for c in range(4): e(f"v_fmac_f32 v{64+c}, v{58+jj}, v{28+4*jj+c}")
    e("s_waitcnt vmcnt(1)")
    for c in range(4):
        e(f"v_add_f32 v{68+c}, v{44+c}, v{48+c}")
    for c in range(4):
        e(f"v_add_f32 v{68+c}, v{68+c}, v{52+c}")
    for ctl in ("row_ror:4", "row_ror:8"):
        e("s_nop 1")
        for c in range(8): e(f"v_add_f32_dpp v{64+c}, v{64+c}, v{64+c} {dpp(ctl)}")
    e("v_lshrrev_b32 v2, 4, v0")
    e("s_lshl_b32 s18, s3, 9")
    e("v_lshl_add_u32 v2, v2, 7, s18")
    e("v_lshl_add_u32 v2, v3, 5, v2")
    e("v_and_b32 v4, 15, v0")
    e("v_cmp_gt_u32 vcc, 4, v4")
    e("s_and_saveexec_b64 s[36:37], vcc")
    e("ds_write_b128 v2, v[64:67]")
    e("ds_write_b128 v2, v[68:71] offset:16")
    e("s_mov_b64 exec, s[36:37]")
    e("s_waitcnt lgkmcnt(0)")
    e("s_barrier")
    e("s_cmp_lg_u32 s3, 0")
    e("s_cbranch_scc1 L_fin_end")
    e("v_lshrrev_b32 v2, 4, v0")
    e("v_lshlrev_b32 v2, 9, v2")
    e("v_bfe_u32 v4, v0, 2, 2")
    e("v_lshl_add_u32 v2, v4, 5, v2")
    e("v_lshl_add_u32 v2, v3, 2, v2")
    for p in range(4): e(f"ds_read2_b32 v[{12+2*p}:{13+2*p}], v2 offset0:{p*32} offset1:{p*32+4}")
    e("s_waitcnt lgkmcnt(0)")
    for p in range(1, 4):
        e(f"v_add_f32 v12, v12, v{12+2*p}")
        e(f"v_add_f32 v13, v13, v{13+2*p}")
    for swap in ("v_permlane32_swap_b32", "v_permlane16_swap_b32"):
        e("v_mov_b32 v14, v12"); e("v_mov_b32 v15, v13")
        e("s_nop 1")
        e(f"{swap} v12, v14"); e(f"{swap} v13, v15")
        e("s_nop 1")
        e("v_add_f32 v12, v12, v14"); e("v_add_f32 v13, v13, v15")
    round_bf16(e, 12, 12); round_bf16(e, 13, 13)
    e(f"v_mul_f32 v14, {f32(-1.4426950408889634)}, v13")
    e("v_exp_f32 v14, v14")
    e("s_nop 0")
    e("v_add_f32 v14, 1.0, v14")
    e("v_rcp_f32 v14, v14")
    e("s_nop 0")
    e("v_mul_f32 v14, v13, v14")
    round_bf16(e, 14, 14)
    e("v_mul_f32 v12, v12, v14")
    round_bf16(e, 12, 12)
    e("s_waitcnt vmcnt(0)")
    e("v_lshlrev_b32 v10, 16, v10")
    e("v_add_f32 v12, v10, v12")
    e("v_cvt_pk_bf16_f32 v12, v12, v12")
    e("s_mov_b64 exec, 0xffff")
    e("buffer_store_short v12, v9, s[32:35], 0 offen")
    e.label("L_fin_end")
    e("s_endpgm")

def desc(name, nv, ns, acc):
    return f""".amdhsa_kernel {name}
  .amdhsa_next_free_vgpr {nv}
  .amdhsa_next_free_sgpr {ns}
  .amdhsa_accum_offset {acc}
  .amdhsa_group_segment_fixed_size 0
  .amdhsa_kernarg_size 88
  .amdhsa_user_sgpr_count 2
  .amdhsa_user_sgpr_kernarg_segment_ptr 1
  .amdhsa_system_sgpr_workgroup_id_x 1
  .amdhsa_float_denorm_mode_32 3
.end_amdhsa_kernel
"""

def build(ts=False, wpol=""):
    e = E()
    e.raw(HEADER.rstrip())
    e.raw(f"; @launch kernel={KNAME} grid=(256,1,1) block=(256,1,1) lds=8192")
    e.raw("; @launch kernel=fin_kernel grid=(32,1,1) block=(256,1,1) lds=4096")
    e.raw('.amdgcn_target "amdgcn-amd-amdhsa--gfx950"')
    e.raw(".text")
    gen_main(e, ts=ts, wpol=wpol)
    gen_fin(e)
    e.raw('.section .rodata,"a"'); e.raw(".p2align 6")
    e.raw(desc(KNAME, 512, 100, 256))
    e.raw(".p2align 6")
    e.raw(desc("fin_kernel", 72, 40, 72))
    return e.text()

if __name__ == "__main__":
    out = sys.argv[1]
    kw = eval("dict(%s)" % (sys.argv[2] if len(sys.argv) > 2 else ""))
    open(out, "w").write(build(**kw))
```

```python
import sys, struct
KNAME = "recurrent_scan__gqa_block_cached__dense_activation_relu__decode_kernel"
HEADER = open("recurrent_scan__gqa_block_cached__dense_activation_relu__decode.s.ref").read().split("; Override launch")[0]

def f32(x): return "0x%08x" % struct.unpack("<I", struct.pack("<f", x))[0]

class E:
    def __init__(self): self.L = []; self.vm = []
    def __call__(self, s): self.L.append("  " + s)
    def label(self, s): self.L.append(s + ":")
    def raw(self, s): self.L.append(s)
    def c(self, s): self.L.append("  ; " + s)
    def mem(self, s, tag):
        self.L.append("  " + s); self.vm.append(tag)
    def wait(self, tag, gen=None):
        idxs = [i for i, t in enumerate(self.vm) if t == tag]
        idx = idxs[-1] if gen is None else idxs[4*gen+3]
        n = len(self.vm) - 1 - idx
        self(f"s_waitcnt vmcnt({min(59, n)})")
    def text(self): return "\n".join(self.L) + "\n"

QP, HP, OP, MLP, YP, ZP, TK, WS_END = 0x0, 0x40000, 0x60000, 0xA0000, 0xB0000, 0xD0000, 0xF0000, 0xF2000
L_Q, L_H, L_QB, L_EP, L_CT, L_HT, L_O, L_ML, L_OC = 0x0, 0x800, 0xC00, 0xD00, 0xD08, 0xD40, 0x1000, 0x1800, 0x1900
OOB = 0x40000000
POLL_MAX = 400000

def dpp(ctrl): return f"{ctrl} row_mask:0xf bank_mask:0xf"

def wave_sum(e, v, sa):
    for c in ("quad_perm:[1,0,3,2]", "quad_perm:[2,3,0,1]", "row_half_mirror", "row_mirror"):
        e("s_nop 1")
        e(f"v_add_f32_dpp v{v}, v{v}, v{v} {dpp(c)}")
    e("s_nop 0")
    for i in range(4): e(f"v_readlane_b32 s{sa+i}, v{v}, {16*i}")
    e("s_nop 1")
    e(f"v_mov_b32 v{v}, s{sa}")
    for i in range(1, 4): e(f"v_add_f32 v{v}, s{sa+i}, v{v}")

def round_bf16(e, vd, vs):
    e(f"v_cvt_pk_bf16_f32 v{vd}, v{vs}, v{vs}")
    e(f"v_and_b32 v{vd}, 0xffff0000, v{vd}")

def srd(e, d, b, nbytes):
    e(f"s_mov_b32 s{d}, s{b}"); e(f"s_mov_b32 s{d+1}, s{b+1}")
    e(f"s_mov_b32 s{d+2}, {nbytes}"); e(f"s_mov_b32 s{d+3}, 0x00020000")

def gen_main(e, G=8, NS=48, ts=False, pre=2, nocas=False, noex=False, nocomp=False, now='', thr=None, ep='cas', D=4, DA=12, kpol='nt', vpol='nt'):
    w0pre = apre = pre
    m = 8 // G; lg = G.bit_length()-1; lm = m.bit_length()-1
    DYN = NS*32
    sK, sV, sWQ, sWO, sX, sW1, sW2, sWS, sOUT = 28, 32, 36, 40, 44, 48, 52, 56, 76
    sH, sS, sWave = 60, 61, 3
    sKoff, sVoff, sCnt, sNC = 62, 63, 64, 65
    T = 66
    sHB, sP = 74, 75
    sTA, sTB = 80, 81
    sTk, sC0, sTKa = 84, 85, 86
    sVal = 88
    sRL = 96
    sTS = 100
    vKo, vVo, vM, vL, vC, vT, vP, vM0, vM1 = 2, 3, 4, 5, 6, 7, 8, 9, 10
    vSt = 11
    vB = 12; vb, vn = 14, 15
    vS = 16; vMk = 20; vA = 24; vA2 = 28; vD2 = 32
    vBq = 36; vO = 52; vW = 84; vW2 = 148; vG = 172
    vX4 = 220; vXc = 224; vPP = 226
    vt = 232
    vTS = 248
    nts = [0]
    def stamp(i):
        if ts:
            e(f"s_memrealtime s[{sTS}:{sTS+1}]")
            e("s_waitcnt lgkmcnt(0)")
            e(f"v_mov_b32 v{vTS+i}, s{sTS}")
    def rbase(slot, i):
        if slot < 8: return "a", (slot*8 + i)*4
        return "v", vW + ((slot-8)*8 + i)*4
    def ring(slot, i): c, r = rbase(slot, i); return f"{c}[{r}:{r+3}]"
    def ringh(slot, i, half): c, r = rbase(slot, i); r += 2*half; return f"{c}[{r}:{r+1}]"
    J1 = 4*pre + 3*(DA-pre)
    J2 = J1 + (D-pre)
    J3 = J2 + 3*D
    assert J3 <= 4*NS
    def v4(r): return f"v[{r}:{r+3}]"

    e.raw(f".globl {KNAME}"); e.raw(".p2align 8"); e.raw(f".type {KNAME},@function"); e.label(KNAME)
    e("s_cmp_ge_u32 s2, 256")
    e("s_cbranch_scc1 L_end")
    e("s_load_dwordx16 s[4:19], s[0:1], 0")
    e("s_load_dwordx4 s[20:23], s[0:1], 64")
    e("s_load_dwordx2 s[24:25], s[0:1], 80")
    e(f"s_memrealtime s[{sTA}:{sTA+1}]")
    e("v_lshrrev_b32 v1, 6, v0")
    e("v_and_b32 v0, 63, v0")
    e(f"s_and_b32 s{T}, s2, 7")
    e(f"v_readfirstlane_b32 s{sWave}, v1")
    e(f"s_lshr_b32 s{T+1}, s2, 3")
    e(f"s_lshr_b32 s{T+2}, s{T}, {lg}")
    e(f"s_and_b32 s{T+3}, s{T}, {G-1}")
    e(f"s_lshr_b32 s{sH}, s{T+1}, {lm}")
    e(f"s_and_b32 s{T+4}, s{T+1}, {m-1}")
    e(f"s_mul_i32 s{sH}, s{sH}, {8//G}")
    e(f"s_add_u32 s{sH}, s{sH}, s{T+2}")
    e(f"s_mul_i32 s{sS}, s{T+3}, {m}")
    e(f"s_add_u32 s{sS}, s{sS}, s{T+4}")
    e(f"s_lshl_b32 s{sP}, s{sH}, 3")
    e(f"s_add_u32 s{sP}, s{sP}, s{sS}")
    e(f"s_lshl_b32 s{sHB}, s{sH}, 23")
    sPos, sJ = sVal+2, sVal+3
    sO = sVal+4
    vJ, vOne, vZero = 230, 231, 1
    vWOo = 219
    if G == 8:
        e(f"s_add_u32 s{sPos}, s{sS}, s{sH}")
    else:
        e(f"s_mov_b32 s{sPos}, s{sS}")
    e(f"v_lshrrev_b32 v{vb}, 4, v0")
    e(f"v_and_b32 v{vn}, 15, v0")
    e(f"v_lshlrev_b32 v{vVo}, 4, v0")
    e(f"v_bfe_u32 v{vt}, v0, 2, 2")
    e(f"v_lshlrev_b32 v{vKo}, 8, v{vt}")
    e(f"v_lshl_add_u32 v{vKo}, v{vb}, 6, v{vKo}")
    e(f"v_and_b32 v{vt+1}, 3, v0")
    e(f"v_lshl_add_u32 v{vKo}, v{vt+1}, 4, v{vKo}")
    e(f"s_min_u32 s{T}, s{sH}, 12")
    e(f"s_mul_i32 s{sC0}, s{sH}, 5")
    e(f"s_add_u32 s{sC0}, s{sC0}, s{T}")
    e(f"s_cmp_lt_u32 s{sH}, 12")
    e(f"s_cselect_b32 s{sNC}, 6, 5")
    e(f"s_lshl_b32 s{T}, s{sS}, 6")
    e(f"s_lshl_b32 s{T+1}, s{sWave}, 4")
    e(f"s_add_u32 s{T}, s{T}, s{T+1}")
    e(f"s_lshl_b32 s{T+1}, s{T}, 1")
    e(f"s_lshl_b32 s{T+2}, s{T}, 13")
    e(f"s_lshl_b32 s{T+3}, s{sH}, 8")
    e(f"s_add_u32 s{T+2}, s{T+2}, s{T+3}")
    e(f"s_mul_i32 s{T+3}, s{T}, 2752")
    e(f"s_lshl_b32 s{T+4}, s{sC0}, 4")
    e(f"s_add_u32 s{T+3}, s{T+3}, s{T+4}")
    e(f"v_lshlrev_b32 v{vt}, 3, v{vb}")
    e(f"v_lshlrev_b32 v{vt+1}, 4, v{vn}")
    e(f"v_lshl_add_u32 v{vt+2}, v{vb}, 15, v{vt+1}")
    e(f"v_mul_u32_u24 v{vt+3}, {4*2752}, v{vb}")
    e(f"v_add_u32 v{vt+3}, v{vt+3}, v{vt+1}")
    e(f"v_mov_b32 v{vt+4}, {OOB}")
    e(f"v_cmp_gt_u32 vcc, s{sNC}, v{vn}")
    e("s_nop 1")
    e(f"v_cndmask_b32 v{vt+3}, v{vt+4}, v{vt+3}, vcc")
    e("s_waitcnt lgkmcnt(0)")
    if ts:
        e(f"v_mov_b32 v{vTS}, s{sTA}")
        for i in range(1, 8): e(f"v_mov_b32 v{vTS+i}, 0")
    srd(e, sX, 4, 1024); srd(e, sWQ, 10, 0 if "q" in now else 512*4096*2); srd(e, sW1, 16, 0 if "1" in now else 512*1376*2)
    base_vm = []
    e.mem(f"buffer_load_dwordx4 {v4(vX4)}, v{vVo}, s[{sX}:{sX+3}], 0 offen nt", "x4")
    e.mem(f"buffer_load_dwordx2 v[{vXc}:{vXc+1}], v{vt}, s[{sX}:{sX+3}], s{T+1} offen nt", "xc")
    for i in range(4):
        e.mem(f"buffer_load_dwordx4 {v4(vW+i*4)}, v{vt+2}, s[{sWQ}:{sWQ+3}], s{T+2} offen nt", "wq")
        if i < 3: e(f"s_add_u32 s{T+2}, s{T+2}, 8192")
    for i in range(4):
        e.mem(f"buffer_load_dwordx4 {v4(vW+16+i*4)}, v{vt+3}, s[{sW1}:{sW1+3}], s{T+3} offen nt", "w1")
        if i < 3: e(f"s_add_u32 s{T+3}, s{T+3}, 2752")
    srd(e, sK, 6, 0x10000000); srd(e, sV, 8, 0x10000000)
    e(f"s_lshl_b32 s{T}, s{sH}, 8")
    e(f"s_add_u32 s{T}, s{T}, {TK}")
    e(f"s_add_u32 s{sTKa}, s24, s{T}")
    e(f"s_addc_u32 s{sTKa+1}, s25, 0")

    def addr_local():
        e(f"s_lshr_b32 s{sO+1}, s{sJ}, 2")
        if G == 8:
            e(f"s_add_u32 s{sO+2}, s{sO+1}, s{sPos}")
            e(f"s_and_b32 s{sO+2}, s{sO+2}, 7")
            e(f"s_lshl_b32 s{sO+1}, s{sO+1}, 3")
            e(f"s_add_u32 s{sO+1}, s{sO+1}, s{sO+2}")
        else:
            e(f"s_lshl_b32 s{sO+1}, s{sO+1}, 3")
            e(f"s_add_u32 s{sO+1}, s{sO+1}, s{sPos}")
        e(f"s_lshl_b32 s{sO+1}, s{sO+1}, 2")
        e(f"s_and_b32 s{sO+2}, s{sJ}, 3")
        e(f"s_add_u32 s{sO+1}, s{sO+1}, s{sO+2}")
        e(f"s_lshl_b32 s{sO+1}, s{sO+1}, 12")
        e(f"s_add_u32 s{sO}, s{sO+1}, s{sHB}")
    def req_local():
        e("s_mov_b64 exec, 1")
        e(f"ds_add_rtn_u32 v{vJ}, v{vZero}, v{vOne} offset:{L_CT}")
        e("s_mov_b64 exec, -1")
    def take_local():
        e("s_waitcnt lgkmcnt(0)")
        e(f"v_readfirstlane_b32 s{sJ}, v{vJ}")
    def issue_K(slot):
        for i in range(4):
            e.mem(f"buffer_load_dwordx4 {ring(slot,i)}, v{vKo}, s[{sK}:{sK+3}], s{sO} offen offset:{i*1024} {kpol}", f"K{slot}")
    def issue_V(slot):
        for i in range(4):
            e.mem(f"buffer_load_dwordx4 {ring(slot,4+i)}, v{vVo}, s[{sV}:{sV+3}], s{sO} offen offset:{i*1024} {vpol}", f"V{slot}")
    def issue_pre(slot):
        e(f"s_add_u32 s{sJ}, s{sWave}, {4*slot}")
        addr_local(); issue_K(slot); issue_V(slot)
    def issue_fill(slot, ctrl, throttle=None):
        k = slot - pre
        if throttle is None: throttle = 59
        if ctrl: e(f"s_mov_b32 s{sJ}, {J1 + k}")
        else: e(f"s_add_u32 s{sJ}, s{sWave}, {4*pre + 3*k - 1}")
        addr_local()
        if throttle is not None: e(f"s_waitcnt vmcnt({throttle})")
        issue_K(slot)
        if throttle is not None: e(f"s_waitcnt vmcnt({throttle})")
        issue_V(slot)

    def consts():
        t = vt+8
        e(f"v_and_b32 v{t}, 1, v0")
        e(f"v_lshlrev_b32 v{t}, 4, v{t}")
        e(f"v_mov_b32 v{t+1}, 0xffff")
        e(f"v_lshlrev_b32 v{t+1}, v{t}, v{t+1}")
        e(f"v_and_b32 v{t+2}, 2, v0")
        e(f"v_cmp_eq_u32 vcc, 0, v{t+2}")
        e(f"v_bfe_u32 v{t+2}, v0, 1, 2")
        e("s_nop 0")
        e(f"v_cndmask_b32 v{vM0}, 0, v{t+1}, vcc")
        e(f"v_cndmask_b32 v{vM1}, v{t+1}, 0, vcc")
        for r in range(4):
            e(f"v_cmp_eq_u32 vcc, {r}, v{t+2}")
            e("s_nop 1")
            e(f"v_cndmask_b32 v{vMk+r}, 0, v{t+1}, vcc")
        e(f"v_mov_b32 v{vC}, {f32((128**-0.5)*1.4426950408889634)}")
        e(f"v_mov_b32 v{vM}, {f32(-3.0e38)}")
        e(f"v_mov_b32 v{vL}, 0")
        for i in range(32): e(f"v_mov_b32 v{vO+i}, 0")
        e(f"v_lshlrev_b32 v{vSt}, 5, v{vn}")
        e(f"v_lshl_add_u32 v{vSt}, v{vb}, 4, v{vSt}")
        srd(e, sWS, 24, WS_END)
        e(f"s_mov_b32 s{sVal}, 0x7fffffff")
        e(f"v_mov_b32 v{vOne}, 1"); e(f"v_mov_b32 v{vZero}, 0")

    def ln_and_partials(ctrl):
        e.wait("xc")
        if ctrl and ep == 'load' and not nocas:
            e("s_waitcnt lgkmcnt(0)")
            e(f"s_load_dwordx2 s[{sTA}:{sTA+1}], s[22:23], 0x0")
        x = vt
        a, b_ = vt+8, vt+9
        for i in range(4):
            e(f"v_lshlrev_b32 v{x+2*i}, 16, v{vX4+i}")
            e(f"v_and_b32 v{x+2*i+1}, 0xffff0000, v{vX4+i}")
        e(f"v_add_f32 v{a}, v{x}, v{x+1}")
        for i in range(2, 8): e(f"v_add_f32 v{a}, v{a}, v{x+i}")
        wave_sum(e, a, sRL)
        e(f"v_mul_f32 v{a}, {f32(1/512)}, v{a}")
        e(f"v_mov_b32 v{b_}, 0")
        for i in range(8):
            e(f"v_sub_f32 v{x+i}, v{x+i}, v{a}")
            e(f"v_fmac_f32 v{b_}, v{x+i}, v{x+i}")
        wave_sum(e, b_, sRL)
        e(f"v_mul_f32 v{b_}, {f32(1/512)}, v{b_}")
        round_bf16(e, a, a)
        round_bf16(e, b_, b_)
        e(f"v_add_f32 v{b_}, {f32(1e-5)}, v{b_}")
        round_bf16(e, b_, b_)
        e(f"v_sqrt_f32 v{b_}, v{b_}")
        e("s_nop 0")
        round_bf16(e, b_, b_)
        e(f"v_rcp_f32 v{b_}, v{b_}")
        for i in range(2):
            e(f"v_lshlrev_b32 v{x+2*i}, 16, v{vXc+i}")
            e(f"v_and_b32 v{x+2*i+1}, 0xffff0000, v{vXc+i}")
        for i in range(4):
            e(f"v_sub_f32 v{x+i}, v{x+i}, v{a}")
            round_bf16(e, x+i, x+i)
            e(f"v_mul_f32 v{x+i}, v{x+i}, v{b_}")
            e(f"v_cvt_pk_bf16_f32 v{vPP+i}, v{x+i}, v{x+i}")
        e.wait("w1")
        for i in range(4):
            A4 = vA if (i & 1) == 0 else vA2
            for r in range(4): e(f"v_and_b32 v{A4+r}, v{vPP+i}, v{vMk+r}")
            e("s_nop 1")
            c = "0" if i == 0 else v4(vS)
            e(f"v_mfma_f32_16x16x32_bf16 {v4(vS)}, {v4(A4)}, {v4(vW+i*4)}, {c}")
            c = "0" if i == 0 else v4(vD2)
            e(f"v_mfma_f32_16x16x32_bf16 {v4(vD2)}, {v4(A4)}, {v4(vW+16+i*4)}, {c}")
        e(f"s_lshl_b32 s{T}, s{sWave}, 9")
        e(f"v_add_u32 v{x}, s{T}, v{vSt}")
        e(f"s_lshl_b32 s{T}, s{sWave}, 8")
        e(f"v_add_u32 v{x+1}, s{T}, v{vSt}")
        e("s_nop 4")
        e("s_mov_b32 exec_hi, 0")
        e(f"ds_write_b128 v{x}, {v4(vS)} offset:{L_Q}")
        e("s_mov_b32 exec_lo, 0x00ff00ff")
        e(f"ds_write_b128 v{x+1}, {v4(vD2)} offset:{L_H}")
        e("s_mov_b64 exec, -1")
        if not ctrl:
            e(f"v_mov_b32 v{x+2}, 0"); e(f"v_mov_b32 v{x+3}, 0")
            e(f"ds_write_b64 v{x+2}, v[{x+2}:{x+3}] offset:{L_EP}")
            e(f"v_mov_b32 v{x+4}, {J3}")
            e(f"ds_write_b32 v{x+2}, v{x+4} offset:{L_CT}")
            e("s_waitcnt lgkmcnt(0)")
        e("s_barrier")

    def tagcheck(regs, acc, tmp):
        for k, r in enumerate(regs):
            e(f"v_xor_b32 v{tmp}, s{sTA}, v{r+1}")
            e(f"v_xor_b32 v{tmp+1}, s{sTB}, v{r+3}")
            if k == 0: e(f"v_or_b32 v{acc}, v{tmp}, v{tmp+1}")
            else: e(f"v_or3_b32 v{acc}, v{tmp}, v{tmp+1}, v{acc}")
        e(f"v_cmp_ne_u32 vcc, 0, v{acc}")

    def poll(name, loads, regs):
        if noex and name in ("q", "h"): return
        e(f"s_mov_b32 s{T+7}, {POLL_MAX}")
        e.label(f"L_poll_{name}")
        for l in loads: e(l)
        e(f"s_sub_u32 s{T+7}, s{T+7}, 1")
        e("s_waitcnt vmcnt(0)")
        tagcheck(regs, vt+14, vt+12)
        e(f"s_cbranch_vccz L_polld_{name}")
        e(f"s_cmp_lg_u32 s{T+7}, 0")
        e(f"s_cbranch_scc1 L_poll_{name}")
        e.label(f"L_polld_{name}")

    def build_bq():
        u0 = vt
        e(f"v_and_b32 v{u0}, 3, v0")
        e(f"v_lshl_add_u32 v{u0}, v{vb}, 2, v{u0}")
        e(f"v_lshlrev_b32 v{u0}, 4, v{u0}")
        e(f"ds_read_b128 {v4(vA)}, v{u0} offset:{L_QB}")
        e(f"v_bfe_u32 v{u0+1}, v0, 2, 2")
        e("s_waitcnt lgkmcnt(0)")
        for u in range(4):
            e(f"v_cmp_eq_u32 vcc, {u}, v{u0+1}")
            e("s_nop 1")
            for r in range(4): e(f"v_cndmask_b32 v{vBq+4*u+r}, 0, v{vA+r}, vcc")

    NW = 8*(D-1) + 4
    resc = []
    def group(d, name, dyn, first=False):
        if dyn:
            e(f"s_sub_u32 s{sVal}, s{sVal}, 1")
            e(f"s_cmp_eq_u32 s{sVal}, 0")
            e("s_cbranch_scc1 L_done")
        if first: e.wait(f"K{d}", 0)
        else: e(f"s_waitcnt vmcnt({NW})")
        for u in range(4):
            c = "0" if u == 0 else v4(vS)
            if not nocomp: e(f"v_mfma_f32_16x16x32_bf16 {v4(vS)}, {ring(d,u)}, {v4(vBq+4*u)}, {c}")
        if dyn:
            e.label(f"L_mid{name}")
            e("s_waitcnt lgkmcnt(0)")
            e(f"s_cmp_lt_u32 s{sTk}, {2048-DYN}")
            e(f"s_cselect_b32 s{sK+2}, 0x10000000, 0")
            e(f"s_cselect_b32 s{sV+2}, 0x10000000, 0")
            e(f"s_cselect_b32 s{sVal+1}, s{sVal}, {D}")
            e(f"s_cselect_b32 s{sKoff}, s{sTk}, 0")
            e(f"s_cbranch_scc0 L_notk{name}")
            e(f"s_mov_b32 s{sTk}, 1")
            e(f"s_atomic_add s{sTk}, s[{sTKa}:{sTKa+1}], 0x0 glc")
            e.label(f"L_notk{name}")
            e(f"s_min_u32 s{sVal}, s{sVal}, s{sVal+1}")
            e(f"s_add_u32 s{sKoff}, s{sKoff}, {DYN}")
            e(f"s_lshl_b32 s{sKoff}, s{sKoff}, 12")
            e(f"s_add_u32 s{sO}, s{sKoff}, s{sHB}")
            issue_K(d)
        elif first:
            if d < D:
                e(f"s_add_u32 s{sJ}, s{sWave}, {J2 + 3*d - 1}")
                addr_local(); issue_K(d)
            else: e("s_nop 7")
        else:
            take_local()
            e("s_nop 0")
            e(f"s_cmp_ge_u32 s{sJ}, {4*NS}")
            e(f"s_cbranch_scc1 L_sw{d}" if ts else f"s_cbranch_scc1 L_midd{d}")
            req_local(); addr_local()
            issue_K(d)
        e(f"v_mul_f32_dpp v{vT}, v{vS}, v{vC} {dpp('quad_perm:[0,0,0,0]')}")
        for r in range(1, 4):
            e(f"v_fmac_f32_dpp v{vT}, v{vS+r}, v{vC} {dpp(f'quad_perm:[{r},{r},{r},{r}]')}")
        e(f"v_cmp_gt_f32 vcc, v{vT}, v{vM}")
        e(f"s_cbranch_vccnz L_resc{name}")
        e.label(f"L_back{name}")
        resc.append(name)
        e(f"v_sub_f32 v{vT}, v{vT}, v{vM}")
        e(f"v_exp_f32 v{vP}, v{vT}")
        e("s_nop 0")
        e(f"v_add_f32 v{vL}, v{vL}, v{vP}")
        e(f"v_cvt_pk_bf16_f32 v{vP}, v{vP}, v{vP}")
        e(f"v_and_b32 v{vB}, v{vP}, v{vM0}")
        e(f"v_and_b32 v{vB+1}, v{vP}, v{vM1}")
        if first: e.wait(f"V{d}", 0)
        else: e(f"s_waitcnt vmcnt({NW})")
        e("s_nop 0")
        for u in range(4):
            for hf in range(2):
                o = vO + (u*2+hf)*4
                if not nocomp: e(f"v_mfma_f32_16x16x16_bf16 {v4(o)}, {ringh(d,4+u,hf)}, v[{vB}:{vB+1}], {v4(o)}")
        if not first or d < D: issue_V(d)

    common_vm = list(e.vm)
    e(f"s_cmp_eq_u32 s{sWave}, 0")
    e("s_cbranch_scc1 L_wave0")
    for d in range(apre): issue_pre(d)
    consts()
    ln_and_partials(False)
    for d in range(apre, DA): issue_fill(d, False, thr)
    e(f"v_mov_b32 v{vt}, 0")
    e.label("L_waitq")
    e(f"ds_read_b64 v[{vt+2}:{vt+3}], v{vt} offset:{L_EP}")
    e("s_waitcnt lgkmcnt(0)")
    e(f"v_or_b32 v{vt+2}, v{vt+2}, v{vt+3}")
    e(f"v_cmp_eq_u32 vcc, 0, v{vt+2}")
    e("s_cbranch_vccnz L_waitq")
    build_bq()
    stamp(2)
    for d in range(DA): group(d, f"f{d}", False, True)
    e("s_branch L_stream")
    e.label("L_wave0")
    e.vm = list(common_vm)
    e(f"s_mov_b32 s{T+4}, s{sTA}"); e(f"s_mov_b32 s{T+5}, s{sTA+1}")
    e(f"s_mov_b32 s{sTA+2}, 0"); e(f"s_mov_b32 s{sTA+3}, 0")
    if nocas:
        e(f"s_mov_b32 s{sTA}, 0x12345678"); e(f"s_mov_b32 s{sTB}, 0x13572468")
    elif ep == 'cas':
        e(f"s_atomic_cmpswap_x2 s[{sTA}:{sTA+3}], s[22:23], 0x0 glc")
    else:
        e("s_cmp_ge_u32 s2, 8")
        e("s_cbranch_scc1 L_nocas0")
        e(f"s_atomic_cmpswap_x2 s[{sTA}:{sTA+3}], s[22:23], 0x0 glc")
        e.label("L_nocas0")
    e(f"s_cmp_lg_u32 s{sS}, 0")
    e("s_cbranch_scc1 L_notk")
    e(f"s_mov_b32 s{sTk}, 32")
    e(f"s_atomic_swap s{sTk}, s[{sTKa}:{sTKa+1}], 0x0 glc")
    e.label("L_notk")
    srd(e, sW2, 18, 0 if "2" in now else 1376*512*2)
    vE = vt+5
    e(f"v_lshrrev_b32 v{vE}, 3, v0")
    e(f"v_and_b32 v{vt+6}, 7, v0")
    e(f"v_lshlrev_b32 v{vt+6}, 4, v{vt+6}")
    e(f"v_lshl_add_u32 v{vt+7}, v{vE}, 10, v{vt+6}")
    e(f"s_lshl_b32 s{T}, s{sC0}, 13")
    e(f"s_lshl_b32 s{T+1}, s{sS}, 7")
    e(f"s_add_u32 s{T}, s{T}, s{T+1}")
    for t in range(6):
        if t == 5:
            e(f"s_cmp_eq_u32 s{sNC}, 6")
            e(f"s_cselect_b32 s{sW2+2}, s{sW2+2}, 0")
            e(f"s_cselect_b32 s{T}, s{T}, 0")
        e.mem(f"buffer_load_dwordx4 {v4(vW2+t*4)}, v{vt+7}, s[{sW2}:{sW2+3}], s{T} offen nt", "w2")
        if t < 5: e(f"s_add_u32 s{T}, s{T}, 8192")
    e(f"v_lshl_add_u32 v{vWOo}, v{vE}, 14, v{vt+6}")
    for d in range(w0pre): issue_pre(d)
    consts()
    ln_and_partials(True)
    e(f"v_lshlrev_b32 v{vt}, 3, v0")
    for p in range(4): e(f"ds_read_b64 v[{vG+2*p}:{vG+2*p+1}], v{vt} offset:{L_Q+p*512}")
    for p in range(4): e(f"ds_read_b64 v[{vG+8+2*p}:{vG+8+2*p+1}], v{vt} offset:{L_H+p*256}")
    e("s_waitcnt lgkmcnt(0)")
    stamp(1)
    if ep == 'load' and not nocas:
        e(f"s_or_b32 s{T}, s{sTA}, s{sTA+1}")
        e(f"s_cmp_lg_u32 s{T}, 0")
        e("s_cbranch_scc1 L_haveep")
        e(f"s_mov_b32 s{sTA}, s{T+4}"); e(f"s_mov_b32 s{sTA+1}, s{T+5}")
        e(f"s_mov_b32 s{sTA+2}, 0"); e(f"s_mov_b32 s{sTA+3}, 0")
        e(f"s_atomic_cmpswap_x2 s[{sTA}:{sTA+3}], s[22:23], 0x0 glc")
        e("s_waitcnt lgkmcnt(0)")
    e(f"s_or_b32 s{T}, s{sTA}, s{sTA+1}")
    e(f"s_cmp_eq_u32 s{T}, 0")
    e(f"s_cselect_b32 s{sTA}, s{T+4}, s{sTA}")
    e(f"s_cselect_b32 s{sTB}, s{T+5}, s{sTB}")
    e.label("L_haveep")
    e(f"v_mov_b32 v{vA+1}, s{sTA}"); e(f"v_mov_b32 v{vA+3}, s{sTB}")
    e(f"v_mov_b32 v{vA2+1}, s{sTA}"); e(f"v_mov_b32 v{vA2+3}, s{sTB}")
    e(f"s_lshl_b32 s{T}, s{sP}, 10")
    e(f"s_lshl_b32 s{T+1}, s{sP}, 9")
    e(f"s_add_u32 s{T+1}, s{T+1}, {HP}")
    for k in range(2):
        e(f"v_add_f32 v{vA+2*k}, v{vG+k}, v{vG+2+k}")
        e(f"v_add_f32 v{vG+k}, v{vG+4+k}, v{vG+6+k}")
    for k in range(2): e(f"v_add_f32 v{vA+2*k}, v{vA+2*k}, v{vG+k}")
    e(f"buffer_store_dwordx4 {v4(vA)}, v{vVo}, s[{sWS}:{sWS+3}], s{T} offen sc1")
    for k in range(2):
        e(f"v_add_f32 v{vA2+2*k}, v{vG+8+k}, v{vG+10+k}")
        e(f"v_add_f32 v{vG+k}, v{vG+12+k}, v{vG+14+k}")
    for k in range(2): e(f"v_add_f32 v{vA2+2*k}, v{vA2+2*k}, v{vG+k}")
    e("s_mov_b32 exec_hi, 0")
    e(f"buffer_store_dwordx4 {v4(vA2)}, v{vVo}, s[{sWS}:{sWS+3}], s{T+1} offen sc1")
    e("s_mov_b32 exec_hi, -1")
    e(f"s_lshl_b32 s{T}, s{sH}, 13")
    e(f"s_add_u32 s{T+1}, s{T}, 4096")
    e(f"s_lshl_b32 s{T+2}, s{sH}, 12")
    e(f"s_add_u32 s{T+2}, s{T+2}, {HP}")
    vH = vW
    poll("q", [f"buffer_load_dwordx4 {v4(vG+4*j)}, v{vVo}, s[{sWS}:{sWS+3}], s{T + (j>>2)} offen offset:{(j&3)*1024} sc1" for j in range(8)] +
              [f"buffer_load_dwordx4 {v4(vH+4*j)}, v{vVo}, s[{sWS}:{sWS+3}], s{T+2} offen offset:{j*1024} sc1" for j in range(4)],
         [vG+4*j for j in range(8)] + [vH+4*j for j in range(4)])
    for k in (0, 2):
        for j in range(1, 8): e(f"v_add_f32 v{vG+k}, v{vG+k}, v{vG+4*j+k}")
    e(f"v_cvt_pk_bf16_f32 v{vt}, v{vG}, v{vG+2}")
    e(f"v_lshlrev_b32 v{vt+1}, 2, v0")
    e(f"ds_write_b32 v{vt+1}, v{vt} offset:{L_QB}")
    e(f"v_mov_b32 v{vt+2}, s{sTA}"); e(f"v_mov_b32 v{vt+3}, s{sTB}")
    e(f"ds_write_b64 v{vZero}, v[{vt+2}:{vt+3}] offset:{L_EP}")
    stamp(2)
    e.vm = []
    for d in range(w0pre, D): issue_fill(d, True)
    for k in (0, 2):
        e(f"v_add_f32 v{vG+k}, v{vH+k}, v{vH+4+k}")
        e(f"v_add_f32 v{vH+k}, v{vH+8+k}, v{vH+12+k}")
        e(f"v_add_f32 v{vG+k}, v{vG+k}, v{vH+k}")
    e(f"v_mov_b32 v{vG+1}, v{vG}"); e(f"v_mov_b32 v{vG+3}, v{vG+2}")
    e("s_nop 1")
    e(f"v_permlane32_swap_b32 v{vG}, v{vG+1}"); e(f"v_permlane32_swap_b32 v{vG+2}, v{vG+3}")
    e("s_nop 1")
    e(f"v_add_f32 v{vG}, v{vG}, v{vG+1}"); e(f"v_add_f32 v{vG+2}, v{vG+2}, v{vG+3}")
    e(f"v_max_f32 v{vG}, 0, v{vG}"); e(f"v_max_f32 v{vG+2}, 0, v{vG+2}")
    e(f"v_cvt_pk_bf16_f32 v{vG}, v{vG}, v{vG}"); e(f"v_cvt_pk_bf16_f32 v{vG+2}, v{vG+2}, v{vG+2}")
    e(f"v_and_b32 v{vt}, 3, v0")
    e(f"v_lshlrev_b32 v{vt}, 6, v{vt}")
    e(f"v_bfe_u32 v{vt+1}, v0, 2, 3")
    e(f"v_lshl_add_u32 v{vt}, v{vt+1}, 2, v{vt}")
    e(f"ds_write_b32 v{vt}, v{vG} offset:{L_HT}")
    e(f"ds_write_b32 v{vt}, v{vG+2} offset:{L_HT+32}")
    e(f"v_lshrrev_b32 v{vt+1}, 3, v0")
    e(f"v_lshlrev_b32 v{vt+1}, 5, v{vt+1}")
    e("s_waitcnt lgkmcnt(0)")
    e(f"ds_read_b128 {v4(vG+4)}, v{vt+1} offset:{L_HT}")
    e(f"ds_read_b64 v[{vG+8}:{vG+9}], v{vt+1} offset:{L_HT+16}")
    e("s_waitcnt lgkmcnt(0)")
    def proj(n, coef, data):
        for t in range(n):
            A4 = vA if (t & 1) == 0 else vA2
            for r in range(4): e(f"v_and_b32 v{A4+r}, v{coef+t}, v{vMk+r}")
            e("s_nop 1")
            c = "0" if t == 0 else v4(vS)
            e(f"v_mfma_f32_16x16x32_bf16 {v4(vS)}, {v4(A4)}, {v4(data+t*4)}, {c}")
    def proj_publish(base):
        e(f"s_lshl_b32 s{T}, s{sS}, 14")
        e(f"s_lshl_b32 s{T+1}, s{sH}, 9")
        e(f"s_add_u32 s{T}, s{T}, s{T+1}")
        e(f"s_add_u32 s{T}, s{T}, {base}")
        e(f"v_lshlrev_b32 v{vt}, 1, v{vSt}")
        e(f"v_mov_b32 v{vA+1}, s{sTA}"); e(f"v_mov_b32 v{vA+3}, s{sTB}")
        e(f"v_mov_b32 v{vA2+1}, s{sTA}"); e(f"v_mov_b32 v{vA2+3}, s{sTB}")
        for r in range(4): e(f"v_mov_b32 v{vD2+r}, v{vS+r}")
        e("s_nop 1")
        for r in range(4): e(f"v_permlane32_swap_b32 v{vS+r}, v{vD2+r}")
        e("s_nop 1")
        dst = [vA, vA+2, vA2, vA2+2]
        for r in range(4): e(f"v_add_f32_dpp v{dst[r]}, v{vD2+r}, v{vS+r} {dpp('row_ror:8')}")
        e("s_mov_b32 exec_hi, 0")
        e("s_mov_b32 exec_lo, 0x00ff00ff")
        e(f"buffer_store_dwordx4 {v4(vA)}, v{vt}, s[{sWS}:{sWS+3}], s{T} offen sc1")
        e(f"buffer_store_dwordx4 {v4(vA2)}, v{vt}, s[{sWS}:{sWS+3}], s{T} offen offset:16 sc1")
        e("s_mov_b64 exec, -1")
    proj(6, vG+4, vW2)
    proj_publish(ZP)
    srd(e, sWO, 12, 0 if "o" in now else 4096*512*2)
    e(f"s_lshl_b32 s{T}, s{sH}, 17")
    e(f"s_lshl_b32 s{T+1}, s{sS}, 7")
    e(f"s_add_u32 s{T}, s{T}, s{T+1}")
    for t in range(16):
        e(f"buffer_load_dwordx4 {v4(vW+t*4)}, v{vWOo}, s[{sWO}:{sWO+3}], s{T} offen offset:{(t&3)*1024} nt")
        if t & 3 == 3: e(f"s_add_u32 s{T}, s{T}, 4096")
    build_bq()
    e.label("L_stream")
    stamp(3)
    e(f"s_lshl_b32 s{sTk}, s{sS}, 2")
    e(f"s_add_u32 s{sTk}, s{sTk}, s{sWave}")
    req_local()
    e.label("L_stat")
    for d in range(D): group(d, f"s{d}", False)
    e("s_branch L_stat")
    e.label("L_dyn")
    for d in range(D): group(d, f"d{d}", True)
    e("s_branch L_dyn")
    e.label("L_done")
    stamp(4)
    e("s_nop 7")
    e(f"v_bfe_u32 v{vT}, v0, 2, 2")
    for u in range(1, 4):
        e(f"v_cmp_eq_u32 vcc, {u}, v{vT}")
        e("s_nop 1")
        for j in range(8): e(f"v_cndmask_b32 v{vO+j}, v{vO+j}, v{vO+8*u+j}, vcc")
    for c in ("row_ror:4", "row_ror:8"):
        e("s_nop 1")
        for j in range(8): e(f"v_add_f32_dpp v{vO+j}, v{vO+j}, v{vO+j} {dpp(c)}")
    wave_sum(e, vL, sRL)
    e(f"v_mul_f32 v{vL}, {f32(0.25)}, v{vL}")
    e(f"s_lshl_b32 s{T+1}, s{sWave}, 9")
    e(f"v_lshlrev_b32 v{vT}, 7, v{vb}")
    e(f"v_lshl_add_u32 v{vT}, v{vn}, 2, v{vT}")
    e(f"v_add_u32 v{vT}, s{T+1}, v{vT}")
    e("s_mov_b32 exec_lo, 0x000f000f"); e("s_mov_b32 exec_hi, 0x000f000f")
    for hf in range(2):
        for r in range(4): e(f"ds_write_b32 v{vT}, v{vO+hf*4+r} offset:{L_O + r*32 + hf*16}")
    e("s_mov_b64 exec, 1")
    e(f"s_lshl_b32 s{T+1}, s{sWave}, 3")
    e(f"v_mov_b32 v{vT}, s{T+1}")
    e(f"ds_write_b64 v{vT}, v[{vM}:{vM+1}] offset:{L_ML}")
    e("s_mov_b64 exec, -1")
    e("s_waitcnt lgkmcnt(0)")
    e("s_barrier")
    e(f"s_cmp_eq_u32 s{sWave}, 0")
    e("s_cbranch_scc1 L_tail0")
    e(f"s_cmp_eq_u32 s{sWave}, 1")
    e("s_cbranch_scc0 L_exit")
    e(f"s_cmp_lt_u32 s{sH}, 4")
    e("s_cbranch_scc0 L_exit")
    e(f"v_mov_b32 v{vT}, 0")
    e(f"ds_read_b64 v[{vA}:{vA+1}], v{vT} offset:{L_EP}")
    srd(e, sOUT, 20, 1024)
    e(f"v_lshrrev_b32 v{vt}, 3, v0")
    e(f"v_and_b32 v{vt+1}, 7, v0")
    e(f"v_lshlrev_b32 v{vt+2}, 4, v{vt+1}")
    e(f"v_lshl_add_u32 v{vt}, v{vt}, 9, v{vt+2}")
    e(f"s_lshl_b32 s{T}, s{sS}, 14")
    e(f"s_lshl_b32 s{T+1}, s{sH}, 7")
    e(f"s_add_u32 s{T}, s{T}, s{T+1}")
    e(f"s_add_u32 s{T}, s{T}, {ZP}")
    for j in range(1, 4): e(f"s_add_u32 s{T+j}, s{T}, {j*4096}")
    e(f"s_lshl_b32 s{T+4}, s{sS}, 7")
    e(f"s_lshl_b32 s{T+5}, s{sH}, 5")
    e(f"s_add_u32 s{T+4}, s{T+4}, s{T+5}")
    e(f"v_lshl_add_u32 v{vt+1}, v{vt+1}, 2, s{T+4}")
    e(f"buffer_load_dword v{vt+3}, v{vt+1}, s[{sX}:{sX+3}], 0 offen")
    e("s_waitcnt lgkmcnt(0)")
    e(f"v_readfirstlane_b32 s{sTA}, v{vA}")
    e(f"v_readfirstlane_b32 s{sTB}, v{vA+1}")
    def fin_gather(name, dst):
        poll(name, [f"buffer_load_dwordx4 {v4(vG+4*j)}, v{vt}, s[{sWS}:{sWS+3}], s{T+j} offen sc1" for j in range(4)],
             [vG+4*j for j in range(4)])
        for k in (0, 2):
            e(f"v_add_f32 v{vG+k}, v{vG+k}, v{vG+4+k}")
            e(f"v_add_f32 v{vG+8+k}, v{vG+8+k}, v{vG+12+k}")
        e(f"v_add_f32 v{dst}, v{vG}, v{vG+8}")
        e(f"v_add_f32 v{dst+1}, v{vG+2}, v{vG+10}")
        e("s_nop 1")
        for k in range(2): e(f"v_add_f32_dpp v{dst+k}, v{dst+k}, v{dst+k} {dpp('row_ror:8')}")
        for swap in ("v_permlane16_swap_b32", "v_permlane32_swap_b32"):
            for k in range(2): e(f"v_mov_b32 v{vG+k}, v{dst+k}")
            e("s_nop 1")
            for k in range(2): e(f"{swap} v{dst+k}, v{vG+k}")
            e("s_nop 1")
            for k in range(2): e(f"v_add_f32 v{dst+k}, v{dst+k}, v{vG+k}")
        for k in range(2): round_bf16(e, dst+k, dst+k)
    fin_gather("z", vS)
    for j in range(4): e(f"s_sub_u32 s{T+j}, s{T+j}, {ZP-YP}")
    for k in range(2): e(f"v_mul_f32 v{vA+k}, {f32(-1.4426950408889634)}, v{vS+k}")
    for k in range(2): e(f"v_exp_f32 v{vA+k}, v{vA+k}")
    e("s_nop 0")
    for k in range(2): e(f"v_add_f32 v{vA+k}, 1.0, v{vA+k}")
    for k in range(2): e(f"v_rcp_f32 v{vA+k}, v{vA+k}")
    e("s_nop 0")
    for k in range(2): e(f"v_mul_f32 v{vA+k}, v{vS+k}, v{vA+k}")
    for k in range(2): round_bf16(e, vA+k, vA+k)
    e(f"v_lshlrev_b32 v{vA+2}, 16, v{vt+3}")
    e(f"v_and_b32 v{vA+3}, 0xffff0000, v{vt+3}")
    fin_gather("y", vS)
    for k in range(2): e(f"v_mul_f32 v{vS+k}, v{vS+k}, v{vA+k}")
    for k in range(2): round_bf16(e, vS+k, vS+k)
    for k in range(2): e(f"v_add_f32 v{vS+k}, v{vA+2+k}, v{vS+k}")
    e(f"v_cvt_pk_bf16_f32 v{vS}, v{vS}, v{vS+1}")
    e("s_mov_b64 exec, 0xff")
    e(f"buffer_store_dword v{vS}, v{vt+1}, s[{sOUT}:{sOUT+3}], 0 offen")
    e("s_mov_b64 exec, -1")
    e("s_branch L_exit")
    e.label("L_tail0")
    ml = vO; op = vO + 8
    e(f"v_mov_b32 v{vT}, 0")
    e(f"ds_read_b128 {v4(ml)}, v{vT} offset:{L_ML}")
    e(f"ds_read_b128 {v4(ml+4)}, v{vT} offset:{L_ML+16}")
    e(f"v_lshlrev_b32 v{vP}, 3, v0")
    for p in range(4): e(f"ds_read_b64 v[{op+2*p}:{op+2*p+1}], v{vP} offset:{L_O+p*512}")
    e(f"v_mov_b32 v{vA+1}, s{sTA}"); e(f"v_mov_b32 v{vA+3}, s{sTB}")
    e(f"v_mov_b32 v{vA2+1}, s{sTA}"); e(f"v_mov_b32 v{vA2+3}, s{sTB}")
    e(f"s_lshl_b32 s{T}, s{sP}, 10"); e(f"s_add_u32 s{T}, s{T}, {OP}")
    e(f"s_lshl_b32 s{T+1}, s{sP}, 4"); e(f"s_add_u32 s{T+1}, s{T+1}, {MLP}")
    e("s_waitcnt lgkmcnt(4)")
    e(f"v_max_f32 v{vA2}, v{ml}, v{ml+2}")
    e(f"v_max3_f32 v{vA2}, v{ml+4}, v{ml+6}, v{vA2}")
    for p in range(4): e(f"v_sub_f32 v{ml+2*p}, v{ml+2*p}, v{vA2}")
    for p in range(4): e(f"v_exp_f32 v{ml+2*p}, v{ml+2*p}")
    e("s_waitcnt lgkmcnt(0)")
    e(f"v_mul_f32 v{vA}, v{ml}, v{op}")
    e(f"v_mul_f32 v{vA+2}, v{ml}, v{op+1}")
    e(f"v_mul_f32 v{vA2+2}, v{ml}, v{ml+1}")
    for p in range(1, 4):
        e(f"v_fmac_f32 v{vA}, v{ml+2*p}, v{op+2*p}")
        e(f"v_fmac_f32 v{vA+2}, v{ml+2*p}, v{op+2*p+1}")
        e(f"v_fmac_f32 v{vA2+2}, v{ml+2*p}, v{ml+2*p+1}")
    e(f"buffer_store_dwordx4 {v4(vA)}, v{vVo}, s[{sWS}:{sWS+3}], s{T} offen sc1")
    e("s_mov_b64 exec, 1")
    e(f"buffer_store_dwordx4 {v4(vA2)}, v{vT}, s[{sWS}:{sWS+3}], s{T+1} offen sc1")
    e("s_mov_b64 exec, -1")
    stamp(5)
    e(f"s_lshl_b32 s{T}, s{sH}, 13"); e(f"s_add_u32 s{T}, s{T}, {OP}")
    e(f"s_add_u32 s{T+1}, s{T}, 4096")
    e(f"s_lshl_b32 s{T+2}, s{sH}, 7"); e(f"s_add_u32 s{T+2}, s{T+2}, {MLP}")
    e(f"v_and_b32 v{vt}, 7, v0")
    e(f"v_lshlrev_b32 v{vt}, 4, v{vt}")
    poll("o", [f"buffer_load_dwordx4 {v4(vG+32)}, v{vt}, s[{sWS}:{sWS+3}], s{T+2} offen sc1"] +
              [f"buffer_load_dwordx4 {v4(vG+4*j)}, v{vVo}, s[{sWS}:{sWS+3}], s{T + (j>>2)} offen offset:{(j&3)*1024} sc1" for j in range(8)],
         [vG+4*j for j in range(9)])
    stamp(6)
    mm, ll = vG+32, vG+34
    e(f"v_mov_b32 v{vT}, v{mm}")
    for c in ("quad_perm:[1,0,3,2]", "quad_perm:[2,3,0,1]", "row_half_mirror"):
        e("s_nop 1")
        e(f"v_max_f32_dpp v{vT}, v{vT}, v{vT} {dpp(c)}")
    e(f"v_sub_f32 v{vT}, v{mm}, v{vT}")
    e(f"v_exp_f32 v{vT}, v{vT}")
    e("s_nop 0")
    e(f"v_mul_f32 v{vP}, v{vT}, v{ll}")
    for c in ("quad_perm:[1,0,3,2]", "quad_perm:[2,3,0,1]", "row_half_mirror"):
        e("s_nop 1")
        e(f"v_add_f32_dpp v{vP}, v{vP}, v{vP} {dpp(c)}")
    e(f"v_rcp_f32 v{vP}, v{vP}")
    e("s_nop 0")
    e(f"v_mul_f32 v{vT}, v{vT}, v{vP}")
    e("s_nop 1")
    for k in range(2):
        e(f"v_mul_f32_dpp v{vA+k}, v{vT}, v{vG+2*k} {dpp('row_newbcast:0')}")
    for j in range(1, 8):
        for k in range(2):
            e(f"v_fmac_f32_dpp v{vA+k}, v{vT}, v{vG+4*j+2*k} {dpp(f'row_newbcast:{j}')}")
    for k in range(2): e(f"v_cvt_pk_bf16_f32 v{vA+k}, v{vA+k}, v{vA+k}")
    e(f"v_lshlrev_b32 v{vP}, 3, v0")
    e(f"ds_write_b64 v{vP}, v[{vA}:{vA+1}] offset:{L_OC}")
    e(f"v_lshrrev_b32 v{vP}, 3, v0")
    e(f"v_lshlrev_b32 v{vP}, 6, v{vP}")
    e("s_waitcnt lgkmcnt(0)")
    for q in range(4): e(f"ds_read_b128 {v4(vG+4*q)}, v{vP} offset:{L_OC+16*q}")
    e("s_waitcnt lgkmcnt(0)")
    proj(16, vG, vW)
    proj_publish(YP)
    e.label("L_exit")
    if ts:
        stamp(7)
        e("s_lshl_b32 s88, s2, 2"); e(f"s_add_u32 s88, s88, s{sWave}"); e("s_lshl_b32 s88, s88, 5")
        e("s_add_u32 s88, s88, 0x20000000")
        e("s_add_u32 s24, s24, s88"); e("s_addc_u32 s25, s25, 0")
        e("s_mov_b64 exec, 1")
        e(f"v_mov_b32 v{vT}, 0")
        e(f"global_store_dwordx4 v{vT}, {v4(vTS)}, s[24:25]")
        e(f"global_store_dwordx4 v{vT}, {v4(vTS+4)}, s[24:25] offset:16")
    e.label("L_end")
    e("s_endpgm")
    if ts:
        for d in range(D):
            e.label(f"L_sw{d}")
            stamp(1)
            e(f"s_branch L_midd{d}")
    for d in resc:
        e.label(f"L_resc{d}")
        e("s_nop 0")
        e(f"v_max_f32_dpp v{vP}, v{vT}, v{vT} {dpp('row_ror:4')}")
        e("s_nop 1")
        e(f"v_max_f32_dpp v{vP}, v{vP}, v{vP} {dpp('row_ror:8')}")
        e("s_nop 0")
        for i in range(4): e(f"v_readlane_b32 s{sRL+i}, v{vP}, {16*i}")
        e("s_nop 1")
        e(f"v_max_f32 v{vP}, s{sRL}, v{vM}")
        for i in range(1, 4): e(f"v_max_f32 v{vP}, s{sRL+i}, v{vP}")
        e(f"v_sub_f32 v{vA}, v{vM}, v{vP}")
        e(f"v_exp_f32 v{vA}, v{vA}")
        e(f"v_mov_b32 v{vM}, v{vP}")
        e(f"v_mul_f32 v{vL}, v{vL}, v{vA}")
        for i in range(32): e(f"v_mul_f32 v{vO+i}, v{vO+i}, v{vA}")
        e(f"s_branch L_back{d}")

def desc(name, nv, ns, acc):
    return f""".amdhsa_kernel {name}
  .amdhsa_next_free_vgpr {nv}
  .amdhsa_next_free_sgpr {ns}
  .amdhsa_accum_offset {acc}
  .amdhsa_group_segment_fixed_size 0
  .amdhsa_kernarg_size 88
  .amdhsa_user_sgpr_count 2
  .amdhsa_user_sgpr_kernarg_segment_ptr 1
  .amdhsa_system_sgpr_workgroup_id_x 1
  .amdhsa_float_denorm_mode_32 3
.end_amdhsa_kernel
"""

def build(**kw):
    e = E()
    e.raw(HEADER.rstrip())
    e.raw(f"; @launch grid=(256,1,1) block=(256,1,1) lds=8192")
    e.raw('.amdgcn_target "amdgcn-amd-amdhsa--gfx950"')
    e.raw(".text")
    gen_main(e, **kw)
    e.raw('.section .rodata,"a"'); e.raw(".p2align 6")
    e.raw(desc(KNAME, 512, 102, 256))
    return e.text()

if __name__ == "__main__":
    out = sys.argv[1]
    kw = eval("dict(%s)" % (sys.argv[2] if len(sys.argv) > 2 else ""))
    open(out, "w").write(build(**kw))
```

```python
import sys, struct
KNAME = "recurrent_scan__gqa_block_cached__dense_activation_relu__decode_kernel"
HEADER = open("recurrent_scan__gqa_block_cached__dense_activation_relu__decode.s.ref").read().split("; Override launch")[0]

def f32(x): return "0x%08x" % struct.unpack("<I", struct.pack("<f", x))[0]

class E:
    def __init__(self): self.L = []; self.vm = []
    def __call__(self, s): self.L.append("  " + s)
    def label(self, s): self.L.append(s + ":")
    def raw(self, s): self.L.append(s)
    def c(self, s): self.L.append("  ; " + s)
    def mem(self, s, tag):
        self.L.append("  " + s); self.vm.append(tag)
    def wait(self, tag, gen=None):
        idxs = [i for i, t in enumerate(self.vm) if t == tag]
        idx = idxs[-1] if gen is None else idxs[4*gen+3]
        n = len(self.vm) - 1 - idx
        self(f"s_waitcnt vmcnt({min(59, n)})")
    def text(self): return "\n".join(self.L) + "\n"

QP, HP, OP, MLP, YP, ZP, TK, WS_END = 0x0, 0x40000, 0x60000, 0xA0000, 0xB0000, 0xD0000, 0xF0000, 0xF2000
L_QB, L_EP, L_CT, L_HT, L_O, L_ML, L_OC = 0x0, 0x100, 0x108, 0x140, 0x400, 0xC00, 0xD00
LDS_BYTES = 4096
OOB = 0x40000000
POLL_MAX = 400000

def dpp(ctrl): return f"{ctrl} row_mask:0xf bank_mask:0xf"

def wave_sum(e, v, sa):
    for c in ("quad_perm:[1,0,3,2]", "quad_perm:[2,3,0,1]", "row_half_mirror", "row_mirror"):
        e("s_nop 1")
        e(f"v_add_f32_dpp v{v}, v{v}, v{v} {dpp(c)}")
    e("s_nop 0")
    for i in range(4): e(f"v_readlane_b32 s{sa+i}, v{v}, {16*i}")
    e("s_nop 1")
    e(f"v_mov_b32 v{v}, s{sa}")
    for i in range(1, 4): e(f"v_add_f32 v{v}, s{sa+i}, v{v}")

def round_bf16(e, vd, vs):
    e(f"v_cvt_pk_bf16_f32 v{vd}, v{vs}, v{vs}")
    e(f"v_and_b32 v{vd}, 0xffff0000, v{vd}")

def srd(e, d, b, nbytes):
    e(f"s_mov_b32 s{d}, s{b}"); e(f"s_mov_b32 s{d+1}, s{b+1}")
    e(f"s_mov_b32 s{d+2}, {nbytes}"); e(f"s_mov_b32 s{d+3}, 0x00020000")

def gen_main(e, G=8, NS=60, D=2, DA=10, thrf=6, thr=4, ts=False, noex=False, now='', padto=0, rotr=False, hst=0, pg='x', dynx=False, prog=False, gran=1, granf=1, nost=False, canary=False, warm=0, wpol='sc1'):
    m = 8 // G; lg = G.bit_length()-1; lm = m.bit_length()-1
    DYN = NS*32
    sK, sV, sWQ, sWO, sX, sW1, sW2, sWS, sOUT = 28, 32, 36, 40, 44, 48, 52, 56, 76
    sH, sS, sWave = 60, 61, 3
    sU, sNC = 62, 65
    T = 66
    sHB, sP = 74, 75
    sTA, sTB = 80, 81
    sTk, sC0, sTKa = 84, 85, 86
    sEnd, sEnd2, sPos, sJ, sO = 88, 89, 90, 91, 92
    sRL = 96
    sTS = 100
    vZero, vKo, vVo, vM, vC, vT, vP, vM0, vM1, vSt = 1, 2, 3, 4, 6, 7, 8, 9, 10, 11
    vB = 12; vb, vn = 14, 15
    vS = 16; vMk = 20; vA = 24; vA2 = 28; vD2 = 32
    vBq = 36; vO = 52; vW = 84
    vW2 = 148; vG = 172
    vLa = 220
    vOnes = 224
    vJ, vOne, vWOo, vPP = 226, 227, 228, 229
    vX4 = 232
    vHG = 232
    vt = 236
    vTS = 248
    def stamp(i):
        if ts:
            e(f"s_memrealtime s[{sTS}:{sTS+1}]")
            e("s_waitcnt lgkmcnt(0)")
            e(f"v_mov_b32 v{vTS+i}, s{sTS}")
    def rbase(slot, i):
        if slot < 8: return "a", (slot*8 + i)*4
        return "v", vW + ((slot-8)*8 + i)*4
    def ring(slot, i): c, r = rbase(slot, i); return f"{c}[{r}:{r+3}]"
    def ringh(slot, i, half): c, r = rbase(slot, i); r += 2*half; return f"{c}[{r}:{r+1}]"
    def v4(r): return f"v[{r}:{r+3}]"
    def a4(r): return f"a[{r}:{r+3}]"
    assert D == 2 and DA <= 10
    rounds = []
    cur = list(range(DA))
    while True:
        if len(cur) <= 4:
            keep = [cur[0], cur[-1]] if len(cur) >= 3 else cur
        else:
            keep = cur[0::2]
        rounds.append([(p, p in keep) for p in cur])
        cur = keep
        if len(cur) == 2: break
    slot_of = {cur[0]: 0, cur[1]: 1}
    nxt = 2
    for p in range(DA):
        if p not in slot_of: slot_of[p] = nxt; nxt += 1
    NREF = sum(r for rd in rounds for _, r in rd)
    J1 = 3*DA
    J2 = J1 + D
    J3 = J2 + 3*NREF
    assert J3 <= 4*NS

    e.raw(f".globl {KNAME}"); e.raw(".p2align 8"); e.raw(f".type {KNAME},@function"); e.label(KNAME)
    e("s_cmp_ge_u32 s2, 256")
    e("s_cbranch_scc1 L_end")
    e("s_load_dwordx16 s[4:19], s[0:1], 0")
    e("s_load_dwordx4 s[20:23], s[0:1], 64")
    e("s_load_dwordx2 s[24:25], s[0:1], 80")
    e(f"s_memrealtime s[{sTA}:{sTA+1}]")
    e("v_lshrrev_b32 v1, 6, v0")
    e("v_and_b32 v0, 63, v0")
    e(f"s_and_b32 s{T}, s2, 7")
    e(f"v_readfirstlane_b32 s{sWave}, v1")
    e(f"s_lshr_b32 s{T+1}, s2, 3")
    e(f"s_lshr_b32 s{T+2}, s{T}, {lg}")
    e(f"s_and_b32 s{T+3}, s{T}, {G-1}")
    e(f"s_lshr_b32 s{sH}, s{T+1}, {lm}")
    e(f"s_and_b32 s{T+4}, s{T+1}, {m-1}")
    e(f"s_mul_i32 s{sH}, s{sH}, {8//G}")
    e(f"s_add_u32 s{sH}, s{sH}, s{T+2}")
    e(f"s_mul_i32 s{sS}, s{T+3}, {m}")
    e(f"s_add_u32 s{sS}, s{sS}, s{T+4}")
    e(f"s_lshl_b32 s{sHB}, s{sH}, 23")
    if G == 8: e(f"s_add_u32 s{sPos}, s{sS}, s{sH}")
    else: e(f"s_mov_b32 s{sPos}, s{sS}")
    e(f"s_and_b32 s{sPos}, s{sPos}, 7")
    sCw = 63
    e(f"s_lshr_b32 s{sCw}, s{sH}, 3")
    e(f"v_lshrrev_b32 v{vb}, 4, v0")
    e(f"v_and_b32 v{vn}, 15, v0")
    e(f"v_lshlrev_b32 v{vVo}, 4, v0")
    e(f"v_bfe_u32 v{vt}, v0, 2, 2")
    e(f"v_lshlrev_b32 v{vKo}, 8, v{vt}")
    e(f"v_lshl_add_u32 v{vKo}, v{vb}, 6, v{vKo}")
    e(f"v_and_b32 v{vt+1}, 3, v0")
    e(f"v_lshl_add_u32 v{vKo}, v{vt+1}, 4, v{vKo}")
    e(f"v_mov_b32 v{vZero}, 0")

    def addr_local():
        e(f"s_lshr_b32 s{sO+1}, s{sJ}, 2")
        if G == 8 and rotr:
            e(f"s_add_u32 s{sO+2}, s{sO+1}, s{sPos}")
            e(f"s_and_b32 s{sO+2}, s{sO+2}, 7")
            e(f"s_lshl_b32 s{sO+1}, s{sO+1}, 3")
            e(f"s_add_u32 s{sO+1}, s{sO+1}, s{sO+2}")
        else:
            e(f"s_lshl_b32 s{sO+1}, s{sO+1}, 3")
            e(f"s_add_u32 s{sO+1}, s{sO+1}, s{sPos}")
        if pg:
            e(f"s_add_u32 s{sO+2}, s{sJ}, s{sCw}")
            e(f"s_and_b32 s{sO+2}, s{sO+2}, 3")
        else:
            e(f"s_and_b32 s{sO+2}, s{sJ}, 3")
        blk_addr()
    def blk_addr():
        e(f"s_lshl_b32 s{sO+1}, s{sO+1}, 14")
        e(f"s_lshl_b32 s{sO+2}, s{sO+2}, {10 if pg == 'x' else 12}")
        e(f"s_add_u32 s{sO+1}, s{sO+1}, s{sO+2}")
        e(f"s_add_u32 s{sO}, s{sO+1}, s{sHB}")
        if pg == 'x':
            for i in range(1, 4): e(f"s_xor_b32 s{sO+i}, s{sO}, {i*5120}")
    def so(i): return f"s{sO+i} offen" if pg == 'x' else f"s{sO} offen offset:{i*1024}"
    def req_local():
        e("s_mov_b64 exec, 1")
        e(f"ds_add_rtn_u32 v{vJ}, v{vZero}, v{vOne} offset:{L_CT}")
        e("s_mov_b64 exec, -1")
    def issue_K(slot, th=None, gr=4):
        for i in range(4):
            if th is not None and i % gr == 0: e(f"s_waitcnt vmcnt({th})")
            e.mem(f"buffer_load_dwordx4 {ring(slot,i)}, v{vKo}, s[{sK}:{sK+3}], {so(i)} nt", f"K{slot}")
    def issue_V(slot, th=None, gr=4):
        for i in range(4):
            if th is not None and i % gr == 0: e(f"s_waitcnt vmcnt({th})")
            e.mem(f"buffer_load_dwordx4 {ring(slot,4+i)}, v{vVo}, s[{sV}:{sV+3}], {so(i)} nt", f"V{slot}")

    def consts():
        t = vt+8
        e(f"v_and_b32 v{t}, 1, v0")
        e(f"v_lshlrev_b32 v{t}, 4, v{t}")
        e(f"v_mov_b32 v{t+1}, 0xffff")
        e(f"v_lshlrev_b32 v{t+1}, v{t}, v{t+1}")
        e(f"v_and_b32 v{t+2}, 2, v0")
        e(f"v_cmp_eq_u32 vcc, 0, v{t+2}")
        e(f"v_bfe_u32 v{t+2}, v0, 1, 2")
        e("s_nop 0")
        e(f"v_cndmask_b32 v{vM0}, 0, v{t+1}, vcc")
        e(f"v_cndmask_b32 v{vM1}, v{t+1}, 0, vcc")
        for r in range(4):
            e(f"v_cmp_eq_u32 vcc, {r}, v{t+2}")
            e("s_nop 1")
            e(f"v_cndmask_b32 v{vMk+r}, 0, v{t+1}, vcc")
        e(f"v_mov_b32 v{vC}, {f32((128**-0.5)*1.4426950408889634)}")
        e(f"v_mov_b32 v{vM}, {f32(-3.0e38)}")
        for i in range(4): e(f"v_mov_b32 v{vLa+i}, 0")
        e(f"v_mov_b32 v{vOnes}, 0x3f803f80"); e(f"v_mov_b32 v{vOnes+1}, 0x3f803f80")
        for i in range(32): e(f"v_mov_b32 v{vO+i}, 0")
        e(f"v_mov_b32 v{vOne}, 1")
        e(f"v_lshlrev_b32 v{vSt}, 6, v{vn}")
        e(f"v_and_b32 v{t}, 1, v{vb}")
        e(f"v_lshl_add_u32 v{vSt}, v{t}, 5, v{vSt}")
        e(f"v_lshrrev_b32 v{t}, 1, v{vb}")
        e(f"v_lshl_add_u32 v{vSt}, v{t}, 4, v{vSt}")
        srd(e, sWS, 24, 0 if nost else WS_END); srd(e, sX, 4, 1024)
        e(f"s_mov_b32 s{sEnd}, 0x7fffffff")
        e(f"s_lshl_b32 s{sP}, s{sH}, 3")
        e(f"s_add_u32 s{sP}, s{sP}, s{sS}")
    def ffn_range():
        e(f"s_min_u32 s{T}, s{sH}, 12")
        e(f"s_mul_i32 s{sC0}, s{sH}, 5")
        e(f"s_add_u32 s{sC0}, s{sC0}, s{T}")
        e(f"s_cmp_lt_u32 s{sH}, 12")
        e(f"s_cselect_b32 s{sNC}, 6, 5")
    def tk_addr():
        e(f"s_lshl_b32 s{T}, s{sH}, 8")
        e(f"s_add_u32 s{T}, s{T}, {TK}")
        e(f"s_add_u32 s{sTKa}, s24, s{T}")
        e(f"s_addc_u32 s{sTKa+1}, s25, 0")

    def tagcheck(regs, acc, tmp):
        for k, r in enumerate(regs):
            e(f"v_xor_b32 v{tmp}, s{sTA}, v{r+1}")
            e(f"v_xor_b32 v{tmp+1}, s{sTB}, v{r+3}")
            if k == 0: e(f"v_or_b32 v{acc}, v{tmp}, v{tmp+1}")
            else: e(f"v_or3_b32 v{acc}, v{tmp}, v{tmp+1}, v{acc}")
        e(f"v_cmp_ne_u32 vcc, 0, v{acc}")
    def poll(name, loads, regs):
        if noex and name in ("q",):
            e("s_waitcnt vmcnt(0)"); return
        e(f"s_mov_b32 s{T+7}, {POLL_MAX}")
        e.label(f"L_poll_{name}")
        for l in loads: e(l)
        e(f"s_sub_u32 s{T+7}, s{T+7}, 1")
        e("s_waitcnt vmcnt(0)")
        tagcheck(regs, vt+10, vt+8)
        e(f"s_cbranch_vccz L_polld_{name}")
        e(f"s_cmp_lg_u32 s{T+7}, 0")
        e(f"s_cbranch_scc1 L_poll_{name}")
        e.label(f"L_polld_{name}")

    def build_bq():
        u0 = vt
        e(f"v_and_b32 v{u0}, 3, v0")
        e(f"v_lshl_add_u32 v{u0}, v{vb}, 2, v{u0}")
        e(f"v_lshlrev_b32 v{u0}, 4, v{u0}")
        e(f"ds_read_b128 {v4(vA)}, v{u0} offset:{L_QB}")
        e(f"v_bfe_u32 v{u0+1}, v0, 2, 2")
        e("s_waitcnt lgkmcnt(0)")
        for u in range(4):
            e(f"v_cmp_eq_u32 vcc, {u}, v{u0+1}")
            e("s_nop 1")
            for r in range(4): e(f"v_cndmask_b32 v{vBq+4*u+r}, 0, v{vA+r}, vcc")

    NW = 8*(D-1) + 4
    resc = []
    def group(d, name, mode, gen=0, jref=None):
        first, dyn = mode == "first", mode == "dyn"
        if dyn:
            e(f"s_sub_u32 s{sEnd}, s{sEnd}, 1")
            e(f"s_cmp_eq_u32 s{sEnd}, 0")
            e("s_cbranch_scc1 L_done")
        if first: e.wait(f"K{d}", gen)
        else: e(f"s_waitcnt vmcnt({NW})")
        for u in range(4):
            c = "0" if u == 0 else v4(vS)
            e(f"v_mfma_f32_16x16x32_bf16 {v4(vS)}, {ring(d,u)}, {v4(vBq+4*u)}, {c}")
        if dyn:
            e.label(f"L_mid{name}")
            e("s_waitcnt lgkmcnt(0)")
            e(f"s_cmp_lt_u32 s{sTk}, {2048-DYN}")
            e(f"s_cselect_b32 s{sK+2}, 0x10000000, 0")
            e(f"s_cselect_b32 s{sV+2}, 0x10000000, 0")
            e(f"s_cselect_b32 s{sEnd2}, s{sEnd}, {D}")
            e(f"s_cselect_b32 s{sU}, s{sTk}, 0")
            e(f"s_cbranch_scc0 L_notk{name}")
            e(f"s_mov_b32 s{sTk}, 1")
            e(f"s_atomic_add s{sTk}, s[{sTKa}:{sTKa+1}], 0x0 glc")
            e.label(f"L_notk{name}")
            e(f"s_min_u32 s{sEnd}, s{sEnd}, s{sEnd2}")
            e(f"s_add_u32 s{sU}, s{sU}, {DYN}")
            e(f"s_lshr_b32 s{sO+1}, s{sU}, 2")
            e(f"s_and_b32 s{sO+2}, s{sU}, 3")
            blk_addr()
            issue_K(d, thr, gran)
        elif first:
            if jref is not None:
                e(f"s_add_u32 s{sJ}, s{sWave}, {jref - 1}")
                addr_local(); issue_K(d, thr, gran)
            else: e("s_nop 7")
        else:
            e("s_waitcnt lgkmcnt(0)")
            e(f"v_readfirstlane_b32 s{sJ}, v{vJ}")
            e("s_nop 0")
            e(f"s_cmp_ge_u32 s{sJ}, {4*NS}")
            e(f"s_cbranch_scc1 L_sw{d}" if (ts or warm & 4) else f"s_cbranch_scc1 L_midd{d}")
            if prog:
                e(f"s_and_b32 s{T}, s{sJ}, 15")
                e(f"s_cmp_lg_u32 s{T}, 0")
                e(f"s_cbranch_scc1 L_np{d}")
                e(f"s_memrealtime s[{sTS}:{sTS+1}]")
                e(f"s_lshl_b32 s{T}, s2, 6")
                e(f"s_lshr_b32 s{T+1}, s{sJ}, 2")
                e(f"s_add_u32 s{T}, s{T}, s{T+1}")
                e(f"s_add_u32 s{T}, s{T}, 0x21000000")
                e(f"v_mov_b32 v{vt}, s{T}")
                e("s_waitcnt lgkmcnt(0)")
                e(f"v_mov_b32 v{vt+1}, s{sTS}")
                e("s_mov_b64 exec, 1")
                e(f"global_store_dword v{vt}, v{vt+1}, s[24:25]")
                e("s_mov_b64 exec, -1")
                e.label(f"L_np{d}")
            req_local(); addr_local()
            issue_K(d, thr, gran)
        e(f"v_mul_f32_dpp v{vT}, v{vS}, v{vC} {dpp('quad_perm:[0,0,0,0]')}")
        for r in range(1, 4):
            e(f"v_fmac_f32_dpp v{vT}, v{vS+r}, v{vC} {dpp(f'quad_perm:[{r},{r},{r},{r}]')}")
        e(f"v_cmp_gt_f32 vcc, v{vT}, v{vM}")
        e(f"s_cbranch_vccnz L_resc{name}")
        e.label(f"L_back{name}")
        resc.append(name)
        e(f"v_sub_f32 v{vT}, v{vT}, v{vM}")
        e(f"v_exp_f32 v{vP}, v{vT}")
        e("s_nop 0")
        e(f"v_cvt_pk_bf16_f32 v{vP}, v{vP}, v{vP}")
        e(f"v_and_b32 v{vB}, v{vP}, v{vM0}")
        e(f"v_and_b32 v{vB+1}, v{vP}, v{vM1}")
        if first: e.wait(f"V{d}", gen)
        else: e(f"s_waitcnt vmcnt({NW})")
        e("s_nop 0")
        e(f"v_mfma_f32_16x16x16_bf16 {v4(vLa)}, v[{vOnes}:{vOnes+1}], v[{vB}:{vB+1}], {v4(vLa)}")
        for u in range(4):
            for hf in range(2):
                o = vO + (u*2+hf)*4
                e(f"v_mfma_f32_16x16x16_bf16 {v4(o)}, {ringh(d,4+u,hf)}, v[{vB}:{vB+1}], {v4(o)}")
        if not first: issue_V(d, thr, gran)
        elif jref is not None: issue_V(d, thr, gran)

    e(f"s_cmp_eq_u32 s{sWave}, 0")
    e("s_cbranch_scc1 L_wave0")
    e(f"s_add_u32 s{sJ}, s{sWave}, -1")
    addr_local()
    e("s_waitcnt lgkmcnt(0)")
    if ts:
        e(f"v_mov_b32 v{vTS}, s{sTA}")
        for i in range(1, 8): e(f"v_mov_b32 v{vTS+i}, 0")
    srd(e, sK, 6, 0x10000000); srd(e, sV, 8, 0x10000000)
    issue_K(0); issue_V(0)
    e(f"v_mov_b32 v{vt}, 0"); e(f"v_mov_b32 v{vt+1}, 0"); e(f"v_mov_b32 v{vt+2}, {J3}")
    e(f"ds_write_b96 v{vZero}, v[{vt}:{vt+2}] offset:{L_EP}")
    e("s_waitcnt lgkmcnt(0)")
    e("s_barrier")
    consts(); tk_addr()
    for d in range(1, DA):
        e(f"s_add_u32 s{sJ}, s{sWave}, {3*d - 1}")
        addr_local(); issue_K(slot_of[d], thrf, granf); issue_V(slot_of[d], thrf, granf)
    e.label("L_waitq")
    e(f"ds_read_b64 v[{vt+2}:{vt+3}], v{vZero} offset:{L_EP}")
    e("s_waitcnt lgkmcnt(0)")
    e(f"v_or_b32 v{vt+2}, v{vt+2}, v{vt+3}")
    e(f"v_cmp_eq_u32 vcc, 0, v{vt+2}")
    e("s_cbranch_vccnz L_waitq")
    build_bq()
    stamp(2)
    k = 0
    for gi, rd in enumerate(rounds):
        for p, rf in rd:
            group(slot_of[p], f"f{gi}_{p}", "first", gi, J2 + 3*k if rf else None)
            k += rf
    e(f"s_cmp_lg_u32 s{sWave}, 2")
    e("s_cbranch_scc1 L_stream")
    ffn_range()
    srd(e, sW2, 18, 0 if "2" in now else 1376*512*2)
    vE = vt+5
    e(f"v_lshrrev_b32 v{vE}, 3, v0")
    e(f"v_and_b32 v{vt+6}, 7, v0")
    e(f"v_lshlrev_b32 v{vt+6}, 4, v{vt+6}")
    e(f"v_lshl_add_u32 v{vt+7}, v{vE}, 10, v{vt+6}")
    e(f"s_lshl_b32 s{T}, s{sC0}, 13")
    e(f"s_lshl_b32 s{T+1}, s{sS}, 7")
    e(f"s_add_u32 s{T}, s{T}, s{T+1}")
    for t in range(6):
        if t == 5:
            e(f"s_cmp_eq_u32 s{sNC}, 6")
            e(f"s_cselect_b32 s{sW2+2}, s{sW2+2}, 0")
            e(f"s_cselect_b32 s{T}, s{T}, 0")
        e(f"buffer_load_dwordx4 {v4(vW2+t*4)}, v{vt+7}, s[{sW2}:{sW2+3}], s{T} offen nt")
        if t < 5: e(f"s_add_u32 s{T}, s{T}, 8192")
    e("s_branch L_stream")
    e.label("L_wave0")
    e.vm = []
    aWQ, aW1 = 128, 192
    ffn_range()
    e(f"s_lshl_b32 s{T+1}, s{sS}, 7")
    e(f"s_lshl_b32 s{T+2}, s{sS}, 19")
    e(f"s_lshl_b32 s{T+3}, s{sH}, 8")
    e(f"s_add_u32 s{T+2}, s{T+2}, s{T+3}")
    e(f"s_mul_i32 s{T+3}, s{sS}, {64*2752}")
    e(f"s_lshl_b32 s{T+4}, s{sC0}, 4")
    e(f"s_add_u32 s{T+3}, s{T+3}, s{T+4}")
    e(f"v_lshlrev_b32 v{vt}, 1, v0")
    e(f"v_lshlrev_b32 v{vt+1}, 4, v{vn}")
    e(f"v_lshl_add_u32 v{vt+2}, v{vb}, 17, v{vt+1}")
    e(f"v_mul_u32_u24 v{vt+3}, {16*2752}, v{vb}")
    e(f"v_add_u32 v{vt+3}, v{vt+3}, v{vt+1}")
    e(f"v_mov_b32 v{vt+4}, {OOB}")
    e(f"v_cmp_gt_u32 vcc, s{sNC}, v{vn}")
    e("s_nop 1")
    e(f"v_cndmask_b32 v{vt+3}, v{vt+4}, v{vt+3}, vcc")
    e("s_waitcnt lgkmcnt(0)")
    if ts:
        e(f"v_mov_b32 v{vTS}, s{sTA}")
        for i in range(1, 8): e(f"v_mov_b32 v{vTS+i}, 0")
    srd(e, sX, 4, 1024); srd(e, sWQ, 10, 0 if "q" in now else 512*4096*2)
    e.mem(f"buffer_load_dwordx4 {v4(vX4)}, v{vVo}, s[{sX}:{sX+3}], 0 offen", "x4")
    e.mem(f"buffer_load_ushort v{vPP}, v{vt}, s[{sX}:{sX+3}], s{T+1} offen", "xc")
    for i in range(16):
        e.mem(f"buffer_load_dwordx4 {a4(aWQ+i*4)}, v{vt+2}, s[{sWQ}:{sWQ+3}], s{T+2} offen nt", f"wq{i}")
        if i < 15: e(f"s_add_u32 s{T+2}, s{T+2}, 8192")
    e(f"s_mov_b32 s{T+4}, s{sTA}"); e(f"s_mov_b32 s{T+5}, s{sTA+1}")
    e(f"s_mov_b32 s{sTA+2}, 0"); e(f"s_mov_b32 s{sTA+3}, 0")
    e("s_cmp_ge_u32 s2, 8")
    e("s_cbranch_scc1 L_nocas0")
    e(f"s_atomic_cmpswap_x2 s[{sTA}:{sTA+3}], s[22:23], 0x0 glc")
    e.label("L_nocas0")
    tk_addr()
    e(f"s_cmp_lg_u32 s{sS}, 0")
    e("s_cbranch_scc1 L_notk")
    e(f"s_mov_b32 s{sTk}, 32")
    e(f"s_atomic_swap s{sTk}, s[{sTKa}:{sTKa+1}], 0x0 glc")
    e.label("L_notk")
    srd(e, sW1, 16, 0 if "1" in now else 512*1376*2)
    for i in range(16):
        e.mem(f"buffer_load_dwordx4 {a4(aW1+i*4)}, v{vt+3}, s[{sW1}:{sW1+3}], s{T+3} offen nt", f"w1{i}")
        if i < 15: e(f"s_add_u32 s{T+3}, s{T+3}, 2752")
    e("s_barrier")
    vE = vt+5
    e(f"v_lshrrev_b32 v{vE}, 3, v0")
    e(f"v_and_b32 v{vt+6}, 7, v0")
    e(f"v_lshlrev_b32 v{vt+6}, 4, v{vt+6}")
    e(f"v_lshrrev_b32 v{vt+7}, 4, v0")
    e(f"v_lshl_add_u32 v{vWOo}, v{vt+7}, 15, v{vt+6}")
    e(f"v_and_b32 v{vt+7}, 1, v{vE}")
    e(f"v_lshl_add_u32 v{vWOo}, v{vt+7}, 11, v{vWOo}")
    srd(e, sK, 6, 0x10000000); srd(e, sV, 8, 0x10000000)
    consts()
    if warm & 1:
        e(f"s_lshl_b32 s{T}, s{sP}, 10")
        e.mem(f"buffer_load_dwordx4 {v4(vG+24)}, v{vVo}, s[{sWS}:{sWS+3}], s{T} offen {wpol}", "warm")
    def warm_tail():
        e(f"s_lshl_b32 s{T}, s{sP}, 10")
        e(f"s_add_u32 s{T}, s{T}, {OP}")
        e.mem(f"buffer_load_dwordx4 {v4(vG+4)}, v{vVo}, s[{sWS}:{sWS+3}], s{T} offen {wpol}", "warm")
        e("s_mov_b32 exec_hi, 0")
        e(f"s_lshl_b32 s{T}, s{sP}, 9")
        e(f"s_add_u32 s{T}, s{T}, {HP}")
        e.mem(f"buffer_load_dwordx4 {v4(vG+8)}, v{vVo}, s[{sWS}:{sWS+3}], s{T} offen {wpol}", "warm")
        e(f"s_lshl_b32 s{T}, s{sS}, 14")
        e(f"s_lshl_b32 s{T+1}, s{sH}, 9")
        e(f"s_add_u32 s{T}, s{T}, s{T+1}")
        e(f"s_add_u32 s{T}, s{T}, {YP}")
        e.mem(f"buffer_load_dwordx4 {v4(vG+12)}, v{vVo}, s[{sWS}:{sWS+3}], s{T} offen {wpol}", "warm")
        e(f"s_add_u32 s{T}, s{T}, {ZP-YP}")
        e.mem(f"buffer_load_dwordx4 {v4(vG+16)}, v{vVo}, s[{sWS}:{sWS+3}], s{T} offen {wpol}", "warm")
        e("s_mov_b64 exec, 1")
        e(f"s_lshl_b32 s{T}, s{sP}, 4")
        e(f"s_add_u32 s{T}, s{T}, {MLP}")
        e.mem(f"buffer_load_dwordx4 {v4(vG+20)}, v{vVo}, s[{sWS}:{sWS+3}], s{T} offen {wpol}", "warm")
        e("s_mov_b64 exec, -1")
    e.wait("xc")
    x = vt; a, b_ = vt+8, vt+9
    for i in range(4):
        e(f"v_lshlrev_b32 v{x+2*i}, 16, v{vX4+i}")
        e(f"v_and_b32 v{x+2*i+1}, 0xffff0000, v{vX4+i}")
    e(f"v_add_f32 v{a}, v{x}, v{x+1}")
    for i in range(2, 8): e(f"v_add_f32 v{a}, v{a}, v{x+i}")
    wave_sum(e, a, sRL)
    e(f"v_mul_f32 v{a}, {f32(1/512)}, v{a}")
    e(f"v_mov_b32 v{b_}, 0")
    for i in range(8):
        e(f"v_sub_f32 v{x+i}, v{x+i}, v{a}")
        e(f"v_fmac_f32 v{b_}, v{x+i}, v{x+i}")
    wave_sum(e, b_, sRL)
    e(f"v_mul_f32 v{b_}, {f32(1/512)}, v{b_}")
    round_bf16(e, a, a)
    round_bf16(e, b_, b_)
    e(f"v_add_f32 v{b_}, {f32(1e-5)}, v{b_}")
    round_bf16(e, b_, b_)
    e(f"v_sqrt_f32 v{b_}, v{b_}")
    e("s_nop 0")
    round_bf16(e, b_, b_)
    e(f"v_rcp_f32 v{b_}, v{b_}")
    e(f"v_lshlrev_b32 v{x}, 16, v{vPP}")
    e(f"v_sub_f32 v{x}, v{x}, v{a}")
    round_bf16(e, x, x)
    e(f"v_mul_f32 v{x}, v{x}, v{b_}")
    e(f"v_cvt_pk_bf16_f32 v{vPP}, v{x}, v{x}")
    e("s_waitcnt lgkmcnt(0)")
    e(f"s_load_dwordx2 s[{sTA}:{sTA+1}], s[22:23], 0x0")
    e("s_nop 0")
    def up(acc, areg, tagp):
        for i in range(16):
            A4 = vA if (i & 1) == 0 else vA2
            for r in range(4): e(f"v_and_b32_dpp v{A4+r}, v{vPP}, v{vMk+r} {dpp(f'row_newbcast:{i}')}")
            if i % 4 == 0: e.wait(f"{tagp}{i+3}"); e("s_nop 0")
            else: e("s_nop 1")
            c = "0" if i == 0 else v4(acc)
            e(f"v_mfma_f32_16x16x32_bf16 {v4(acc)}, {v4(A4)}, {a4(areg+i*4)}, {c}")
    def pack_granule(acc, dst):
        e(f"v_cndmask_b32 v{dst}, v{acc+2}, v{acc}, vcc")
        e(f"v_cndmask_b32 v{dst+2}, v{acc+3}, v{acc+1}, vcc")
        e(f"v_mov_b32 v{dst+1}, s{sTA}"); e(f"v_mov_b32 v{dst+3}, s{sTB}")
    up(vS, aWQ, "wq")
    e("s_waitcnt lgkmcnt(0)")
    e(f"s_or_b32 s{T}, s{sTA}, s{sTA+1}")
    e(f"s_cmp_lg_u32 s{T}, 0")
    e("s_cbranch_scc1 L_haveep")
    e(f"s_mov_b32 s{sTA}, s{T+4}"); e(f"s_mov_b32 s{sTA+1}, s{T+5}")
    e(f"s_mov_b32 s{sTA+2}, 0"); e(f"s_mov_b32 s{sTA+3}, 0")
    e(f"s_atomic_cmpswap_x2 s[{sTA}:{sTA+3}], s[22:23], 0x0 glc")
    e("s_waitcnt lgkmcnt(0)")
    e(f"s_or_b32 s{T}, s{sTA}, s{sTA+1}")
    e(f"s_cmp_eq_u32 s{T}, 0")
    e(f"s_cselect_b32 s{sTA}, s{T+4}, s{sTA}")
    e(f"s_cselect_b32 s{sTB}, s{T+5}, s{sTB}")
    e.label("L_haveep")
    e(f"v_cmp_gt_u32 vcc, 2, v{vb}")
    e(f"s_lshl_b32 s{T}, s{sP}, 10")
    e("s_nop 5")
    pack_granule(vS, vG)
    e.mem(f"buffer_store_dwordx4 {v4(vG)}, v{vSt}, s[{sWS}:{sWS+3}], s{T} offen sc1", "st")
    stamp(1)
    e(f"s_lshl_b32 s{T}, s{sH}, 13")
    e(f"s_add_u32 s{T+1}, s{T}, 4096")
    vQg = vW
    up(vD2, aW1, "w1")
    e("s_nop 7")
    pack_granule(vD2, vHG)
    poll("q", [f"buffer_load_dwordx4 {v4(vQg+4*j)}, v{vVo}, s[{sWS}:{sWS+3}], s{T + (j>>2)} offen offset:{(j&3)*1024} sc1" for j in range(8)],
         [vQg+4*j for j in range(8)])
    for j in range(1, 8):
        for k in (0, 2): e(f"v_add_f32 v{vQg+k}, v{vQg+k}, v{vQg+4*j+k}")
    e(f"v_cvt_pk_bf16_f32 v{vt}, v{vQg}, v{vQg+2}")
    e(f"v_lshlrev_b32 v{vt+1}, 2, v0")
    e(f"ds_write_b32 v{vt+1}, v{vt} offset:{L_QB}")
    e(f"v_mov_b32 v{vt+2}, s{sTA}"); e(f"v_mov_b32 v{vt+3}, s{sTB}")
    e(f"ds_write_b64 v{vZero}, v[{vt+2}:{vt+3}] offset:{L_EP}")
    stamp(2)
    for d in range(D):
        e(f"s_mov_b32 s{sJ}, {J1 + d}")
        addr_local(); issue_K(d, thr, gran); issue_V(d, thr, gran)
    def proj(n, coef, data):
        for r in range(4): e(f"v_and_b32 v{vA+r}, v{coef}, v{vMk+r}")
        for t in range(n):
            A4, A4n = (vA, vA2) if (t & 1) == 0 else (vA2, vA)
            if t + 1 < n:
                for r in range(4): e(f"v_and_b32 v{A4n+r}, v{coef+t+1}, v{vMk+r}")
            else: e("s_nop 0")
            c = "0" if t == 0 else v4(vS)
            e(f"v_mfma_f32_16x16x32_bf16 {v4(vS)}, {v4(A4)}, {v4(data+t*4)}, {c}")
    def proj_publish(base):
        e(f"s_lshl_b32 s{T}, s{sS}, 14")
        e(f"s_lshl_b32 s{T+1}, s{sH}, 9")
        e(f"s_add_u32 s{T}, s{T}, s{T+1}")
        e(f"s_add_u32 s{T}, s{T}, {base}")
        e(f"v_and_b32 v{vt}, 0x1ff, v{vSt}")
        e(f"v_mov_b32 v{vD2+1}, s{sTA}"); e(f"v_mov_b32 v{vD2+3}, s{sTB}")
        e("s_nop 1")
        e(f"v_permlane32_swap_b32 v{vS}, v{vS+2}")
        e(f"v_permlane32_swap_b32 v{vS+1}, v{vS+3}")
        e("s_nop 1")
        e(f"v_add_f32_dpp v{vD2}, v{vS+2}, v{vS} {dpp('row_ror:8')}")
        e(f"v_add_f32_dpp v{vD2+2}, v{vS+3}, v{vS+1} {dpp('row_ror:8')}")
        e("s_mov_b32 exec_lo, 0x00ff00ff"); e("s_mov_b32 exec_hi, 0x00ff00ff")
        e(f"buffer_store_dwordx4 {v4(vD2)}, v{vt}, s[{sWS}:{sWS+3}], s{T} offen sc1")
        e("s_mov_b64 exec, -1")
    srd(e, sWO, 12, 0 if "o" in now else 4096*512*2)
    e(f"s_lshl_b32 s{T}, s{sH}, 17")
    e(f"s_lshl_b32 s{T+1}, s{sS}, 7")
    e(f"s_add_u32 s{T}, s{T}, s{T+1}")
    for t8 in range(8):
        dT = 8*(t8 & 3) + 4*(t8 >> 2)
        e(f"s_add_u32 s{T+1}, s{T}, {dT*1024}")
        e(f"s_waitcnt vmcnt({thr})")
        e(f"buffer_load_dwordx4 {v4(vW+t8*4)}, v{vWOo}, s[{sWO}:{sWO+3}], s{T+1} offen nt")
        e(f"buffer_load_dwordx4 {v4(vW+(t8+8)*4)}, v{vWOo}, s[{sWO}:{sWO+3}], s{T+1} offen offset:1024 nt")
    if warm & 2: warm_tail()
    build_bq()
    e.label("L_stream")
    stamp(3)
    e(f"s_lshl_b32 s{sTk}, s{sS}, 2")
    e(f"s_add_u32 s{sTk}, s{sTk}, s{sWave}")
    req_local()
    e.label("L_stat")
    for d in range(D): group(d, f"s{d}", "stat")
    e("s_branch L_stat")
    e.label("L_dyn")
    for d in range(D): group(d, f"d{d}", "dyn")
    e("s_branch L_dyn")
    e.label("L_done")
    if nost: e(f"s_mov_b32 s{sWS+2}, {WS_END}")
    stamp(4)
    e(f"s_cmp_lg_u32 s{sWave}, 0")
    e("s_cbranch_scc1 L_nohp")
    e(f"s_lshl_b32 s{T+1}, s{sP}, 9")
    e(f"s_add_u32 s{T+1}, s{T+1}, {HP}")
    e("s_mov_b32 exec_lo, 0x00ff00ff"); e("s_mov_b32 exec_hi, 0x00ff00ff")
    e(f"buffer_store_dwordx4 {v4(vHG)}, v{vSt}, s[{sWS}:{sWS+3}], s{T+1} offen sc1")
    e("s_mov_b64 exec, -1")
    e.label("L_nohp")
    e(f"s_lshl_b32 s{T+1}, s{sWave}, 9")
    e(f"v_lshl_add_u32 v{vT}, v{vb}, 2, v{vn}")
    e(f"v_lshl_add_u32 v{vT}, v{vT}, 5, s{T+1}")
    e(f"s_lshl_b32 s{T+1}, s{sWave}, 3")
    e(f"v_mov_b32 v{vP}, s{T+1}")
    e("s_nop 2")
    e(f"v_add_f32_dpp v{vM+1}, v{vLa}, v{vLa} {dpp('row_shl:4')}")
    for u in range(1, 4):
        for j in range(8): e(f"v_add_f32_dpp v{vO+j}, v{vO+8*u+j}, v{vO+j} {dpp(f'row_shl:{4*u}')}")
        if u > 1: e(f"v_add_f32_dpp v{vM+1}, v{vLa}, v{vM+1} {dpp(f'row_shl:{4*u}')}")
    e("s_mov_b32 exec_lo, 0x000f000f"); e("s_mov_b32 exec_hi, 0x000f000f")
    e(f"ds_write_b128 v{vT}, {v4(vO)} offset:{L_O}")
    e(f"ds_write_b128 v{vT}, {v4(vO+4)} offset:{L_O+16}")
    e("s_mov_b64 exec, 1")
    e(f"ds_write_b64 v{vP}, v[{vM}:{vM+1}] offset:{L_ML}")
    e("s_mov_b64 exec, -1")
    e("s_waitcnt lgkmcnt(0)")
    e("s_barrier")
    e(f"s_cmp_eq_u32 s{sWave}, 0")
    e("s_cbranch_scc1 L_tail0")
    e(f"s_cmp_eq_u32 s{sWave}, 2")
    e("s_cbranch_scc1 L_tail2")
    e(f"s_cmp_eq_u32 s{sWave}, 1")
    e("s_cbranch_scc0 L_exit")
    e(f"s_cmp_lt_u32 s{sH}, 4")
    e("s_cbranch_scc0 L_exit")
    e(f"ds_read_b64 v[{vA}:{vA+1}], v{vZero} offset:{L_EP}")
    srd(e, sOUT, 20, 1024)
    e(f"v_lshrrev_b32 v{vt}, 3, v0")
    e(f"v_and_b32 v{vt+1}, 7, v0")
    e(f"v_lshlrev_b32 v{vt+2}, 4, v{vt+1}")
    e(f"v_lshl_add_u32 v{vt}, v{vt}, 9, v{vt+2}")
    e(f"s_lshl_b32 s{T}, s{sS}, 14")
    e(f"s_lshl_b32 s{T+1}, s{sH}, 7")
    e(f"s_add_u32 s{T}, s{T}, s{T+1}")
    e(f"s_add_u32 s{T}, s{T}, {YP}")
    for j in range(1, 4): e(f"s_add_u32 s{T+j}, s{T}, {j*4096}")
    e(f"s_lshl_b32 s{T+4}, s{sS}, 7")
    e(f"s_lshl_b32 s{T+5}, s{sH}, 5")
    e(f"s_add_u32 s{T+4}, s{T+4}, s{T+5}")
    e(f"v_lshl_add_u32 v{vt+1}, v{vt+1}, 2, s{T+4}")
    e(f"buffer_load_dword v{vt+3}, v{vt+1}, s[{sX}:{sX+3}], 0 offen")
    e("s_waitcnt lgkmcnt(0)")
    e(f"v_readfirstlane_b32 s{sTA}, v{vA}")
    e(f"v_readfirstlane_b32 s{sTB}, v{vA+1}")
    e(f"v_add_u32 v{vt+2}, {ZP-YP}, v{vt}")
    poll("yz", [f"buffer_load_dwordx4 {v4(vG+4*j)}, v{vt+2}, s[{sWS}:{sWS+3}], s{T+j} offen sc1" for j in range(4)] +
               [f"buffer_load_dwordx4 {v4(vG+16+4*j)}, v{vt}, s[{sWS}:{sWS+3}], s{T+j} offen sc1" for j in range(4)],
         [vG+4*j for j in range(8)])
    for q in range(2):
        g = vG + 16*q
        for k in (0, 2):
            e(f"v_add_f32 v{g+k}, v{g+k}, v{g+4+k}")
            e(f"v_add_f32 v{g+8+k}, v{g+8+k}, v{g+12+k}")
    for q in range(2):
        g = vG + 16*q
        e(f"v_add_f32 v{vS+2*q}, v{g}, v{g+8}")
        e(f"v_add_f32 v{vS+2*q+1}, v{g+2}, v{g+10}")
    e("s_nop 0")
    for k in range(4): e(f"v_add_f32_dpp v{vS+k}, v{vS+k}, v{vS+k} {dpp('row_ror:8')}")
    for swap in ("v_permlane16_swap_b32", "v_permlane32_swap_b32"):
        for k in range(4): e(f"v_mov_b32 v{vG+k}, v{vS+k}")
        e("s_nop 0")
        for k in range(4): e(f"{swap} v{vS+k}, v{vG+k}")
        for k in range(4): e(f"v_add_f32 v{vS+k}, v{vS+k}, v{vG+k}")
    for k in range(4): e(f"v_cvt_pk_bf16_f32 v{vS+k}, v{vS+k}, v{vS+k}")
    for k in range(4): e(f"v_and_b32 v{vS+k}, 0xffff0000, v{vS+k}")
    for k in range(2): e(f"v_mul_f32 v{vA+k}, {f32(-1.4426950408889634)}, v{vS+k}")
    for k in range(2): e(f"v_exp_f32 v{vA+k}, v{vA+k}")
    e(f"v_lshlrev_b32 v{vA+2}, 16, v{vt+3}")
    for k in range(2): e(f"v_add_f32 v{vA+k}, 1.0, v{vA+k}")
    for k in range(2): e(f"v_rcp_f32 v{vA+k}, v{vA+k}")
    e(f"v_and_b32 v{vA+3}, 0xffff0000, v{vt+3}")
    for k in range(2): e(f"v_mul_f32 v{vA+k}, v{vS+k}, v{vA+k}")
    for k in range(2): e(f"v_cvt_pk_bf16_f32 v{vA+k}, v{vA+k}, v{vA+k}")
    for k in range(2): e(f"v_and_b32 v{vA+k}, 0xffff0000, v{vA+k}")
    for k in range(2): e(f"v_mul_f32 v{vS+k}, v{vS+2+k}, v{vA+k}")
    for k in range(2): e(f"v_cvt_pk_bf16_f32 v{vS+k}, v{vS+k}, v{vS+k}")
    for k in range(2): e(f"v_and_b32 v{vS+k}, 0xffff0000, v{vS+k}")
    for k in range(2): e(f"v_add_f32 v{vS+k}, v{vA+2+k}, v{vS+k}")
    e(f"v_cvt_pk_bf16_f32 v{vS}, v{vS}, v{vS+1}")
    e("s_mov_b64 exec, 0xff")
    e(f"buffer_store_dword v{vS}, v{vt+1}, s[{sOUT}:{sOUT+3}], 0 offen")
    e("s_mov_b64 exec, -1")
    e("s_branch L_exit")
    e.label("L_tail2")
    e(f"ds_read_b64 v[{vA}:{vA+1}], v{vZero} offset:{L_EP}")
    e(f"s_lshl_b32 s{T+2}, s{sH}, 12")
    e(f"s_add_u32 s{T+2}, s{T+2}, {HP}")
    e("s_waitcnt lgkmcnt(0)")
    e(f"v_readfirstlane_b32 s{sTA}, v{vA}")
    e(f"v_readfirstlane_b32 s{sTB}, v{vA+1}")
    vH = vW
    poll("h", [f"buffer_load_dwordx4 {v4(vH+4*j)}, v{vVo}, s[{sWS}:{sWS+3}], s{T+2} offen offset:{j*1024} sc1" for j in range(4)],
         [vH+4*j for j in range(4)])
    for k in (0, 2):
        e(f"v_add_f32 v{vG+k}, v{vH+k}, v{vH+4+k}")
        e(f"v_add_f32 v{vH+k}, v{vH+8+k}, v{vH+12+k}")
        e(f"v_add_f32 v{vG+k}, v{vG+k}, v{vH+k}")
    e(f"v_mov_b32 v{vG+1}, v{vG}"); e(f"v_mov_b32 v{vG+3}, v{vG+2}")
    e("s_nop 1")
    e(f"v_permlane32_swap_b32 v{vG}, v{vG+1}"); e(f"v_permlane32_swap_b32 v{vG+2}, v{vG+3}")
    e("s_nop 1")
    e(f"v_add_f32 v{vG}, v{vG}, v{vG+1}"); e(f"v_add_f32 v{vG+2}, v{vG+2}, v{vG+3}")
    e(f"v_max_f32 v{vG}, 0, v{vG}"); e(f"v_max_f32 v{vG+2}, 0, v{vG+2}")
    e(f"v_cvt_pk_bf16_f32 v{vG}, v{vG}, v{vG}"); e(f"v_cvt_pk_bf16_f32 v{vG+2}, v{vG+2}, v{vG+2}")
    e(f"v_and_b32 v{vt+4}, 3, v0")
    e(f"v_lshlrev_b32 v{vt+4}, 6, v{vt+4}")
    e(f"v_bfe_u32 v{vt+5}, v0, 2, 3")
    e(f"v_lshl_add_u32 v{vt+4}, v{vt+5}, 2, v{vt+4}")
    e(f"ds_write_b32 v{vt+4}, v{vG} offset:{L_HT}")
    e(f"ds_write_b32 v{vt+4}, v{vG+2} offset:{L_HT+32}")
    e(f"v_lshrrev_b32 v{vt+5}, 3, v0")
    e(f"v_lshlrev_b32 v{vt+5}, 5, v{vt+5}")
    e(f"ds_read_b128 {v4(vG+4)}, v{vt+5} offset:{L_HT}")
    e(f"ds_read_b64 v[{vG+8}:{vG+9}], v{vt+5} offset:{L_HT+16}")
    e("s_waitcnt lgkmcnt(0)")
    proj(6, vG+4, vW2)
    proj_publish(ZP)
    e("s_branch L_exit")
    e.label("L_tail0")
    ml = vO; op = vO + 8
    e(f"ds_read_b128 {v4(ml)}, v{vZero} offset:{L_ML}")
    e(f"ds_read_b128 {v4(ml+4)}, v{vZero} offset:{L_ML+16}")
    e(f"v_lshlrev_b32 v{vP}, 3, v0")
    for p in range(4): e(f"ds_read_b64 v[{op+2*p}:{op+2*p+1}], v{vP} offset:{L_O+p*512}")
    e(f"v_mov_b32 v{vA+1}, s{sTA}"); e(f"v_mov_b32 v{vA+3}, s{sTB}")
    e(f"v_mov_b32 v{vA2+1}, s{sTA}"); e(f"v_mov_b32 v{vA2+3}, s{sTB}")
    e(f"s_lshl_b32 s{T}, s{sP}, 10"); e(f"s_add_u32 s{T}, s{T}, {OP}")
    e(f"s_lshl_b32 s{T+1}, s{sP}, 4"); e(f"s_add_u32 s{T+1}, s{T+1}, {MLP}")
    e("s_waitcnt lgkmcnt(4)")
    e(f"v_max_f32 v{vA2}, v{ml}, v{ml+2}")
    e(f"v_max3_f32 v{vA2}, v{ml+4}, v{ml+6}, v{vA2}")
    for p in range(4): e(f"v_sub_f32 v{ml+2*p}, v{ml+2*p}, v{vA2}")
    for p in range(4): e(f"v_exp_f32 v{ml+2*p}, v{ml+2*p}")
    e("s_waitcnt lgkmcnt(0)")
    e(f"v_mul_f32 v{vA}, v{ml}, v{op}")
    e(f"v_mul_f32 v{vA+2}, v{ml}, v{op+1}")
    for p in range(1, 4):
        e(f"v_fmac_f32 v{vA}, v{ml+2*p}, v{op+2*p}")
        e(f"v_fmac_f32 v{vA+2}, v{ml+2*p}, v{op+2*p+1}")
    e(f"buffer_store_dwordx4 {v4(vA)}, v{vVo}, s[{sWS}:{sWS+3}], s{T} offen sc1")
    e(f"v_mul_f32 v{vA2+2}, v{ml}, v{ml+1}")
    for p in range(1, 4): e(f"v_fmac_f32 v{vA2+2}, v{ml+2*p}, v{ml+2*p+1}")
    e("s_mov_b64 exec, 1")
    e(f"buffer_store_dwordx4 {v4(vA2)}, v{vZero}, s[{sWS}:{sWS+3}], s{T+1} offen sc1")
    e("s_mov_b64 exec, -1")
    stamp(5)
    e(f"s_lshl_b32 s{T}, s{sH}, 13"); e(f"s_add_u32 s{T}, s{T}, {OP}")
    e(f"s_add_u32 s{T+1}, s{T}, 4096")
    e(f"s_lshl_b32 s{T+2}, s{sH}, 7"); e(f"s_add_u32 s{T+2}, s{T+2}, {MLP}")
    e(f"v_and_b32 v{vt}, 7, v0")
    e(f"v_lshlrev_b32 v{vt}, 4, v{vt}")
    poll("o", [f"buffer_load_dwordx4 {v4(vG+4*j)}, v{vVo}, s[{sWS}:{sWS+3}], s{T + (j>>2)} offen offset:{(j&3)*1024} sc1" for j in range(8)] +
              [f"buffer_load_dwordx4 {v4(vG+32)}, v{vt}, s[{sWS}:{sWS+3}], s{T+2} offen sc1"],
         [vG+4*j for j in range(9)])
    stamp(6)
    mm, ll = vG+32, vG+34
    cs = ("quad_perm:[1,0,3,2]", "quad_perm:[2,3,0,1]", "row_half_mirror")
    e(f"v_max_f32_dpp v{vT}, v{mm}, v{mm} {dpp(cs[0])}")
    for c in cs[1:]:
        e("s_nop 1")
        e(f"v_max_f32_dpp v{vT}, v{vT}, v{vT} {dpp(c)}")
    e(f"v_sub_f32 v{vT}, v{mm}, v{vT}")
    e(f"v_exp_f32 v{vT}, v{vT}")
    e("s_nop 0")
    e(f"v_mul_f32 v{vP}, v{vT}, v{ll}")
    e(f"v_lshlrev_b32 v{vt+1}, 3, v0")
    for k in range(2): e(f"v_mul_f32_dpp v{vA+k}, v{vT}, v{vG+2*k} {dpp('row_newbcast:0')}")
    for j in range(1, 8):
        if j <= 3: e(f"v_add_f32_dpp v{vP}, v{vP}, v{vP} {dpp(cs[j-1])}")
        if j == 5: e(f"v_rcp_f32 v{vP}, v{vP}")
        for k in range(2):
            e(f"v_fmac_f32_dpp v{vA+k}, v{vT}, v{vG+4*j+2*k} {dpp(f'row_newbcast:{j}')}")
    for k in range(2): e(f"v_mul_f32 v{vA+k}, v{vA+k}, v{vP}")
    for k in range(2): e(f"v_cvt_pk_bf16_f32 v{vA+k}, v{vA+k}, v{vA+k}")
    e(f"ds_write_b64 v{vt+1}, v[{vA}:{vA+1}] offset:{L_OC}")
    e(f"v_lshrrev_b32 v{vP}, 3, v0")
    e(f"v_lshlrev_b32 v{vP}, 6, v{vP}")
    for q in range(4): e(f"ds_read_b128 {v4(vG+4*q)}, v{vP} offset:{L_OC+16*q}")
    e("s_waitcnt lgkmcnt(0)")
    proj(16, vG, vW)
    proj_publish(YP)
    e.label("L_exit")
    if ts:
        stamp(7)
        e("s_lshl_b32 s88, s2, 2"); e(f"s_add_u32 s88, s88, s{sWave}"); e("s_lshl_b32 s88, s88, 5")
        e("s_add_u32 s88, s88, 0x20000000")
        e("s_add_u32 s24, s24, s88"); e("s_addc_u32 s25, s25, 0")
        e("s_mov_b64 exec, 1")
        e(f"global_store_dwordx4 v{vZero}, {v4(vTS)}, s[24:25]")
        e(f"global_store_dwordx4 v{vZero}, {v4(vTS+4)}, s[24:25] offset:16")
    e.label("L_end")
    e("s_endpgm")
    if ts or warm & 4:
        for d in range(D):
            e.label(f"L_sw{d}")
            e(f"s_cmp_eq_u32 s{sWave}, 0")
            e(f"s_cbranch_scc0 L_sx{d}")
            if warm & 4: warm_tail()
            e(f"s_branch L_midd{d}")
            e.label(f"L_sx{d}")
            stamp(1)
            e(f"s_branch L_midd{d}")
    for d in resc:
        e.label(f"L_resc{d}")
        e("s_nop 0")
        e(f"v_max_f32_dpp v{vP}, v{vT}, v{vT} {dpp('row_ror:4')}")
        e("s_nop 1")
        e(f"v_max_f32_dpp v{vP}, v{vP}, v{vP} {dpp('row_ror:8')}")
        e("s_nop 0")
        for i in range(4): e(f"v_readlane_b32 s{sRL+i}, v{vP}, {16*i}")
        e("s_nop 1")
        e(f"v_max_f32 v{vP}, s{sRL}, v{vM}")
        for i in range(1, 4): e(f"v_max_f32 v{vP}, s{sRL+i}, v{vP}")
        e(f"v_sub_f32 v{vA}, v{vM}, v{vP}")
        e(f"v_exp_f32 v{vA}, v{vA}")
        e(f"v_mov_b32 v{vM}, v{vP}")
        e(f"v_mul_f32 v{vLa}, v{vLa}, v{vA}")
        for i in range(0, 32, 2): e(f"v_pk_mul_f32 v[{vO+i}:{vO+i+1}], v[{vO+i}:{vO+i+1}], v[{vA}:{vA+1}] op_sel_hi:[1,0]")
        e(f"s_branch L_back{d}")

def desc(name, nv, ns, acc):
    return f""".amdhsa_kernel {name}
  .amdhsa_next_free_vgpr {nv}
  .amdhsa_next_free_sgpr {ns}
  .amdhsa_accum_offset {acc}
  .amdhsa_group_segment_fixed_size 0
  .amdhsa_kernarg_size 88
  .amdhsa_user_sgpr_count 2
  .amdhsa_user_sgpr_kernarg_segment_ptr 1
  .amdhsa_system_sgpr_workgroup_id_x 1
  .amdhsa_float_denorm_mode_32 3
.end_amdhsa_kernel
"""

def build(**kw):
    e = E()
    e.raw(HEADER.rstrip())
    e.raw(f"; @launch grid=(256,1,1) block=(256,1,1) lds={LDS_BYTES}")
    e.raw('.amdgcn_target "amdgcn-amd-amdhsa--gfx950"')
    e.raw(".text")
    gen_main(e, **kw)
    e.raw('.section .rodata,"a"'); e.raw(".p2align 6")
    e.raw(desc(KNAME, 512, 102, 256))
    return e.text()

if __name__ == "__main__":
    out = sys.argv[1]
    kw = eval("dict(%s)" % (sys.argv[2] if len(sys.argv) > 2 else ""))
    open(out, "w").write(build(**kw))
```

```python
import sys, struct
KNAME = "recurrent_scan__gqa_block_cached__dense_activation_relu__decode_kernel"
HEADER = open("recurrent_scan__gqa_block_cached__dense_activation_relu__decode.s.ref").read().split("; Override launch")[0]

def f32(x): return "0x%08x" % struct.unpack("<I", struct.pack("<f", x))[0]

class E:
    def __init__(self): self.L = []; self.vm = []
    def __call__(self, s): self.L.append("  " + s)
    def label(self, s): self.L.append(s + ":")
    def raw(self, s): self.L.append(s)
    def c(self, s): self.L.append("  ; " + s)
    def mem(self, s, tag):
        self.L.append("  " + s); self.vm.append(tag)
    def wait(self, tag, gen=None):
        idxs = [i for i, t in enumerate(self.vm) if t == tag]
        idx = idxs[-1] if gen is None else idxs[4*gen+3]
        n = len(self.vm) - 1 - idx
        self(f"s_waitcnt vmcnt({min(59, n)})")
    def text(self): return "\n".join(self.L) + "\n"

QP, HP, OP, MLP, YP, ZP, TK, WS_END = 0x0, 0x40000, 0x60000, 0xA0000, 0xB0000, 0xD0000, 0xF0000, 0xF2000
L_QB, L_EP, L_CT, L_DN, L_WM, L_HT, L_O, L_ML, L_OC, L_S = 0x0, 0x100, 0x108, 0x10C, 0x110, 0x140, 0x400, 0xC00, 0xD00, 0x1000
OOB = 0x40000000
POLL_MAX = 400000

def dpp(ctrl): return f"{ctrl} row_mask:0xf bank_mask:0xf"

def wave_sum(e, v, sa):
    for c in ("quad_perm:[1,0,3,2]", "quad_perm:[2,3,0,1]", "row_half_mirror", "row_mirror"):
        e("s_nop 1")
        e(f"v_add_f32_dpp v{v}, v{v}, v{v} {dpp(c)}")
    e("s_nop 0")
    for i in range(4): e(f"v_readlane_b32 s{sa+i}, v{v}, {16*i}")
    e("s_nop 1")
    e(f"v_mov_b32 v{v}, s{sa}")
    for i in range(1, 4): e(f"v_add_f32 v{v}, s{sa+i}, v{v}")

def round_bf16(e, vd, vs):
    e(f"v_cvt_pk_bf16_f32 v{vd}, v{vs}, v{vs}")
    e(f"v_and_b32 v{vd}, 0xffff0000, v{vd}")

def srd(e, d, b, nbytes):
    e(f"s_mov_b32 s{d}, s{b}"); e(f"s_mov_b32 s{d+1}, s{b+1}")
    e(f"s_mov_b32 s{d+2}, {nbytes}"); e(f"s_mov_b32 s{d+3}, 0x00020000")

def gen_main(e, G=8, NS=60, DA=16, thrf=6, thr=4, thrv=None, thrd=None, ts=False, noex=False, now='', rotr=False, pg='r', gran=1, granf=1, nost=False, nocomp=False, BU=4, upol='nt'):
    D = 2; N = 4*NS
    if thrv is None: thrv = thr
    if thrd is None: thrd = thr
    m = 8 // G; lg = G.bit_length()-1; lm = m.bit_length()-1
    DYN = NS*32
    sK, sV, sWQ, sWO, sX, sW1, sW2, sWS, sOUT = 28, 32, 36, 40, 44, 48, 52, 56, 76
    sH, sS, sWave = 60, 61, 3
    sU, sCnt, sNC = 62, 64, 65
    sB = 36
    T = 66
    sHB, sP = 74, 75
    sTA, sTB = 80, 81
    sTk, sC0, sTKa = 84, 85, 86
    sEnd, sEnd2, sPos, sJ, sO = 88, 89, 90, 91, 92
    sRL = 96
    sTS = 100
    vZero, vKo, vVo, vM, vC, vT, vP, vM0, vM1, vSt = 1, 2, 3, 4, 6, 7, 8, 9, 10, 11
    vB = 12; vb, vn = 14, 15
    vS = 16; vMk = 20; vA = 24; vA2 = 28; vD2 = 32
    vBq = 36; vO = 52; vW = 84
    vW2 = 148; vG = 172
    vLa = 220
    vOnes = 224
    vJ, vOne, vWOo, vPP = 226, 227, 228, 229
    vL4, vAd = 230, 231
    vX4 = 232
    vHG = 232
    vt = 236
    vTS = 248
    def stamp(i):
        if ts:
            e(f"s_memrealtime s[{sTS}:{sTS+1}]")
            e("s_waitcnt lgkmcnt(0)")
            e(f"v_mov_b32 v{vTS+i}, s{sTS}")
    def bbase(b, i):
        if b < 16: return "a", b*16 + i*4
        return "v", vW + (b-16)*16 + i*4
    def buf(b, i): c, r = bbase(b, i); return f"{c}[{r}:{r+3}]"
    def bufh(b, i, half): c, r = bbase(b, i); r += 2*half; return f"{c}[{r}:{r+1}]"
    def v4(r): return f"v[{r}:{r+3}]"
    def a4(r): return f"a[{r}:{r+3}]"
    assert 4 <= DA <= 20
    rounds = []
    cur = list(range(DA))
    while True:
        if len(cur) <= 8:
            step = (len(cur)-1) / 3
            keep = [cur[round(i*step)] for i in range(4)]
        else: keep = cur[0::2]
        rounds.append([(p, p in keep) for p in cur])
        cur = keep
        if len(cur) == 4: break
    buf_of = {p: i for i, p in enumerate(cur)}
    nxt = 4
    for p in range(DA):
        if p not in buf_of: buf_of[p] = nxt; nxt += 1
    assert buf_of[0] == 0
    NREF = sum(r for rd in rounds for _, r in rd)
    J1 = 3*DA
    J2 = J1 + 4
    J3 = J2 + 3*NREF
    assert J3 <= N

    e.raw(f".globl {KNAME}"); e.raw(".p2align 8"); e.raw(f".type {KNAME},@function"); e.label(KNAME)
    e("s_cmp_ge_u32 s2, 256")
    e("s_cbranch_scc1 L_end")
    e("s_load_dwordx16 s[4:19], s[0:1], 0")
    e("s_load_dwordx4 s[20:23], s[0:1], 64")
    e("s_load_dwordx2 s[24:25], s[0:1], 80")
    e(f"s_memrealtime s[{sTA}:{sTA+1}]")
    e("v_lshrrev_b32 v1, 6, v0")
    e("v_and_b32 v0, 63, v0")
    e(f"s_and_b32 s{T}, s2, 7")
    e(f"v_readfirstlane_b32 s{sWave}, v1")
    e(f"s_lshr_b32 s{T+1}, s2, 3")
    e(f"s_lshr_b32 s{T+2}, s{T}, {lg}")
    e(f"s_and_b32 s{T+3}, s{T}, {G-1}")
    e(f"s_lshr_b32 s{sH}, s{T+1}, {lm}")
    e(f"s_and_b32 s{T+4}, s{T+1}, {m-1}")
    e(f"s_mul_i32 s{sH}, s{sH}, {8//G}")
    e(f"s_add_u32 s{sH}, s{sH}, s{T+2}")
    e(f"s_mul_i32 s{sS}, s{T+3}, {m}")
    e(f"s_add_u32 s{sS}, s{sS}, s{T+4}")
    e(f"s_lshl_b32 s{sHB}, s{sH}, 23")
    if G == 8: e(f"s_add_u32 s{sPos}, s{sS}, s{sH}")
    else: e(f"s_mov_b32 s{sPos}, s{sS}")
    e(f"s_and_b32 s{sPos}, s{sPos}, 7")
    sCw = 63
    e(f"s_lshr_b32 s{sCw}, s{sH}, 3")
    e(f"v_lshrrev_b32 v{vb}, 4, v0")
    e(f"v_and_b32 v{vn}, 15, v0")
    e(f"v_lshlrev_b32 v{vVo}, 4, v0")
    e(f"v_bfe_u32 v{vt}, v0, 2, 2")
    e(f"v_lshlrev_b32 v{vKo}, 8, v{vt}")
    e(f"v_lshl_add_u32 v{vKo}, v{vb}, 6, v{vKo}")
    e(f"v_and_b32 v{vt+1}, 3, v0")
    e(f"v_lshl_add_u32 v{vKo}, v{vt+1}, 4, v{vKo}")
    e(f"v_mov_b32 v{vZero}, 0")

    def addr_local():
        if BU == 8:
            assert pg == 'r' and not rotr and N % 8 == 0
            e(f"s_lshr_b32 s{sO+1}, s{sJ}, 3")
            e(f"s_lshl_b32 s{sO+1}, s{sO+1}, 3")
            e(f"s_add_u32 s{sO+1}, s{sO+1}, s{sPos}")
            e(f"s_lshl_b32 s{sO+1}, s{sO+1}, 1")
            e(f"s_lshl_b32 s{sO+2}, s{sCw}, 1")
            e(f"s_add_u32 s{sO+2}, s{sJ}, s{sO+2}")
            e(f"s_and_b32 s{sO+2}, s{sO+2}, 7")
            blk_addr(); return
        e(f"s_lshr_b32 s{sO+1}, s{sJ}, 2")
        if G == 8 and rotr:
            e(f"s_add_u32 s{sO+2}, s{sO+1}, s{sPos}")
            e(f"s_and_b32 s{sO+2}, s{sO+2}, 7")
            e(f"s_lshl_b32 s{sO+1}, s{sO+1}, 3")
            e(f"s_add_u32 s{sO+1}, s{sO+1}, s{sO+2}")
        else:
            e(f"s_lshl_b32 s{sO+1}, s{sO+1}, 3")
            e(f"s_add_u32 s{sO+1}, s{sO+1}, s{sPos}")
        if pg:
            e(f"s_add_u32 s{sO+2}, s{sJ}, s{sCw}")
            e(f"s_and_b32 s{sO+2}, s{sO+2}, 3")
        else:
            e(f"s_and_b32 s{sO+2}, s{sJ}, 3")
        blk_addr()
    def blk_addr():
        e(f"s_lshl_b32 s{sO+1}, s{sO+1}, 14")
        e(f"s_lshl_b32 s{sO+2}, s{sO+2}, {10 if pg == 'x' else 12}")
        e(f"s_add_u32 s{sO+1}, s{sO+1}, s{sO+2}")
        e(f"s_add_u32 s{sO}, s{sO+1}, s{sHB}")
        if pg == 'x':
            for i in range(1, 4): e(f"s_xor_b32 s{sO+i}, s{sO}, {i*5120}")
    def so(i): return f"s{sO+i} offen" if pg == 'x' else f"s{sO} offen offset:{i*1024}"
    def req_local():
        e("s_mov_b64 exec, 1")
        e(f"ds_add_rtn_u32 v{vJ}, v{vZero}, v{vOne} offset:{L_CT}")
        e("s_mov_b64 exec, -1")
    def issue(b, isV, th=None, gr=1):
        vo, sr = (vVo, sV) if isV else (vKo, sK)
        for i in range(4):
            if th is not None and i % gr == 0: e(f"s_waitcnt vmcnt({th})")
            e.mem(f"buffer_load_dwordx4 {buf(b,i)}, v{vo}, s[{sr}:{sr+3}], {so(i)} nt", f"B{b}")

    def consts():
        t = vt+8
        e(f"v_and_b32 v{t}, 1, v0")
        e(f"v_lshlrev_b32 v{t}, 4, v{t}")
        e(f"v_mov_b32 v{t+1}, 0xffff")
        e(f"v_lshlrev_b32 v{t+1}, v{t}, v{t+1}")
        e(f"v_and_b32 v{t+2}, 2, v0")
        e(f"v_cmp_eq_u32 vcc, 0, v{t+2}")
        e(f"v_bfe_u32 v{t+2}, v0, 1, 2")
        e("s_nop 0")
        e(f"v_cndmask_b32 v{vM0}, 0, v{t+1}, vcc")
        e(f"v_cndmask_b32 v{vM1}, v{t+1}, 0, vcc")
        for r in range(4):
            e(f"v_cmp_eq_u32 vcc, {r}, v{t+2}")
            e("s_nop 1")
            e(f"v_cndmask_b32 v{vMk+r}, 0, v{t+1}, vcc")
        e(f"v_mov_b32 v{vC}, {f32((128**-0.5)*1.4426950408889634)}")
        e(f"v_mov_b32 v{vM}, {f32(-3.0e38)}")
        for i in range(4): e(f"v_mov_b32 v{vLa+i}, 0")
        e(f"v_mov_b32 v{vOnes}, 0x3f803f80"); e(f"v_mov_b32 v{vOnes+1}, 0x3f803f80")
        for i in range(32): e(f"v_mov_b32 v{vO+i}, 0")
        e(f"v_mov_b32 v{vOne}, 1")
        e(f"v_lshlrev_b32 v{vL4}, 2, v0")
        e(f"v_lshlrev_b32 v{vSt}, 6, v{vn}")
        e(f"v_and_b32 v{t}, 1, v{vb}")
        e(f"v_lshl_add_u32 v{vSt}, v{t}, 5, v{vSt}")
        e(f"v_lshrrev_b32 v{t}, 1, v{vb}")
        e(f"v_lshl_add_u32 v{vSt}, v{t}, 4, v{vSt}")
        srd(e, sWS, 24, 0 if nost else WS_END); srd(e, sX, 4, 1024)
        e(f"s_mov_b32 s{sEnd}, 0x7fffffff")
        e(f"s_lshl_b32 s{sP}, s{sH}, 3")
        e(f"s_add_u32 s{sP}, s{sP}, s{sS}")
    def ffn_range():
        e(f"s_min_u32 s{T}, s{sH}, 12")
        e(f"s_mul_i32 s{sC0}, s{sH}, 5")
        e(f"s_add_u32 s{sC0}, s{sC0}, s{T}")
        e(f"s_cmp_lt_u32 s{sH}, 12")
        e(f"s_cselect_b32 s{sNC}, 6, 5")
    def tk_addr():
        e(f"s_lshl_b32 s{T}, s{sH}, 8")
        e(f"s_add_u32 s{T}, s{T}, {TK}")
        e(f"s_add_u32 s{sTKa}, s24, s{T}")
        e(f"s_addc_u32 s{sTKa+1}, s25, 0")

    def tagcheck(regs, acc, tmp):
        for k, r in enumerate(regs):
            e(f"v_xor_b32 v{tmp}, s{sTA}, v{r+1}")
            e(f"v_xor_b32 v{tmp+1}, s{sTB}, v{r+3}")
            if k == 0: e(f"v_or_b32 v{acc}, v{tmp}, v{tmp+1}")
            else: e(f"v_or3_b32 v{acc}, v{tmp}, v{tmp+1}, v{acc}")
        e(f"v_cmp_ne_u32 vcc, 0, v{acc}")
    def poll(name, loads, regs):
        if noex and name in ("q", "h"):
            e("s_waitcnt vmcnt(0)"); return
        e(f"s_mov_b32 s{T+7}, {POLL_MAX}")
        e.label(f"L_poll_{name}")
        for l in loads: e(l)
        e(f"s_sub_u32 s{T+7}, s{T+7}, 1")
        e("s_waitcnt vmcnt(0)")
        tagcheck(regs, vt+10, vt+8)
        e(f"s_cbranch_vccz L_polld_{name}")
        e(f"s_cmp_lg_u32 s{T+7}, 0")
        e(f"s_cbranch_scc1 L_poll_{name}")
        e.label(f"L_polld_{name}")

    def build_bq():
        u0 = vt
        e(f"v_and_b32 v{u0}, 3, v0")
        e(f"v_lshl_add_u32 v{u0}, v{vb}, 2, v{u0}")
        e(f"v_lshlrev_b32 v{u0}, 4, v{u0}")
        e(f"ds_read_b128 {v4(vA)}, v{u0} offset:{L_QB}")
        e(f"v_bfe_u32 v{u0+1}, v0, 2, 2")
        e("s_waitcnt lgkmcnt(0)")
        for u in range(4):
            e(f"v_cmp_eq_u32 vcc, {u}, v{u0+1}")
            e("s_nop 1")
            for r in range(4): e(f"v_cndmask_b32 v{vBq+4*u+r}, 0, v{vA+r}, vcc")

    resc = []
    def qk(b):
        if nocomp: return
        for u in range(4):
            c = "0" if u == 0 else v4(vS)
            e(f"v_mfma_f32_16x16x32_bf16 {v4(vS)}, {buf(b,u)}, {v4(vBq+4*u)}, {c}")
    def score():
        e(f"v_mul_f32_dpp v{vT}, v{vS}, v{vC} {dpp('quad_perm:[0,0,0,0]')}")
        for r in range(1, 4):
            e(f"v_fmac_f32_dpp v{vT}, v{vS+r}, v{vC} {dpp(f'quad_perm:[{r},{r},{r},{r}]')}")
    def score_store():
        score()
        e(f"v_max_f32 v{vM}, v{vM}, v{vT}")
        e(f"ds_write_b32 v{vAd}, v{vT} offset:{L_S}")
    def prob(src):
        e(f"v_sub_f32 v{vP}, v{src}, v{vM}")
        e(f"v_exp_f32 v{vP}, v{vP}")
        e("s_nop 0")
        e(f"v_cvt_pk_bf16_f32 v{vP}, v{vP}, v{vP}")
        e(f"v_and_b32 v{vB}, v{vP}, v{vM0}")
        e(f"v_and_b32 v{vB+1}, v{vP}, v{vM1}")
    def pv(b):
        if nocomp: return
        e(f"v_mfma_f32_16x16x16_bf16 {v4(vLa)}, v[{vOnes}:{vOnes+1}], v[{vB}:{vB+1}], {v4(vLa)}")
        for u in range(4):
            for hf in range(2):
                o = vO + (u*2+hf)*4
                e(f"v_mfma_f32_16x16x16_bf16 {v4(o)}, {bufh(b,u,hf)}, v[{vB}:{vB+1}], {v4(o)}")
    def wave_max(dst, src):
        e(f"v_max_f32_dpp v{dst}, v{src}, v{src} {dpp('row_ror:4')}")
        e("s_nop 1")
        e(f"v_max_f32_dpp v{dst}, v{dst}, v{dst} {dpp('row_ror:8')}")
        e("s_nop 0")
        for i in range(4): e(f"v_readlane_b32 s{sRL+i}, v{dst}, {16*i}")
        e("s_nop 1")
        e(f"v_mov_b32 v{dst}, s{sRL}")
        for i in range(1, 4): e(f"v_max_f32 v{dst}, s{sRL+i}, v{dst}")
    uniq = [0]
    def take_dyn():
        uniq[0] += 1
        e("s_waitcnt lgkmcnt(0)")
        e(f"s_cmp_lt_u32 s{sTk}, {2048-DYN}")
        e(f"s_cselect_b32 s{sK+2}, 0x10000000, 0")
        e(f"s_cselect_b32 s{sV+2}, 0x10000000, 0")
        e(f"s_cselect_b32 s{sEnd2}, s{sEnd}, {D}")
        e(f"s_cselect_b32 s{sU}, s{sTk}, 0")
        e(f"s_cbranch_scc0 L_notk{uniq[0]}")
        e(f"s_mov_b32 s{sTk}, 1")
        e(f"s_atomic_add s{sTk}, s[{sTKa}:{sTKa+1}], 0x0 glc")
        e.label(f"L_notk{uniq[0]}")
        e(f"s_min_u32 s{sEnd}, s{sEnd}, s{sEnd2}")
        e(f"s_add_u32 s{sU}, s{sU}, {DYN}")
        e(f"s_lshr_b32 s{sO+1}, s{sU}, 2")
        e(f"s_and_b32 s{sO+2}, s{sU}, 3")
        blk_addr()
    def dyn_group(d):
        e.label(f"L_dyn{d}")
        e(f"s_sub_u32 s{sEnd}, s{sEnd}, 1")
        e(f"s_cmp_eq_u32 s{sEnd}, 0")
        e("s_cbranch_scc1 L_done")
        e("s_waitcnt vmcnt(12)")
        qk(2*d)
        take_dyn()
        issue(2*d, False, thrd, gran)
        score()
        e(f"v_cmp_gt_f32 vcc, v{vT}, v{vM}")
        e(f"s_cbranch_vccnz L_rescd{d}")
        e.label(f"L_backd{d}")
        resc.append(f"d{d}")
        prob(vT)
        e("s_waitcnt vmcnt(12)")
        e("s_nop 0")
        pv(2*d+1)
        issue(2*d+1, True, thrd, gran)
    def k_static(b, gen, jcur, jref):
        e.wait(f"B{b}", gen)
        qk(b)
        e(f"s_add_u32 s{T}, s{sWave}, {jcur-1}")
        e(f"s_lshl_b32 s{T}, s{T}, 8")
        e(f"v_add_u32 v{vAd}, s{T}, v{vL4}")
        if jref is not None:
            e(f"s_add_u32 s{sJ}, s{sWave}, {jref-1}")
            addr_local()
            if b < 4: e(f"s_lshl_b32 s{sB+b}, s{sJ}, 8")
        else: e("s_nop 4")
        score_store()
        if jref is not None: issue(b, False, thr, gran)

    e(f"s_cmp_eq_u32 s{sWave}, 0")
    e("s_cbranch_scc1 L_wave0")
    e(f"s_add_u32 s{sJ}, s{sWave}, -1")
    addr_local()
    e("s_waitcnt lgkmcnt(0)")
    if ts:
        e(f"v_mov_b32 v{vTS}, s{sTA}")
        for i in range(1, 8): e(f"v_mov_b32 v{vTS+i}, 0")
    srd(e, sK, 6, 0x10000000); srd(e, sV, 8, 0x10000000)
    issue(0, False)
    e(f"s_add_u32 s{sJ}, s{sWave}, 2")
    addr_local(); issue(buf_of[1], False)
    e(f"v_mov_b32 v{vt}, 0"); e(f"v_mov_b32 v{vt+1}, 0"); e(f"v_mov_b32 v{vt+2}, {J3}"); e(f"v_mov_b32 v{vt+3}, 0")
    e(f"ds_write_b128 v{vZero}, {v4(vt)} offset:{L_EP}")
    e(f"v_lshlrev_b32 v{vt+4}, 2, v0")
    e(f"v_add_u32 v{vt+4}, {N*256}, v{vt+4}")
    e(f"v_mov_b32 v{vt+5}, {f32(-3.0e38)}")
    e(f"ds_write_b32 v{vt+4}, v{vt+5} offset:{L_S}")
    e("s_waitcnt lgkmcnt(0)")
    e("s_barrier")
    consts(); tk_addr()
    for p in range(2, DA):
        e(f"s_add_u32 s{sJ}, s{sWave}, {3*p - 1}")
        addr_local(); issue(buf_of[p], False, thrf, granf)
    e.label("L_waitq")
    e(f"ds_read_b64 v[{vt+2}:{vt+3}], v{vZero} offset:{L_EP}")
    e("s_waitcnt lgkmcnt(0)")
    e(f"v_or_b32 v{vt+2}, v{vt+2}, v{vt+3}")
    e(f"v_cmp_eq_u32 vcc, 0, v{vt+2}")
    e("s_cbranch_vccnz L_waitq")
    build_bq()
    stamp(2)
    k = 0
    jc = {p: 3*p for p in range(DA)}
    for gi, rd in enumerate(rounds):
        for p, rf in rd:
            k_static(buf_of[p], gi, jc[p], J2 + 3*k if rf else None)
            if rf: jc[p] = J2 + 3*k
            k += rf
    e(f"s_cmp_lg_u32 s{sWave}, 2")
    e("s_cbranch_scc1 L_stream")
    ffn_range()
    srd(e, sW2, 18, 0 if "2" in now else 1376*512*2)
    vE = vt+5
    e(f"v_lshrrev_b32 v{vE}, 3, v0")
    e(f"v_and_b32 v{vt+6}, 7, v0")
    e(f"v_lshlrev_b32 v{vt+6}, 4, v{vt+6}")
    e(f"v_lshl_add_u32 v{vt+7}, v{vE}, 10, v{vt+6}")
    e(f"s_lshl_b32 s{T}, s{sC0}, 13")
    e(f"s_lshl_b32 s{T+1}, s{sS}, 7")
    e(f"s_add_u32 s{T}, s{T}, s{T+1}")
    for t in range(6):
        if t == 5:
            e(f"s_cmp_eq_u32 s{sNC}, 6")
            e(f"s_cselect_b32 s{sW2+2}, s{sW2+2}, 0")
            e(f"s_cselect_b32 s{T}, s{T}, 0")
        e(f"buffer_load_dwordx4 {v4(vW2+t*4)}, v{vt+7}, s[{sW2}:{sW2+3}], s{T} offen nt")
        if t < 5: e(f"s_add_u32 s{T}, s{T}, 8192")
    e("s_branch L_stream")
    e.label("L_wave0")
    e.vm = []
    aU = 128
    sStr, sPub, sFlo = sW1, sW1+1, sW1+2
    e(f"s_and_b32 s{T}, s2, 7")
    e(f"s_lshr_b32 s{T+1}, s2, 3")
    e(f"s_lshl_b32 s{T+2}, s{T}, 2")
    e(f"s_add_u32 s{T+1}, s{T+1}, s{T+2}")
    e(f"s_and_b32 s{T+1}, s{T+1}, 31")
    e(f"s_lshl_b32 s{T+2}, s{T}, 4")
    e(f"s_add_u32 s{T+2}, s{T+2}, s{T+1}")
    e(f"s_mul_i32 s{T+3}, s{T}, 6")
    e(f"s_add_u32 s{T+3}, s{T+3}, s{T+1}")
    e(f"s_sub_u32 s{T+3}, s{T+3}, 16")
    e(f"s_mov_b32 s{sStr}, 2752")
    e(f"s_mov_b32 s{sWQ+2}, {0 if '1' in now else 512*1376*2}")
    e(f"s_cmp_lt_u32 s{T+1}, 22")
    e(f"s_cselect_b32 s{T+6}, s{T+3}, 99")
    e(f"s_cmp_lt_u32 s{T+1}, 16")
    e(f"s_cselect_b32 s{T+6}, 0, s{T+6}")
    e(f"s_cselect_b32 s{T+3}, s{T+2}, s{T+3}")
    e(f"s_cselect_b32 s{sStr}, 8192, s{sStr}")
    e(f"s_cselect_b32 s{sPub}, {QP}, {HP}")
    e(f"s_cselect_b32 s{sFlo}, 0xff800000, 0")
    e(f"s_cselect_b32 s{sWQ+2}, {0 if 'q' in now else 512*4096*2}, s{sWQ+2}")
    e(f"s_cselect_b32 s{T+7}, s{T+2}, 1")
    e(f"s_lshl_b32 s{T}, s{T+3}, 7")
    e(f"s_add_u32 s{sPub}, s{sPub}, s{T}")
    e(f"s_lshl_b32 s{T+3}, s{T+3}, 6")
    e(f"s_lshl_b32 s{T}, s{sStr}, 5")
    e(f"v_lshrrev_b32 v{vt}, 2, v0")
    e(f"v_mul_lo_u32 v{vt}, v{vt}, s{T}")
    e(f"v_and_b32 v{vt+1}, 3, v0")
    e(f"v_lshl_add_u32 v{vt}, v{vt+1}, 4, v{vt}")
    e(f"v_and_b32 v{vt+6}, 7, v0")
    e(f"v_lshlrev_b32 v{vt+6}, 4, v{vt+6}")
    e(f"v_lshl_add_u32 v{vWOo}, v{vb}, 15, v{vt+6}")
    e(f"v_bfe_u32 v{vt+7}, v0, 3, 1")
    e(f"v_lshl_add_u32 v{vWOo}, v{vt+7}, 11, v{vWOo}")
    e(f"s_cmp_lt_u32 s{T+1}, 16")
    e("s_waitcnt lgkmcnt(0)")
    e(f"s_cselect_b32 s{sWQ}, s10, s16")
    e(f"s_cselect_b32 s{sWQ+1}, s11, s17")
    e(f"s_mov_b32 s{sWQ+3}, 0x00020000")
    if ts:
        e(f"v_mov_b32 v{vTS}, s{sTA}")
        for i in range(1, 8): e(f"v_mov_b32 v{vTS+i}, 0")
    e(f"s_mov_b32 s{T+4}, s{sTA}"); e(f"s_mov_b32 s{T+5}, s{sTA+1}")
    def resolve_epoch(n):
        e("s_waitcnt lgkmcnt(0)")
        e(f"s_or_b32 s{T}, s{sTA}, s{sTA+1}")
        e(f"s_cmp_lg_u32 s{T}, 0")
        e(f"s_cbranch_scc1 L_haveep{n}")
        e(f"s_mov_b32 s{sTA}, s{T+4}"); e(f"s_mov_b32 s{sTA+1}, s{T+5}")
        e(f"s_mov_b32 s{sTA+2}, 0"); e(f"s_mov_b32 s{sTA+3}, 0")
        e(f"s_atomic_cmpswap_x2 s[{sTA}:{sTA+3}], s[22:23], 0x0 glc")
        e("s_waitcnt lgkmcnt(0)")
        e(f"s_or_b32 s{T}, s{sTA}, s{sTA+1}")
        e(f"s_cmp_eq_u32 s{T}, 0")
        e(f"s_cselect_b32 s{sTA}, s{T+4}, s{sTA}")
        e(f"s_cselect_b32 s{sTB}, s{T+5}, s{sTB}")
        e.label(f"L_haveep{n}")
    def wo_loads():
        srd(e, sWO, 12, 0 if "o" in now else 4096*512*2)
        e(f"s_lshl_b32 s{T}, s{sH}, 17")
        e(f"s_lshl_b32 s{T+1}, s{sS}, 7")
        e(f"s_add_u32 s{T}, s{T}, s{T+1}")
        for t8 in range(8):
            dT = 8*(t8 & 3) + 4*(t8 >> 2)
            e(f"s_add_u32 s{T+1}, s{T}, {dT*1024}")
            e(f"buffer_load_dwordx4 {v4(vW+t8*4)}, v{vWOo}, s[{sWO}:{sWO+3}], s{T+1} offen nt")
            e(f"buffer_load_dwordx4 {v4(vW+(t8+8)*4)}, v{vWOo}, s[{sWO}:{sWO+3}], s{T+1} offen offset:1024 nt")
    e(f"s_cmp_lt_u32 s{T+6}, 43")
    e("s_cbranch_scc1 L_task")
    wo_loads()
    e("s_barrier")
    srd(e, sK, 6, 0x10000000); srd(e, sV, 8, 0x10000000)
    consts(); tk_addr()
    e("s_waitcnt vmcnt(0)")
    e(f"s_load_dwordx2 s[{sTA}:{sTA+1}], s[22:23], 0x0")
    resolve_epoch(0)
    e("s_branch L_join")
    e.label("L_task")
    srd(e, sX, 4, 1024)
    e.mem(f"buffer_load_dwordx4 {v4(vX4)}, v{vVo}, s[{sX}:{sX+3}], 0 offen", "x4")
    for i in range(32):
        e.mem(f"buffer_load_dwordx4 {a4(aU+i*4)}, v{vt}, s[{sWQ}:{sWQ+3}], s{T+3} offen {upol}", f"u{i}")
        if i < 31: e(f"s_add_u32 s{T+3}, s{T+3}, s{sStr}")
        if i == 3:
            e(f"s_mov_b32 s{sTA+2}, 0"); e(f"s_mov_b32 s{sTA+3}, 0")
            e("s_cmp_ge_u32 s2, 8")
            e("s_cbranch_scc1 L_nocas0")
            e(f"s_atomic_cmpswap_x2 s[{sTA}:{sTA+3}], s[22:23], 0x0 glc")
            e.label("L_nocas0")
    e(f"s_and_b32 s{T}, s{T+7}, 3")
    e(f"s_cmp_lg_u32 s{T}, 0")
    e("s_cbranch_scc1 L_notk")
    e(f"s_lshl_b32 s{T}, s{T+7}, 6")
    e(f"s_add_u32 s{T}, s{T}, {TK}")
    e(f"s_add_u32 s{sTKa}, s24, s{T}")
    e(f"s_addc_u32 s{sTKa+1}, s25, 0")
    e(f"s_mov_b32 s{sTk}, 32")
    e(f"s_atomic_swap s{sTk}, s[{sTKa}:{sTKa+1}], 0x0 glc")
    e.label("L_notk")
    e("s_barrier")
    srd(e, sK, 6, 0x10000000); srd(e, sV, 8, 0x10000000)
    consts(); tk_addr()
    e.wait("x4")
    x = vt; a, b_ = vt+8, vt+9
    vPp = vG
    for i in range(4):
        e(f"v_lshlrev_b32 v{vPp+2*i}, 16, v{vX4+i}")
        e(f"v_and_b32 v{vPp+2*i+1}, 0xffff0000, v{vX4+i}")
    e(f"v_add_f32 v{a}, v{vPp}, v{vPp+1}")
    for i in range(2, 8): e(f"v_add_f32 v{a}, v{a}, v{vPp+i}")
    wave_sum(e, a, sRL)
    e(f"v_mul_f32 v{a}, {f32(1/512)}, v{a}")
    e(f"v_mov_b32 v{b_}, 0")
    for i in range(8):
        e(f"v_sub_f32 v{x+i}, v{vPp+i}, v{a}")
        e(f"v_fmac_f32 v{b_}, v{x+i}, v{x+i}")
    wave_sum(e, b_, sRL)
    e(f"v_mul_f32 v{b_}, {f32(1/512)}, v{b_}")
    round_bf16(e, a, a)
    round_bf16(e, b_, b_)
    e(f"v_add_f32 v{b_}, {f32(1e-5)}, v{b_}")
    round_bf16(e, b_, b_)
    e(f"v_sqrt_f32 v{b_}, v{b_}")
    e("s_nop 0")
    round_bf16(e, b_, b_)
    e(f"v_rcp_f32 v{b_}, v{b_}")
    for i in range(8): e(f"v_sub_f32 v{vPp+i}, v{vPp+i}, v{a}")
    for i in range(8): round_bf16(e, vPp+i, vPp+i)
    for i in range(8): e(f"v_mul_f32 v{vPp+i}, v{vPp+i}, v{b_}")
    for i in range(8): e(f"v_cvt_pk_bf16_f32 v{vPp+i}, v{vPp+i}, v{vPp+i}")
    e("s_waitcnt lgkmcnt(0)")
    e(f"s_load_dwordx2 s[{sTA}:{sTA+1}], s[22:23], 0x0")
    def coef(i):
        t, ee = i >> 3, i & 7
        d = vA + 2*(i & 1)
        e(f"v_and_b32_dpp v{d}, v{vPp+ee}, v{vM0} {dpp(f'quad_perm:[{t},{t},{t},{t}]')}")
        e(f"v_and_b32_dpp v{d+1}, v{vPp+ee}, v{vM1} {dpp(f'quad_perm:[{t},{t},{t},{t}]')}")
    coef(0)
    for i in range(32):
        if i + 1 < 32: coef(i+1)
        if i % 4 == 0: e.wait(f"u{i+3}")
        d = vA + 2*(i & 1)
        for hf, acc in ((0, vS), (1, vD2)):
            c = "0" if i == 0 else v4(acc)
            e(f"v_mfma_f32_16x16x16_bf16 {v4(acc)}, v[{d}:{d+1}], a[{aU+i*4+2*hf}:{aU+i*4+2*hf+1}], {c}")
    e(f"v_and_b32 v{x}, 3, v0")
    e(f"v_lshlrev_b32 v{x}, 5, v{x}")
    e(f"v_lshl_add_u32 v{x}, v{vb}, 7, v{x}")
    e(f"v_and_b32 v{x+1}, 7, v0")
    e(f"v_lshlrev_b32 v{x+1}, 4, v{x+1}")
    resolve_epoch(1)
    e("s_mov_b32 exec_lo, 0x00f0000f"); e("s_mov_b32 exec_hi, 0xf0000f00")
    e(f"ds_write_b128 v{x}, {v4(vS)} offset:{L_O}")
    e(f"ds_write_b128 v{x}, {v4(vD2)} offset:{L_O+16}")
    e("s_mov_b64 exec, -1")
    for p in range(4): e(f"ds_read_b128 {v4(vG+4*p)}, v{x+1} offset:{L_O+p*128}")
    e(f"v_mov_b32 v{vA+1}, s{sTA}"); e(f"v_mov_b32 v{vA+3}, s{sTB}")
    e("s_waitcnt lgkmcnt(0)")
    for r in range(4):
        e(f"v_add_f32 v{vG+r}, v{vG+r}, v{vG+4+r}")
        e(f"v_add_f32 v{vG+8+r}, v{vG+8+r}, v{vG+12+r}")
    for r in range(4): e(f"v_add_f32 v{vG+r}, v{vG+r}, v{vG+8+r}")
    for r in range(4): e(f"v_max_f32 v{vG+r}, s{sFlo}, v{vG+r}")
    e(f"v_cvt_pk_bf16_f32 v{vA}, v{vG}, v{vG+1}")
    e(f"v_cvt_pk_bf16_f32 v{vA+2}, v{vG+2}, v{vG+3}")
    e("s_mov_b64 exec, 0xff")
    e(f"buffer_store_dwordx4 {v4(vA)}, v{vVo}, s[{sWS}:{sWS+3}], s{sPub} offen sc1")
    e("s_mov_b64 exec, -1")
    stamp(1)
    wo_loads()
    e.label("L_join")
    e(f"s_lshl_b32 s{T}, s{sH}, 9")
    e("s_mov_b32 exec_hi, 0")
    poll("q", [f"buffer_load_dwordx4 {v4(vG)}, v{vVo}, s[{sWS}:{sWS+3}], s{T} offen sc1"], [vG])
    e(f"v_mov_b32 v{vG+1}, v{vG+2}")
    e(f"v_lshlrev_b32 v{vt+1}, 3, v0")
    e(f"ds_write_b64 v{vt+1}, v[{vG}:{vG+1}] offset:{L_QB}")
    e("s_mov_b32 exec_hi, -1")
    e(f"v_mov_b32 v{vt+2}, s{sTA}"); e(f"v_mov_b32 v{vt+3}, s{sTB}")
    e(f"ds_write_b64 v{vZero}, v[{vt+2}:{vt+3}] offset:{L_EP}")
    stamp(2)
    for b in range(4):
        e(f"s_mov_b32 s{sJ}, {J1 + b}")
        e(f"s_mov_b32 s{sB+b}, {(J1 + b) << 8}")
        addr_local(); issue(b, False, thr, gran)
    def proj(n, coef, data):
        for r in range(4): e(f"v_and_b32 v{vA+r}, v{coef}, v{vMk+r}")
        for t in range(n):
            A4, A4n = (vA, vA2) if (t & 1) == 0 else (vA2, vA)
            if t + 1 < n:
                for r in range(4): e(f"v_and_b32 v{A4n+r}, v{coef+t+1}, v{vMk+r}")
            else: e("s_nop 0")
            c = "0" if t == 0 else v4(vS)
            e(f"v_mfma_f32_16x16x32_bf16 {v4(vS)}, {v4(A4)}, {v4(data+t*4)}, {c}")
    def proj_publish(base):
        e(f"s_lshl_b32 s{T}, s{sS}, 14")
        e(f"s_lshl_b32 s{T+1}, s{sH}, 9")
        e(f"s_add_u32 s{T}, s{T}, s{T+1}")
        e(f"s_add_u32 s{T}, s{T}, {base}")
        e(f"v_and_b32 v{vt}, 0x1ff, v{vSt}")
        e(f"v_mov_b32 v{vD2+1}, s{sTA}"); e(f"v_mov_b32 v{vD2+3}, s{sTB}")
        e("s_nop 1")
        e(f"v_permlane32_swap_b32 v{vS}, v{vS+2}")
        e(f"v_permlane32_swap_b32 v{vS+1}, v{vS+3}")
        e("s_nop 1")
        e(f"v_add_f32_dpp v{vD2}, v{vS+2}, v{vS} {dpp('row_ror:8')}")
        e(f"v_add_f32_dpp v{vD2+2}, v{vS+3}, v{vS+1} {dpp('row_ror:8')}")
        e("s_mov_b32 exec_lo, 0x00ff00ff"); e("s_mov_b32 exec_hi, 0x00ff00ff")
        e(f"buffer_store_dwordx4 {v4(vD2)}, v{vt}, s[{sWS}:{sWS+3}], s{T} offen sc1")
        e("s_mov_b64 exec, -1")
    build_bq()
    e.label("L_stream")
    stamp(3)
    e(f"s_lshl_b32 s{sTk}, s{sS}, 2")
    e(f"s_add_u32 s{sTk}, s{sTk}, s{sWave}")
    req_local()
    e(f"s_mov_b32 s{sCnt}, 4")
    e.label("L_K0")
    for b in range(4):
        e("s_waitcnt vmcnt(8)")
        qk(b)
        e("s_waitcnt lgkmcnt(0)")
        e(f"v_readfirstlane_b32 s{sJ}, v{vJ}")
        e(f"v_add_u32 v{vAd}, s{sB+b}, v{vL4}")
        e(f"s_cmp_ge_u32 s{sJ}, {N}")
        e(f"s_cbranch_scc1 L_T1m{b}")
        req_local(); addr_local()
        e(f"s_lshl_b32 s{sB+b}, s{sJ}, 8")
        score_store()
        issue(b, False, thr, gran)
    e("s_branch L_K0")
    for b in range(4):
        e.label(f"L_T1s{b}")
        e(f"s_sub_u32 s{sCnt}, s{sCnt}, 1")
        e(f"s_cmp_eq_u32 s{sCnt}, 0")
        e(f"s_cbranch_scc1 L_sync{b}")
        e("s_waitcnt vmcnt(8)")
        qk(b)
        e("s_waitcnt lgkmcnt(0)")
        e(f"v_readfirstlane_b32 s{sJ}, v{vJ}")
        e(f"v_add_u32 v{vAd}, s{sB+b}, v{vL4}")
        e.label(f"L_T1m{b}")
        req_local()
        e(f"s_sub_u32 s{sJ}, s{sJ}, {N}")
        e(f"s_cmp_lt_u32 s{sJ}, {N}")
        e(f"s_cselect_b32 s{sV+2}, 0x10000000, 0")
        e(f"s_min_u32 s{sJ}, s{sJ}, {N}")
        addr_local()
        e(f"s_lshl_b32 s{sB+b}, s{sJ}, 8")
        score_store()
        e(f"s_cmp_lg_u32 s{sCnt}, 1")
        e(f"s_cbranch_scc1 L_T1n{b}")
        e("s_nop 0")
        wave_max(vP, vM)
        e(f"s_lshl_b32 s{T}, s{sWave}, 2")
        e(f"v_mov_b32 v{vT}, s{T}")
        e("s_mov_b64 exec, 1")
        e(f"ds_write_b32 v{vT}, v{vP} offset:{L_WM}")
        e(f"ds_add_u32 v{vZero}, v{vOne} offset:{L_DN}")
        e("s_mov_b64 exec, -1")
        e.label(f"L_T1n{b}")
        issue(b, True, thrv, gran)
    e("s_branch L_T1s0")
    for b in range(4):
        e.label(f"L_sync{b}")
        e(f"ds_read_b32 v{vT}, v{vZero} offset:{L_DN}")
        e(f"ds_read_b128 {v4(vA)}, v{vZero} offset:{L_WM}")
        e("s_waitcnt lgkmcnt(0)")
        e(f"v_cmp_ne_u32 vcc, 4, v{vT}")
        e(f"s_cbranch_vccnz L_sync{b}")
        e(f"v_max_f32 v{vM}, v{vA}, v{vA+1}")
        e(f"v_max3_f32 v{vM}, v{vA+2}, v{vA+3}, v{vM}")
        e(f"s_mov_b32 s{sV+2}, 0x10000000")
        if ts:
            e(f"s_cmp_eq_u32 s{sWave}, 0"); e(f"s_cbranch_scc1 L_V{b}")
            stamp(5)
        e(f"s_branch L_V{b}")
    for b in range(4):
        e.label(f"L_V{b}")
        e(f"v_add_u32 v{vAd}, s{sB+b}, v{vL4}")
        e(f"ds_read_b32 v{vT}, v{vAd} offset:{L_S}")
        e("s_waitcnt vmcnt(8) lgkmcnt(0)")
        e(f"v_readfirstlane_b32 s{sJ}, v{vJ}")
        prob(vT)
        e(f"s_sub_u32 s{sJ}, s{sJ}, {N}")
        e(f"s_cmp_ge_u32 s{sJ}, {N}")
        pv(b)
        e(f"s_cbranch_scc1 L_T2_{b}")
        req_local(); addr_local()
        e(f"s_lshl_b32 s{sB+b}, s{sJ}, 8")
        issue(b, True, thrv, gran)
    e("s_branch L_V0")
    for b in range(4):
        e.label(f"L_T2_{b}")
        rest = [(b+i) & 3 for i in (1, 2, 3)]
        for i, c in enumerate(rest):
            e(f"v_add_u32 v{vAd}, s{sB+c}, v{vL4}")
            e(f"ds_read_b32 v{vt+i}, v{vAd} offset:{L_S}")
        if ts:
            e(f"s_cmp_eq_u32 s{sWave}, 0"); e(f"s_cbranch_scc1 L_T2x{b}")
            stamp(1)
            e.label(f"L_T2x{b}")
        e("s_waitcnt lgkmcnt(0)")
        if b % 2 == 0:
            take_dyn(); issue(b, False, thrd, gran)
        for i, c in enumerate(rest):
            prob(vt+i)
            e("s_waitcnt vmcnt(8)")
            e("s_nop 0")
            pv(c)
            if c % 2 == 0: take_dyn()
            issue(c, c % 2 == 1, thrd, gran)
        if b % 2 == 1: issue(b, True, thrd, gran)
        first = b // 2 if b % 2 == 0 else ((b+1) & 3) // 2
        e(f"s_branch L_dyn{first}")
    for d in range(D): dyn_group(d)
    e("s_branch L_dyn0")
    e.label("L_done")
    if nost: e(f"s_mov_b32 s{sWS+2}, {WS_END}")
    stamp(4)
    e(f"s_lshl_b32 s{T+1}, s{sWave}, 9")
    e(f"v_lshl_add_u32 v{vT}, v{vb}, 2, v{vn}")
    e(f"v_lshl_add_u32 v{vT}, v{vT}, 5, s{T+1}")
    e(f"s_lshl_b32 s{T+1}, s{sWave}, 3")
    e(f"v_mov_b32 v{vP}, s{T+1}")
    e("s_nop 2")
    e(f"v_add_f32_dpp v{vM+1}, v{vLa}, v{vLa} {dpp('row_shl:4')}")
    for u in range(1, 4):
        for j in range(8): e(f"v_add_f32_dpp v{vO+j}, v{vO+8*u+j}, v{vO+j} {dpp(f'row_shl:{4*u}')}")
        if u > 1: e(f"v_add_f32_dpp v{vM+1}, v{vLa}, v{vM+1} {dpp(f'row_shl:{4*u}')}")
    e("s_mov_b32 exec_lo, 0x000f000f"); e("s_mov_b32 exec_hi, 0x000f000f")
    e(f"ds_write_b128 v{vT}, {v4(vO)} offset:{L_O}")
    e(f"ds_write_b128 v{vT}, {v4(vO+4)} offset:{L_O+16}")
    e("s_mov_b64 exec, 1")
    e(f"ds_write_b64 v{vP}, v[{vM}:{vM+1}] offset:{L_ML}")
    e("s_mov_b64 exec, -1")
    e("s_waitcnt lgkmcnt(0)")
    e("s_barrier")
    e(f"s_cmp_eq_u32 s{sWave}, 0")
    e("s_cbranch_scc1 L_tail0")
    e(f"s_cmp_eq_u32 s{sWave}, 2")
    e("s_cbranch_scc1 L_tail2")
    e(f"s_cmp_eq_u32 s{sWave}, 1")
    e("s_cbranch_scc0 L_exit")
    e(f"s_cmp_lt_u32 s{sH}, 4")
    e("s_cbranch_scc0 L_exit")
    e(f"ds_read_b64 v[{vA}:{vA+1}], v{vZero} offset:{L_EP}")
    srd(e, sOUT, 20, 1024)
    e(f"v_lshrrev_b32 v{vt}, 3, v0")
    e(f"v_and_b32 v{vt+1}, 7, v0")
    e(f"v_lshlrev_b32 v{vt+2}, 4, v{vt+1}")
    e(f"v_lshl_add_u32 v{vt}, v{vt}, 9, v{vt+2}")
    e(f"s_lshl_b32 s{T}, s{sS}, 14")
    e(f"s_lshl_b32 s{T+1}, s{sH}, 7")
    e(f"s_add_u32 s{T}, s{T}, s{T+1}")
    e(f"s_add_u32 s{T}, s{T}, {YP}")
    for j in range(1, 4): e(f"s_add_u32 s{T+j}, s{T}, {j*4096}")
    e(f"s_lshl_b32 s{T+4}, s{sS}, 7")
    e(f"s_lshl_b32 s{T+5}, s{sH}, 5")
    e(f"s_add_u32 s{T+4}, s{T+4}, s{T+5}")
    e(f"v_lshl_add_u32 v{vt+1}, v{vt+1}, 2, s{T+4}")
    e(f"buffer_load_dword v{vt+3}, v{vt+1}, s[{sX}:{sX+3}], 0 offen")
    e("s_waitcnt lgkmcnt(0)")
    e(f"v_readfirstlane_b32 s{sTA}, v{vA}")
    e(f"v_readfirstlane_b32 s{sTB}, v{vA+1}")
    e(f"v_add_u32 v{vt+2}, {ZP-YP}, v{vt}")
    poll("yz", [f"buffer_load_dwordx4 {v4(vG+4*j)}, v{vt+2}, s[{sWS}:{sWS+3}], s{T+j} offen sc1" for j in range(4)] +
               [f"buffer_load_dwordx4 {v4(vG+16+4*j)}, v{vt}, s[{sWS}:{sWS+3}], s{T+j} offen sc1" for j in range(4)],
         [vG+4*j for j in range(8)])
    for q in range(2):
        g = vG + 16*q
        for k in (0, 2):
            e(f"v_add_f32 v{g+k}, v{g+k}, v{g+4+k}")
            e(f"v_add_f32 v{g+8+k}, v{g+8+k}, v{g+12+k}")
    for q in range(2):
        g = vG + 16*q
        e(f"v_add_f32 v{vS+2*q}, v{g}, v{g+8}")
        e(f"v_add_f32 v{vS+2*q+1}, v{g+2}, v{g+10}")
    e("s_nop 0")
    for k in range(4): e(f"v_add_f32_dpp v{vS+k}, v{vS+k}, v{vS+k} {dpp('row_ror:8')}")
    for swap in ("v_permlane16_swap_b32", "v_permlane32_swap_b32"):
        for k in range(4): e(f"v_mov_b32 v{vG+k}, v{vS+k}")
        e("s_nop 0")
        for k in range(4): e(f"{swap} v{vS+k}, v{vG+k}")
        for k in range(4): e(f"v_add_f32 v{vS+k}, v{vS+k}, v{vG+k}")
    for k in range(4): e(f"v_cvt_pk_bf16_f32 v{vS+k}, v{vS+k}, v{vS+k}")
    for k in range(4): e(f"v_and_b32 v{vS+k}, 0xffff0000, v{vS+k}")
    for k in range(2): e(f"v_mul_f32 v{vA+k}, {f32(-1.4426950408889634)}, v{vS+k}")
    for k in range(2): e(f"v_exp_f32 v{vA+k}, v{vA+k}")
    e(f"v_lshlrev_b32 v{vA+2}, 16, v{vt+3}")
    for k in range(2): e(f"v_add_f32 v{vA+k}, 1.0, v{vA+k}")
    for k in range(2): e(f"v_rcp_f32 v{vA+k}, v{vA+k}")
    e(f"v_and_b32 v{vA+3}, 0xffff0000, v{vt+3}")
    for k in range(2): e(f"v_mul_f32 v{vA+k}, v{vS+k}, v{vA+k}")
    for k in range(2): e(f"v_cvt_pk_bf16_f32 v{vA+k}, v{vA+k}, v{vA+k}")
    for k in range(2): e(f"v_and_b32 v{vA+k}, 0xffff0000, v{vA+k}")
    for k in range(2): e(f"v_mul_f32 v{vS+k}, v{vS+2+k}, v{vA+k}")
    for k in range(2): e(f"v_cvt_pk_bf16_f32 v{vS+k}, v{vS+k}, v{vS+k}")
    for k in range(2): e(f"v_and_b32 v{vS+k}, 0xffff0000, v{vS+k}")
    for k in range(2): e(f"v_add_f32 v{vS+k}, v{vA+2+k}, v{vS+k}")
    e(f"v_cvt_pk_bf16_f32 v{vS}, v{vS}, v{vS+1}")
    e("s_mov_b64 exec, 0xff")
    e(f"buffer_store_dword v{vS}, v{vt+1}, s[{sOUT}:{sOUT+3}], 0 offen")
    e("s_mov_b64 exec, -1")
    e("s_branch L_exit")
    e.label("L_tail2")
    e(f"ds_read_b64 v[{vA}:{vA+1}], v{vZero} offset:{L_EP}")
    e(f"s_lshl_b32 s{T+2}, s{sC0}, 5")
    e(f"s_add_u32 s{T+2}, s{T+2}, {HP}")
    e(f"s_lshl_b32 s{T+3}, s{sNC}, 1")
    for r in range(4): e(f"v_mov_b32 v{vG+r}, 0")
    e("s_waitcnt lgkmcnt(0)")
    e(f"v_readfirstlane_b32 s{sTA}, v{vA}")
    e(f"v_readfirstlane_b32 s{sTB}, v{vA+1}")
    e(f"s_bfm_b64 exec, s{T+3}, 0")
    poll("h", [f"buffer_load_dwordx4 {v4(vG)}, v{vVo}, s[{sWS}:{sWS+3}], s{T+2} offen sc1"], [vG])
    e("s_mov_b64 exec, 0xffff")
    e(f"v_mov_b32 v{vG+1}, v{vG+2}")
    e(f"v_lshlrev_b32 v{vt+4}, 3, v0")
    e(f"ds_write_b64 v{vt+4}, v[{vG}:{vG+1}] offset:{L_HT}")
    e("s_mov_b64 exec, -1")
    e(f"v_lshrrev_b32 v{vt+5}, 3, v0")
    e(f"v_lshlrev_b32 v{vt+5}, 1, v{vt+5}")
    for t in range(6): e(f"ds_read_u16 v{vG+4+t}, v{vt+5} offset:{L_HT+16*t}")
    e("s_waitcnt lgkmcnt(0)")
    for t in range(6): e(f"v_lshl_or_b32 v{vG+4+t}, v{vG+4+t}, 16, v{vG+4+t}")
    proj(6, vG+4, vW2)
    proj_publish(ZP)
    e("s_branch L_exit")
    e.label("L_tail0")
    ml = vO; op = vO + 8
    e(f"ds_read_b128 {v4(ml)}, v{vZero} offset:{L_ML}")
    e(f"ds_read_b128 {v4(ml+4)}, v{vZero} offset:{L_ML+16}")
    e(f"v_lshlrev_b32 v{vP}, 3, v0")
    for p in range(4): e(f"ds_read_b64 v[{op+2*p}:{op+2*p+1}], v{vP} offset:{L_O+p*512}")
    e(f"v_mov_b32 v{vA+1}, s{sTA}"); e(f"v_mov_b32 v{vA+3}, s{sTB}")
    e(f"v_mov_b32 v{vA2+1}, s{sTA}"); e(f"v_mov_b32 v{vA2+3}, s{sTB}")
    e(f"s_lshl_b32 s{T}, s{sP}, 10"); e(f"s_add_u32 s{T}, s{T}, {OP}")
    e(f"s_lshl_b32 s{T+1}, s{sP}, 4"); e(f"s_add_u32 s{T+1}, s{T+1}, {MLP}")
    e("s_waitcnt lgkmcnt(4)")
    e(f"v_max_f32 v{vA2}, v{ml}, v{ml+2}")
    e(f"v_max3_f32 v{vA2}, v{ml+4}, v{ml+6}, v{vA2}")
    for p in range(4): e(f"v_sub_f32 v{ml+2*p}, v{ml+2*p}, v{vA2}")
    for p in range(4): e(f"v_exp_f32 v{ml+2*p}, v{ml+2*p}")
    e("s_waitcnt lgkmcnt(0)")
    e(f"v_mul_f32 v{vA}, v{ml}, v{op}")
    e(f"v_mul_f32 v{vA+2}, v{ml}, v{op+1}")
    for p in range(1, 4):
        e(f"v_fmac_f32 v{vA}, v{ml+2*p}, v{op+2*p}")
        e(f"v_fmac_f32 v{vA+2}, v{ml+2*p}, v{op+2*p+1}")
    e(f"buffer_store_dwordx4 {v4(vA)}, v{vVo}, s[{sWS}:{sWS+3}], s{T} offen sc1")
    e(f"v_mul_f32 v{vA2+2}, v{ml}, v{ml+1}")
    for p in range(1, 4): e(f"v_fmac_f32 v{vA2+2}, v{ml+2*p}, v{ml+2*p+1}")
    e("s_mov_b64 exec, 1")
    e(f"buffer_store_dwordx4 {v4(vA2)}, v{vZero}, s[{sWS}:{sWS+3}], s{T+1} offen sc1")
    e("s_mov_b64 exec, -1")
    stamp(5)
    e(f"s_lshl_b32 s{T}, s{sH}, 13"); e(f"s_add_u32 s{T}, s{T}, {OP}")
    e(f"s_add_u32 s{T+1}, s{T}, 4096")
    e(f"s_lshl_b32 s{T+2}, s{sH}, 7"); e(f"s_add_u32 s{T+2}, s{T+2}, {MLP}")
    e(f"v_and_b32 v{vt}, 7, v0")
    e(f"v_lshlrev_b32 v{vt}, 4, v{vt}")
    poll("o", [f"buffer_load_dwordx4 {v4(vG+4*j)}, v{vVo}, s[{sWS}:{sWS+3}], s{T + (j>>2)} offen offset:{(j&3)*1024} sc1" for j in range(8)] +
              [f"buffer_load_dwordx4 {v4(vG+32)}, v{vt}, s[{sWS}:{sWS+3}], s{T+2} offen sc1"],
         [vG+4*j for j in range(9)])
    stamp(6)
    mm, ll = vG+32, vG+34
    cs = ("quad_perm:[1,0,3,2]", "quad_perm:[2,3,0,1]", "row_half_mirror")
    e(f"v_max_f32_dpp v{vT}, v{mm}, v{mm} {dpp(cs[0])}")
    for c in cs[1:]:
        e("s_nop 1")
        e(f"v_max_f32_dpp v{vT}, v{vT}, v{vT} {dpp(c)}")
    e(f"v_sub_f32 v{vT}, v{mm}, v{vT}")
    e(f"v_exp_f32 v{vT}, v{vT}")
    e("s_nop 0")
    e(f"v_mul_f32 v{vP}, v{vT}, v{ll}")
    e(f"v_lshlrev_b32 v{vt+1}, 3, v0")
    for k in range(2): e(f"v_mul_f32_dpp v{vA+k}, v{vT}, v{vG+2*k} {dpp('row_newbcast:0')}")
    for j in range(1, 8):
        if j <= 3: e(f"v_add_f32_dpp v{vP}, v{vP}, v{vP} {dpp(cs[j-1])}")
        if j == 5: e(f"v_rcp_f32 v{vP}, v{vP}")
        for k in range(2):
            e(f"v_fmac_f32_dpp v{vA+k}, v{vT}, v{vG+4*j+2*k} {dpp(f'row_newbcast:{j}')}")
    for k in range(2): e(f"v_mul_f32 v{vA+k}, v{vA+k}, v{vP}")
    for k in range(2): e(f"v_cvt_pk_bf16_f32 v{vA+k}, v{vA+k}, v{vA+k}")
    e(f"ds_write_b64 v{vt+1}, v[{vA}:{vA+1}] offset:{L_OC}")
    e(f"v_lshrrev_b32 v{vP}, 3, v0")
    e(f"v_lshlrev_b32 v{vP}, 6, v{vP}")
    for q in range(4): e(f"ds_read_b128 {v4(vG+4*q)}, v{vP} offset:{L_OC+16*q}")
    e("s_waitcnt lgkmcnt(0)")
    proj(16, vG, vW)
    proj_publish(YP)
    e.label("L_exit")
    if ts:
        stamp(7)
        e("s_lshl_b32 s88, s2, 2"); e(f"s_add_u32 s88, s88, s{sWave}"); e("s_lshl_b32 s88, s88, 5")
        e("s_add_u32 s88, s88, 0x20000000")
        e("s_add_u32 s24, s24, s88"); e("s_addc_u32 s25, s25, 0")
        e("s_mov_b64 exec, 1")
        e(f"global_store_dwordx4 v{vZero}, {v4(vTS)}, s[24:25]")
        e(f"global_store_dwordx4 v{vZero}, {v4(vTS+4)}, s[24:25] offset:16")
    e.label("L_end")
    e("s_endpgm")
    for d in resc:
        e.label(f"L_resc{d}")
        e("s_nop 0")
        e(f"v_max_f32_dpp v{vP}, v{vT}, v{vT} {dpp('row_ror:4')}")
        e("s_nop 1")
        e(f"v_max_f32_dpp v{vP}, v{vP}, v{vP} {dpp('row_ror:8')}")
        e("s_nop 0")
        for i in range(4): e(f"v_readlane_b32 s{sRL+i}, v{vP}, {16*i}")
        e("s_nop 1")
        e(f"v_max_f32 v{vP}, s{sRL}, v{vM}")
        for i in range(1, 4): e(f"v_max_f32 v{vP}, s{sRL+i}, v{vP}")
        e(f"v_sub_f32 v{vA}, v{vM}, v{vP}")
        e(f"v_exp_f32 v{vA}, v{vA}")
        e(f"v_mov_b32 v{vM}, v{vP}")
        e(f"v_mul_f32 v{vLa}, v{vLa}, v{vA}")
        for i in range(0, 32, 2): e(f"v_pk_mul_f32 v[{vO+i}:{vO+i+1}], v[{vO+i}:{vO+i+1}], v[{vA}:{vA+1}] op_sel_hi:[1,0]")
        e(f"s_branch L_back{d}")

def desc(name, nv, ns, acc):
    return f""".amdhsa_kernel {name}
  .amdhsa_next_free_vgpr {nv}
  .amdhsa_next_free_sgpr {ns}
  .amdhsa_accum_offset {acc}
  .amdhsa_group_segment_fixed_size 0
  .amdhsa_kernarg_size 88
  .amdhsa_user_sgpr_count 2
  .amdhsa_user_sgpr_kernarg_segment_ptr 1
  .amdhsa_system_sgpr_workgroup_id_x 1
  .amdhsa_float_denorm_mode_32 3
.end_amdhsa_kernel
"""

def build(**kw):
    e = E()
    e.raw(HEADER.rstrip())
    lds = L_S + (4*kw.get("NS", 60) + 1)*256
    e.raw(f"; @launch grid=(256,1,1) block=(256,1,1) lds={lds}")
    e.raw('.amdgcn_target "amdgcn-amd-amdhsa--gfx950"')
    e.raw(".text")
    gen_main(e, **kw)
    e.raw('.section .rodata,"a"'); e.raw(".p2align 6")
    e.raw(desc(KNAME, 512, 102, 256))
    return e.text()

if __name__ == "__main__":
    out = sys.argv[1]
    kw = eval("dict(%s)" % (sys.argv[2] if len(sys.argv) > 2 else ""))
    open(out, "w").write(build(**kw))
```

```python
import sys, struct
KNAME = "recurrent_scan__gqa_block_cached__dense_activation_relu__decode_kernel"
HEADER = open("recurrent_scan__gqa_block_cached__dense_activation_relu__decode.s.ref").read().split("; Override launch")[0]

def f32(x): return "0x%08x" % struct.unpack("<I", struct.pack("<f", x))[0]

class E:
    def __init__(self): self.L = []; self.vm = []
    def __call__(self, s): self.L.append("  " + s)
    def label(self, s): self.L.append(s + ":")
    def raw(self, s): self.L.append(s)
    def c(self, s): self.L.append("  ; " + s)
    def mem(self, s, tag):
        self.L.append("  " + s); self.vm.append(tag)
    def wait(self, tag, gen=None):
        idxs = [i for i, t in enumerate(self.vm) if t == tag]
        idx = idxs[-1] if gen is None else idxs[4*gen+3]
        n = len(self.vm) - 1 - idx
        self(f"s_waitcnt vmcnt({min(59, n)})")
    def text(self): return "\n".join(self.L) + "\n"

QP, HP, OP, MLP, YP, ZP, TK, WS_END = 0x0, 0x40000, 0x60000, 0xA0000, 0xB0000, 0xD0000, 0xF0000, 0xF2000
L_QB, L_EP, L_CT, L_DN, L_WM, L_HT, L_O, L_ML, L_OC, L_S = 0x0, 0x100, 0x108, 0x10C, 0x110, 0x140, 0x400, 0xC00, 0xD00, 0x1000
OOB = 0x40000000
POLL_MAX = 400000

def dpp(ctrl): return f"{ctrl} row_mask:0xf bank_mask:0xf"

def wave_sum(e, v, sa):
    for c in ("quad_perm:[1,0,3,2]", "quad_perm:[2,3,0,1]", "row_half_mirror", "row_mirror"):
        e("s_nop 1")
        e(f"v_add_f32_dpp v{v}, v{v}, v{v} {dpp(c)}")
    e("s_nop 0")
    for i in range(4): e(f"v_readlane_b32 s{sa+i}, v{v}, {16*i}")
    e("s_nop 1")
    e(f"v_mov_b32 v{v}, s{sa}")
    for i in range(1, 4): e(f"v_add_f32 v{v}, s{sa+i}, v{v}")

def round_bf16(e, vd, vs):
    e(f"v_cvt_pk_bf16_f32 v{vd}, v{vs}, v{vs}")
    e(f"v_and_b32 v{vd}, 0xffff0000, v{vd}")

def srd(e, d, b, nbytes):
    e(f"s_mov_b32 s{d}, s{b}"); e(f"s_mov_b32 s{d+1}, s{b+1}")
    e(f"s_mov_b32 s{d+2}, {nbytes}"); e(f"s_mov_b32 s{d+3}, 0x00020000")

def gen_main(e, G=8, NS=60, DA=16, thrf=6, thr=(4,4,4,5), thrv=(4,4,5,5), thrd=12, ts=False, noex=False, now='', rotr=False, pg='r', gran=1, granf=1, nost=False, nocomp=False, BU=8, upol='nt', VF=16, thre=12, opol=''):
    D = 2; N = 4*NS
    if thrv is None: thrv = thr
    if thrd is None: thrd = thr
    m = 8 // G; lg = G.bit_length()-1; lm = m.bit_length()-1
    DYN = NS*32
    sK, sV, sWQ, sWO, sX, sW1, sW2, sWS, sOUT = 28, 32, 36, 40, 44, 48, 52, 56, 76
    sH, sS, sWave = 60, 61, 3
    sU, sCnt, sNC = 62, 64, 65
    sB = 36
    T = 66
    sHB, sP = 74, 75
    sTA, sTB = 80, 81
    sTk, sC0, sTKa = 84, 85, 86
    sEnd, sEnd2, sPos, sJ, sO = 88, 89, 90, 91, 92
    sRL = 96
    sTS = 100
    vZero, vKo, vVo, vM, vC, vT, vP, vM0, vM1, vSt = 1, 2, 3, 4, 6, 7, 8, 9, 10, 11
    vB = 12; vb, vn = 14, 15
    vS = 16; vMk = 20; vA = 24; vA2 = 28; vD2 = 32
    vBq = 36; vO = 52; vW = 84
    vW2 = 148; vG = 172
    vLa = 220
    vOnes = 224
    vJ, vOne, vWOo, vPP = 226, 227, 228, 229
    vL4, vAd = 230, 231
    vX4 = 232
    vHG = 232
    vt = 236
    vTS = 248
    def stamp(i):
        if ts:
            e(f"s_memrealtime s[{sTS}:{sTS+1}]")
            e("s_waitcnt lgkmcnt(0)")
            e(f"v_mov_b32 v{vTS+i}, s{sTS}")
    def bbase(b, i):
        if b < 16: return "a", b*16 + i*4
        return "v", vW + (b-16)*16 + i*4
    def buf(b, i): c, r = bbase(b, i); return f"{c}[{r}:{r+3}]"
    def bufh(b, i, half): c, r = bbase(b, i); r += 2*half; return f"{c}[{r}:{r+1}]"
    def v4(r): return f"v[{r}:{r+3}]"
    def a4(r): return f"a[{r}:{r+3}]"
    assert 4 <= DA <= 20
    rounds = []
    cur = list(range(DA))
    while True:
        if len(cur) <= 8:
            step = (len(cur)-1) / 3
            keep = [cur[round(i*step)] for i in range(4)]
        else: keep = cur[0::2]
        rounds.append([(p, p in keep) for p in cur])
        cur = keep
        if len(cur) == 4: break
    buf_of = {p: i for i, p in enumerate(cur)}
    nxt = 4
    for p in range(DA):
        if p not in buf_of: buf_of[p] = nxt; nxt += 1
    assert buf_of[0] == 0
    NREF = sum(r for rd in rounds for _, r in rd)
    J1 = 3*DA
    J2 = J1 + 4
    J3 = J2 + 3*NREF
    assert J3 <= N

    e.raw(f".globl {KNAME}"); e.raw(".p2align 8"); e.raw(f".type {KNAME},@function"); e.label(KNAME)
    e("s_cmp_ge_u32 s2, 256")
    e("s_cbranch_scc1 L_end")
    e("s_load_dwordx16 s[4:19], s[0:1], 0")
    e("s_load_dwordx4 s[20:23], s[0:1], 64")
    e("s_load_dwordx2 s[24:25], s[0:1], 80")
    e(f"s_memrealtime s[{sTA}:{sTA+1}]")
    e("v_lshrrev_b32 v1, 6, v0")
    e("v_and_b32 v0, 63, v0")
    e(f"s_and_b32 s{T}, s2, 7")
    e(f"v_readfirstlane_b32 s{sWave}, v1")
    e(f"s_lshr_b32 s{T+1}, s2, 3")
    e(f"s_lshr_b32 s{T+2}, s{T}, {lg}")
    e(f"s_and_b32 s{T+3}, s{T}, {G-1}")
    e(f"s_lshr_b32 s{sH}, s{T+1}, {lm}")
    e(f"s_and_b32 s{T+4}, s{T+1}, {m-1}")
    e(f"s_mul_i32 s{sH}, s{sH}, {8//G}")
    e(f"s_add_u32 s{sH}, s{sH}, s{T+2}")
    e(f"s_mul_i32 s{sS}, s{T+3}, {m}")
    e(f"s_add_u32 s{sS}, s{sS}, s{T+4}")
    e(f"s_lshl_b32 s{sHB}, s{sH}, 23")
    if G == 8: e(f"s_add_u32 s{sPos}, s{sS}, s{sH}")
    else: e(f"s_mov_b32 s{sPos}, s{sS}")
    e(f"s_and_b32 s{sPos}, s{sPos}, 7")
    sCw = 63
    e(f"s_lshr_b32 s{sCw}, s{sH}, 3")
    e(f"v_lshrrev_b32 v{vb}, 4, v0")
    e(f"v_and_b32 v{vn}, 15, v0")
    e(f"v_lshlrev_b32 v{vVo}, 4, v0")
    e(f"v_bfe_u32 v{vt}, v0, 2, 2")
    e(f"v_lshlrev_b32 v{vKo}, 8, v{vt}")
    e(f"v_lshl_add_u32 v{vKo}, v{vb}, 6, v{vKo}")
    e(f"v_and_b32 v{vt+1}, 3, v0")
    e(f"v_lshl_add_u32 v{vKo}, v{vt+1}, 4, v{vKo}")
    e(f"v_mov_b32 v{vZero}, 0")

    def addr_local():
        if BU == 8:
            assert pg == 'r' and not rotr and N % 8 == 0
            e(f"s_lshr_b32 s{sO+1}, s{sJ}, 3")
            e(f"s_lshl_b32 s{sO+1}, s{sO+1}, 3")
            e(f"s_add_u32 s{sO+1}, s{sO+1}, s{sPos}")
            e(f"s_lshl_b32 s{sO+1}, s{sO+1}, 1")
            e(f"s_lshl_b32 s{sO+2}, s{sCw}, 1")
            e(f"s_add_u32 s{sO+2}, s{sJ}, s{sO+2}")
            e(f"s_and_b32 s{sO+2}, s{sO+2}, 7")
            blk_addr(); return
        e(f"s_lshr_b32 s{sO+1}, s{sJ}, 2")
        if G == 8 and rotr:
            e(f"s_add_u32 s{sO+2}, s{sO+1}, s{sPos}")
            e(f"s_and_b32 s{sO+2}, s{sO+2}, 7")
            e(f"s_lshl_b32 s{sO+1}, s{sO+1}, 3")
            e(f"s_add_u32 s{sO+1}, s{sO+1}, s{sO+2}")
        else:
            e(f"s_lshl_b32 s{sO+1}, s{sO+1}, 3")
            e(f"s_add_u32 s{sO+1}, s{sO+1}, s{sPos}")
        if pg:
            e(f"s_add_u32 s{sO+2}, s{sJ}, s{sCw}")
            e(f"s_and_b32 s{sO+2}, s{sO+2}, 3")
        else:
            e(f"s_and_b32 s{sO+2}, s{sJ}, 3")
        blk_addr()
    def blk_addr():
        e(f"s_lshl_b32 s{sO+1}, s{sO+1}, 14")
        e(f"s_lshl_b32 s{sO+2}, s{sO+2}, {10 if pg == 'x' else 12}")
        e(f"s_add_u32 s{sO+1}, s{sO+1}, s{sO+2}")
        e(f"s_add_u32 s{sO}, s{sO+1}, s{sHB}")
        if pg == 'x':
            for i in range(1, 4): e(f"s_xor_b32 s{sO+i}, s{sO}, {i*5120}")
    def so(i): return f"s{sO+i} offen" if pg == 'x' else f"s{sO} offen offset:{i*1024}"
    def req_local():
        e("s_mov_b64 exec, 1")
        e(f"ds_add_rtn_u32 v{vJ}, v{vZero}, v{vOne} offset:{L_CT}")
        e("s_mov_b64 exec, -1")
    def issue(b, isV, th=None, gr=1):
        vo, sr = (vVo, sV) if isV else (vKo, sK)
        for i in range(4):
            if th is not None and i % gr == 0: e(f"s_waitcnt vmcnt({th[i] if isinstance(th, (list, tuple)) else th})")
            e.mem(f"buffer_load_dwordx4 {buf(b,i)}, v{vo}, s[{sr}:{sr+3}], {so(i)} nt", f"B{b}")

    def consts():
        t = vt+8
        e(f"v_and_b32 v{t}, 1, v0")
        e(f"v_lshlrev_b32 v{t}, 4, v{t}")
        e(f"v_mov_b32 v{t+1}, 0xffff")
        e(f"v_lshlrev_b32 v{t+1}, v{t}, v{t+1}")
        e(f"v_and_b32 v{t+2}, 2, v0")
        e(f"v_cmp_eq_u32 vcc, 0, v{t+2}")
        e(f"v_bfe_u32 v{t+2}, v0, 1, 2")
        e("s_nop 0")
        e(f"v_cndmask_b32 v{vM0}, 0, v{t+1}, vcc")
        e(f"v_cndmask_b32 v{vM1}, v{t+1}, 0, vcc")
        for r in range(4):
            e(f"v_cmp_eq_u32 vcc, {r}, v{t+2}")
            e("s_nop 1")
            e(f"v_cndmask_b32 v{vMk+r}, 0, v{t+1}, vcc")
        e(f"v_mov_b32 v{vC}, {f32((128**-0.5)*1.4426950408889634)}")
        e(f"v_mov_b32 v{vM}, {f32(-3.0e38)}")
        for i in range(4): e(f"v_mov_b32 v{vLa+i}, 0")
        e(f"v_mov_b32 v{vOnes}, 0x3f803f80"); e(f"v_mov_b32 v{vOnes+1}, 0x3f803f80")
        for i in range(32): e(f"v_mov_b32 v{vO+i}, 0")
        e(f"v_mov_b32 v{vOne}, 1")
        e(f"v_lshlrev_b32 v{vL4}, 2, v0")
        e(f"v_lshlrev_b32 v{vSt}, 6, v{vn}")
        e(f"v_and_b32 v{t}, 1, v{vb}")
        e(f"v_lshl_add_u32 v{vSt}, v{t}, 5, v{vSt}")
        e(f"v_lshrrev_b32 v{t}, 1, v{vb}")
        e(f"v_lshl_add_u32 v{vSt}, v{t}, 4, v{vSt}")
        srd(e, sWS, 24, 0 if nost else WS_END); srd(e, sX, 4, 1024)
        e(f"s_mov_b32 s{sEnd}, 0x7fffffff")
        e(f"s_lshl_b32 s{sP}, s{sH}, 3")
        e(f"s_add_u32 s{sP}, s{sP}, s{sS}")
    def ffn_range():
        e(f"s_min_u32 s{T}, s{sH}, 12")
        e(f"s_mul_i32 s{sC0}, s{sH}, 5")
        e(f"s_add_u32 s{sC0}, s{sC0}, s{T}")
        e(f"s_cmp_lt_u32 s{sH}, 12")
        e(f"s_cselect_b32 s{sNC}, 6, 5")
    def tk_addr():
        e(f"s_lshl_b32 s{T}, s{sH}, 8")
        e(f"s_add_u32 s{T}, s{T}, {TK}")
        e(f"s_add_u32 s{sTKa}, s24, s{T}")
        e(f"s_addc_u32 s{sTKa+1}, s25, 0")

    def tagcheck(regs, acc, tmp):
        for k, r in enumerate(regs):
            e(f"v_xor_b32 v{tmp}, s{sTA}, v{r+1}")
            e(f"v_xor_b32 v{tmp+1}, s{sTB}, v{r+3}")
            if k == 0: e(f"v_or_b32 v{acc}, v{tmp}, v{tmp+1}")
            else: e(f"v_or3_b32 v{acc}, v{tmp}, v{tmp+1}, v{acc}")
        e(f"v_cmp_ne_u32 vcc, 0, v{acc}")
    def poll(name, loads, regs):
        if noex and name in ("q", "h"):
            e("s_waitcnt vmcnt(0)"); return
        e(f"s_mov_b32 s{T+7}, {POLL_MAX}")
        e.label(f"L_poll_{name}")
        for l in loads: e(l)
        e(f"s_sub_u32 s{T+7}, s{T+7}, 1")
        e("s_waitcnt vmcnt(0)")
        tagcheck(regs, vt+10, vt+8)
        e(f"s_cbranch_vccz L_polld_{name}")
        e(f"s_cmp_lg_u32 s{T+7}, 0")
        e(f"s_cbranch_scc1 L_poll_{name}")
        e.label(f"L_polld_{name}")

    def build_bq():
        u0 = vt
        e(f"v_and_b32 v{u0}, 3, v0")
        e(f"v_lshl_add_u32 v{u0}, v{vb}, 2, v{u0}")
        e(f"v_lshlrev_b32 v{u0}, 4, v{u0}")
        e(f"ds_read_b128 {v4(vA)}, v{u0} offset:{L_QB}")
        e(f"v_bfe_u32 v{u0+1}, v0, 2, 2")
        e("s_waitcnt lgkmcnt(0)")
        for u in range(4):
            e(f"v_cmp_eq_u32 vcc, {u}, v{u0+1}")
            e("s_nop 1")
            for r in range(4): e(f"v_cndmask_b32 v{vBq+4*u+r}, 0, v{vA+r}, vcc")

    resc = []
    def qk(b):
        if nocomp: return
        for u in range(4):
            c = "0" if u == 0 else v4(vS)
            e(f"v_mfma_f32_16x16x32_bf16 {v4(vS)}, {buf(b,u)}, {v4(vBq+4*u)}, {c}")
    def score():
        e(f"v_mul_f32_dpp v{vT}, v{vS}, v{vC} {dpp('quad_perm:[0,0,0,0]')}")
        for r in range(1, 4):
            e(f"v_fmac_f32_dpp v{vT}, v{vS+r}, v{vC} {dpp(f'quad_perm:[{r},{r},{r},{r}]')}")
    def score_store():
        score()
        e(f"v_max_f32 v{vM}, v{vM}, v{vT}")
        e(f"ds_write_b32 v{vAd}, v{vT} offset:{L_S}")
    def prob(src):
        e(f"v_sub_f32 v{vP}, v{src}, v{vM}")
        e(f"v_exp_f32 v{vP}, v{vP}")
        e("s_nop 0")
        e(f"v_cvt_pk_bf16_f32 v{vP}, v{vP}, v{vP}")
        e(f"v_and_b32 v{vB}, v{vP}, v{vM0}")
        e(f"v_and_b32 v{vB+1}, v{vP}, v{vM1}")
    def pv(b):
        if nocomp: return
        e(f"v_mfma_f32_16x16x16_bf16 {v4(vLa)}, v[{vOnes}:{vOnes+1}], v[{vB}:{vB+1}], {v4(vLa)}")
        for u in range(4):
            for hf in range(2):
                o = vO + (u*2+hf)*4
                e(f"v_mfma_f32_16x16x16_bf16 {v4(o)}, {bufh(b,u,hf)}, v[{vB}:{vB+1}], {v4(o)}")
    def wave_max(dst, src):
        e(f"v_max_f32_dpp v{dst}, v{src}, v{src} {dpp('row_ror:4')}")
        e("s_nop 1")
        e(f"v_max_f32_dpp v{dst}, v{dst}, v{dst} {dpp('row_ror:8')}")
        e("s_nop 0")
        for i in range(4): e(f"v_readlane_b32 s{sRL+i}, v{dst}, {16*i}")
        e("s_nop 1")
        e(f"v_mov_b32 v{dst}, s{sRL}")
        for i in range(1, 4): e(f"v_max_f32 v{dst}, s{sRL+i}, v{dst}")
    uniq = [0]
    def take_dyn(endval=2):
        uniq[0] += 1
        e("s_waitcnt lgkmcnt(0)")
        e(f"s_cmp_lt_u32 s{sTk}, {2048-DYN}")
        e(f"s_cselect_b32 s{sK+2}, 0x10000000, 0")
        e(f"s_cselect_b32 s{sV+2}, 0x10000000, 0")
        e(f"s_cselect_b32 s{sEnd2}, s{sEnd}, {endval}")
        e(f"s_cselect_b32 s{sU}, s{sTk}, 0")
        e(f"s_cbranch_scc0 L_notk{uniq[0]}")
        e(f"s_mov_b32 s{sTk}, 1")
        e(f"s_atomic_add s{sTk}, s[{sTKa}:{sTKa+1}], 0x0 glc")
        e.label(f"L_notk{uniq[0]}")
        e(f"s_min_u32 s{sEnd}, s{sEnd}, s{sEnd2}")
        e(f"s_add_u32 s{sU}, s{sU}, {DYN}")
        e(f"s_lshr_b32 s{sO+1}, s{sU}, 2")
        e(f"s_and_b32 s{sO+2}, s{sU}, 3")
        blk_addr()
    def dyn_group(d):
        e.label(f"L_dyn{d}")
        e(f"s_sub_u32 s{sEnd}, s{sEnd}, 1")
        e(f"s_cmp_eq_u32 s{sEnd}, 0")
        e("s_cbranch_scc1 L_done")
        e("s_waitcnt vmcnt(12)")
        qk(2*d)
        take_dyn()
        issue(2*d, False, thrd, gran)
        score()
        e(f"v_cmp_gt_f32 vcc, v{vT}, v{vM}")
        e(f"s_cbranch_vccnz L_rescd{d}")
        e.label(f"L_backd{d}")
        resc.append(f"d{d}")
        prob(vT)
        e("s_waitcnt vmcnt(12)")
        e("s_nop 0")
        pv(2*d+1)
        issue(2*d+1, True, thrd, gran)
    def k_static(b, gen, jcur, jref):
        e.wait(f"B{b}", gen)
        qk(b)
        e(f"s_add_u32 s{T}, s{sWave}, {jcur-1}")
        e(f"s_lshl_b32 s{T}, s{T}, 8")
        e(f"v_add_u32 v{vAd}, s{T}, v{vL4}")
        if jref is not None:
            e(f"s_add_u32 s{sJ}, s{sWave}, {jref-1}")
            addr_local()
            if b < 4: e(f"s_lshl_b32 s{sB+b}, s{sJ}, 8")
        else: e("s_nop 4")
        score_store()
        if jref is not None: issue(b, False, thr, gran)

    e(f"s_cmp_eq_u32 s{sWave}, 0")
    e("s_cbranch_scc1 L_wave0")
    e(f"s_add_u32 s{sJ}, s{sWave}, -1")
    addr_local()
    e("s_waitcnt lgkmcnt(0)")
    if ts:
        e(f"v_mov_b32 v{vTS}, s{sTA}")
        for i in range(1, 8): e(f"v_mov_b32 v{vTS+i}, 0")
    srd(e, sK, 6, 0x10000000); srd(e, sV, 8, 0x10000000)
    issue(0, False)
    e(f"s_add_u32 s{sJ}, s{sWave}, 2")
    addr_local(); issue(buf_of[1], False)
    e(f"v_mov_b32 v{vt}, 0"); e(f"v_mov_b32 v{vt+1}, 0"); e(f"v_mov_b32 v{vt+2}, {J3}"); e(f"v_mov_b32 v{vt+3}, 0")
    e(f"ds_write_b128 v{vZero}, {v4(vt)} offset:{L_EP}")
    e(f"v_lshlrev_b32 v{vt+4}, 2, v0")
    e(f"v_add_u32 v{vt+4}, {N*256}, v{vt+4}")
    e(f"v_mov_b32 v{vt+5}, {f32(-3.0e38)}")
    e(f"ds_write_b32 v{vt+4}, v{vt+5} offset:{L_S}")
    e("s_waitcnt lgkmcnt(0)")
    e("s_barrier")
    consts(); tk_addr()
    for p in range(2, DA):
        e(f"s_add_u32 s{sJ}, s{sWave}, {3*p - 1}")
        addr_local(); issue(buf_of[p], False, thrf, granf)
    e.label("L_waitq")
    e(f"ds_read_b64 v[{vt+2}:{vt+3}], v{vZero} offset:{L_EP}")
    e("s_waitcnt lgkmcnt(0)")
    e(f"v_or_b32 v{vt+2}, v{vt+2}, v{vt+3}")
    e(f"v_cmp_eq_u32 vcc, 0, v{vt+2}")
    e("s_cbranch_vccnz L_waitq")
    build_bq()
    stamp(2)
    k = 0
    jc = {p: 3*p for p in range(DA)}
    for gi, rd in enumerate(rounds):
        for p, rf in rd:
            k_static(buf_of[p], gi, jc[p], J2 + 3*k if rf else None)
            if rf: jc[p] = J2 + 3*k
            k += rf
    e(f"s_cmp_lg_u32 s{sWave}, 2")
    e("s_cbranch_scc1 L_stream")
    ffn_range()
    srd(e, sW2, 18, 0 if "2" in now else 1376*512*2)
    vE = vt+5
    e(f"v_lshrrev_b32 v{vE}, 3, v0")
    e(f"v_and_b32 v{vt+6}, 7, v0")
    e(f"v_lshlrev_b32 v{vt+6}, 4, v{vt+6}")
    e(f"v_lshl_add_u32 v{vt+7}, v{vE}, 10, v{vt+6}")
    e(f"s_lshl_b32 s{T}, s{sC0}, 13")
    e(f"s_lshl_b32 s{T+1}, s{sS}, 7")
    e(f"s_add_u32 s{T}, s{T}, s{T+1}")
    for t in range(6):
        if t == 5:
            e(f"s_cmp_eq_u32 s{sNC}, 6")
            e(f"s_cselect_b32 s{sW2+2}, s{sW2+2}, 0")
            e(f"s_cselect_b32 s{T}, s{T}, 0")
        e(f"buffer_load_dwordx4 {v4(vW2+t*4)}, v{vt+7}, s[{sW2}:{sW2+3}], s{T} offen nt")
        if t < 5: e(f"s_add_u32 s{T}, s{T}, 8192")
    e("s_branch L_stream")
    e.label("L_wave0")
    e.vm = []
    aU = 128
    sStr, sPub, sFlo = sW1, sW1+1, sW1+2
    e(f"s_and_b32 s{T}, s2, 7")
    e(f"s_lshr_b32 s{T+1}, s2, 3")
    e(f"s_lshl_b32 s{T+2}, s{T}, 2")
    e(f"s_add_u32 s{T+1}, s{T+1}, s{T+2}")
    e(f"s_and_b32 s{T+1}, s{T+1}, 31")
    e(f"s_lshl_b32 s{T+2}, s{T}, 4")
    e(f"s_add_u32 s{T+2}, s{T+2}, s{T+1}")
    e(f"s_mul_i32 s{T+3}, s{T}, 6")
    e(f"s_add_u32 s{T+3}, s{T+3}, s{T+1}")
    e(f"s_sub_u32 s{T+3}, s{T+3}, 16")
    e(f"s_mov_b32 s{sStr}, 2752")
    e(f"s_mov_b32 s{sWQ+2}, {0 if '1' in now else 512*1376*2}")
    e(f"s_cmp_lt_u32 s{T+1}, 22")
    e(f"s_cselect_b32 s{T+6}, s{T+3}, 99")
    e(f"s_cmp_lt_u32 s{T+1}, 16")
    e(f"s_cselect_b32 s{T+6}, 0, s{T+6}")
    e(f"s_cselect_b32 s{T+3}, s{T+2}, s{T+3}")
    e(f"s_cselect_b32 s{sStr}, 8192, s{sStr}")
    e(f"s_cselect_b32 s{sPub}, {QP}, {HP}")
    e(f"s_cselect_b32 s{sFlo}, 0xff800000, 0")
    e(f"s_cselect_b32 s{sWQ+2}, {0 if 'q' in now else 512*4096*2}, s{sWQ+2}")
    e(f"s_cselect_b32 s{T+7}, s{T+2}, 1")
    e(f"s_lshl_b32 s{T}, s{T+3}, 7")
    e(f"s_add_u32 s{sPub}, s{sPub}, s{T}")
    e(f"s_lshl_b32 s{T+3}, s{T+3}, 6")
    e(f"s_lshl_b32 s{T}, s{sStr}, 5")
    e(f"v_lshrrev_b32 v{vt}, 2, v0")
    e(f"v_mul_lo_u32 v{vt}, v{vt}, s{T}")
    e(f"v_and_b32 v{vt+1}, 3, v0")
    e(f"v_lshl_add_u32 v{vt}, v{vt+1}, 4, v{vt}")
    e(f"v_and_b32 v{vt+6}, 7, v0")
    e(f"v_lshlrev_b32 v{vt+6}, 4, v{vt+6}")
    e(f"v_lshl_add_u32 v{vWOo}, v{vb}, 15, v{vt+6}")
    e(f"v_bfe_u32 v{vt+7}, v0, 3, 1")
    e(f"v_lshl_add_u32 v{vWOo}, v{vt+7}, 11, v{vWOo}")
    e(f"s_cmp_lt_u32 s{T+1}, 16")
    e("s_waitcnt lgkmcnt(0)")
    e(f"s_cselect_b32 s{sWQ}, s10, s16")
    e(f"s_cselect_b32 s{sWQ+1}, s11, s17")
    e(f"s_mov_b32 s{sWQ+3}, 0x00020000")
    if ts:
        e(f"v_mov_b32 v{vTS}, s{sTA}")
        for i in range(1, 8): e(f"v_mov_b32 v{vTS+i}, 0")
    e(f"s_mov_b32 s{T+4}, s{sTA}"); e(f"s_mov_b32 s{T+5}, s{sTA+1}")
    def resolve_epoch(n):
        e("s_waitcnt lgkmcnt(0)")
        e(f"s_or_b32 s{T}, s{sTA}, s{sTA+1}")
        e(f"s_cmp_lg_u32 s{T}, 0")
        e(f"s_cbranch_scc1 L_haveep{n}")
        e(f"s_mov_b32 s{sTA}, s{T+4}"); e(f"s_mov_b32 s{sTA+1}, s{T+5}")
        e(f"s_mov_b32 s{sTA+2}, 0"); e(f"s_mov_b32 s{sTA+3}, 0")
        e(f"s_atomic_cmpswap_x2 s[{sTA}:{sTA+3}], s[22:23], 0x0 glc")
        e("s_waitcnt lgkmcnt(0)")
        e(f"s_or_b32 s{T}, s{sTA}, s{sTA+1}")
        e(f"s_cmp_eq_u32 s{T}, 0")
        e(f"s_cselect_b32 s{sTA}, s{T+4}, s{sTA}")
        e(f"s_cselect_b32 s{sTB}, s{T+5}, s{sTB}")
        e.label(f"L_haveep{n}")
    def wo_loads():
        srd(e, sWO, 12, 0 if "o" in now else 4096*512*2)
        e(f"s_lshl_b32 s{T}, s{sH}, 17")
        e(f"s_lshl_b32 s{T+1}, s{sS}, 7")
        e(f"s_add_u32 s{T}, s{T}, s{T+1}")
        for t8 in range(8):
            dT = 8*(t8 & 3) + 4*(t8 >> 2)
            e(f"s_add_u32 s{T+1}, s{T}, {dT*1024}")
            e(f"buffer_load_dwordx4 {v4(vW+t8*4)}, v{vWOo}, s[{sWO}:{sWO+3}], s{T+1} offen nt")
            e(f"buffer_load_dwordx4 {v4(vW+(t8+8)*4)}, v{vWOo}, s[{sWO}:{sWO+3}], s{T+1} offen offset:1024 nt")
    e(f"s_cmp_lt_u32 s{T+6}, 43")
    e("s_cbranch_scc1 L_task")
    wo_loads()
    e("s_barrier")
    srd(e, sK, 6, 0x10000000); srd(e, sV, 8, 0x10000000)
    consts(); tk_addr()
    e("s_waitcnt vmcnt(0)")
    e(f"s_load_dwordx2 s[{sTA}:{sTA+1}], s[22:23], 0x0")
    resolve_epoch(0)
    e("s_branch L_join")
    e.label("L_task")
    srd(e, sX, 4, 1024)
    e.mem(f"buffer_load_dwordx4 {v4(vX4)}, v{vVo}, s[{sX}:{sX+3}], 0 offen", "x4")
    for i in range(32):
        e.mem(f"buffer_load_dwordx4 {a4(aU+i*4)}, v{vt}, s[{sWQ}:{sWQ+3}], s{T+3} offen {upol}", f"u{i}")
        if i < 31: e(f"s_add_u32 s{T+3}, s{T+3}, s{sStr}")
        if i == 3:
            e(f"s_mov_b32 s{sTA+2}, 0"); e(f"s_mov_b32 s{sTA+3}, 0")
            e("s_cmp_ge_u32 s2, 8")
            e("s_cbranch_scc1 L_nocas0")
            e(f"s_atomic_cmpswap_x2 s[{sTA}:{sTA+3}], s[22:23], 0x0 glc")
            e.label("L_nocas0")
    e(f"s_and_b32 s{T}, s{T+7}, 3")
    e(f"s_cmp_lg_u32 s{T}, 0")
    e("s_cbranch_scc1 L_notk")
    e(f"s_lshl_b32 s{T}, s{T+7}, 6")
    e(f"s_add_u32 s{T}, s{T}, {TK}")
    e(f"s_add_u32 s{sTKa}, s24, s{T}")
    e(f"s_addc_u32 s{sTKa+1}, s25, 0")
    e(f"s_mov_b32 s{sTk}, {0 if VF else 32}")
    e(f"s_atomic_swap s{sTk}, s[{sTKa}:{sTKa+1}], 0x0 glc")
    e.label("L_notk")
    e("s_barrier")
    srd(e, sK, 6, 0x10000000); srd(e, sV, 8, 0x10000000)
    consts(); tk_addr()
    e.wait("x4")
    x = vt; a, b_ = vt+8, vt+9
    vPp = vG
    for i in range(4):
        e(f"v_lshlrev_b32 v{vPp+2*i}, 16, v{vX4+i}")
        e(f"v_and_b32 v{vPp+2*i+1}, 0xffff0000, v{vX4+i}")
    e(f"v_add_f32 v{a}, v{vPp}, v{vPp+1}")
    for i in range(2, 8): e(f"v_add_f32 v{a}, v{a}, v{vPp+i}")
    wave_sum(e, a, sRL)
    e(f"v_mul_f32 v{a}, {f32(1/512)}, v{a}")
    e(f"v_mov_b32 v{b_}, 0")
    for i in range(8):
        e(f"v_sub_f32 v{x+i}, v{vPp+i}, v{a}")
        e(f"v_fmac_f32 v{b_}, v{x+i}, v{x+i}")
    wave_sum(e, b_, sRL)
    e(f"v_mul_f32 v{b_}, {f32(1/512)}, v{b_}")
    round_bf16(e, a, a)
    round_bf16(e, b_, b_)
    e(f"v_add_f32 v{b_}, {f32(1e-5)}, v{b_}")
    round_bf16(e, b_, b_)
    e(f"v_sqrt_f32 v{b_}, v{b_}")
    e("s_nop 0")
    round_bf16(e, b_, b_)
    e(f"v_rcp_f32 v{b_}, v{b_}")
    for i in range(8): e(f"v_sub_f32 v{vPp+i}, v{vPp+i}, v{a}")
    for i in range(8): round_bf16(e, vPp+i, vPp+i)
    for i in range(8): e(f"v_mul_f32 v{vPp+i}, v{vPp+i}, v{b_}")
    for i in range(8): e(f"v_cvt_pk_bf16_f32 v{vPp+i}, v{vPp+i}, v{vPp+i}")
    e("s_waitcnt lgkmcnt(0)")
    e(f"s_load_dwordx2 s[{sTA}:{sTA+1}], s[22:23], 0x0")
    def coef(i):
        t, ee = i >> 3, i & 7
        d = vA + 2*(i & 1)
        e(f"v_and_b32_dpp v{d}, v{vPp+ee}, v{vM0} {dpp(f'quad_perm:[{t},{t},{t},{t}]')}")
        e(f"v_and_b32_dpp v{d+1}, v{vPp+ee}, v{vM1} {dpp(f'quad_perm:[{t},{t},{t},{t}]')}")
    coef(0)
    for i in range(32):
        if i + 1 < 32: coef(i+1)
        if i % 4 == 0: e.wait(f"u{i+3}")
        d = vA + 2*(i & 1)
        for hf, acc in ((0, vS), (1, vD2)):
            c = "0" if i == 0 else v4(acc)
            e(f"v_mfma_f32_16x16x16_bf16 {v4(acc)}, v[{d}:{d+1}], a[{aU+i*4+2*hf}:{aU+i*4+2*hf+1}], {c}")
    e(f"v_and_b32 v{x}, 3, v0")
    e(f"v_lshlrev_b32 v{x}, 5, v{x}")
    e(f"v_lshl_add_u32 v{x}, v{vb}, 7, v{x}")
    e(f"v_and_b32 v{x+1}, 7, v0")
    e(f"v_lshlrev_b32 v{x+1}, 4, v{x+1}")
    resolve_epoch(1)
    e("s_mov_b32 exec_lo, 0x00f0000f"); e("s_mov_b32 exec_hi, 0xf0000f00")
    e(f"ds_write_b128 v{x}, {v4(vS)} offset:{L_O}")
    e(f"ds_write_b128 v{x}, {v4(vD2)} offset:{L_O+16}")
    e("s_mov_b64 exec, -1")
    for p in range(4): e(f"ds_read_b128 {v4(vG+4*p)}, v{x+1} offset:{L_O+p*128}")
    e(f"v_mov_b32 v{vA+1}, s{sTA}"); e(f"v_mov_b32 v{vA+3}, s{sTB}")
    e("s_waitcnt lgkmcnt(0)")
    for r in range(4):
        e(f"v_add_f32 v{vG+r}, v{vG+r}, v{vG+4+r}")
        e(f"v_add_f32 v{vG+8+r}, v{vG+8+r}, v{vG+12+r}")
    for r in range(4): e(f"v_add_f32 v{vG+r}, v{vG+r}, v{vG+8+r}")
    for r in range(4): e(f"v_max_f32 v{vG+r}, s{sFlo}, v{vG+r}")
    e(f"v_cvt_pk_bf16_f32 v{vA}, v{vG}, v{vG+1}")
    e(f"v_cvt_pk_bf16_f32 v{vA+2}, v{vG+2}, v{vG+3}")
    e("s_mov_b64 exec, 0xff")
    e(f"buffer_store_dwordx4 {v4(vA)}, v{vVo}, s[{sWS}:{sWS+3}], s{sPub} offen sc1")
    e("s_mov_b64 exec, -1")
    stamp(1)
    wo_loads()
    e.label("L_join")
    e(f"s_lshl_b32 s{T}, s{sH}, 9")
    e("s_mov_b32 exec_hi, 0")
    poll("q", [f"buffer_load_dwordx4 {v4(vG)}, v{vVo}, s[{sWS}:{sWS+3}], s{T} offen sc1"], [vG])
    e(f"v_mov_b32 v{vG+1}, v{vG+2}")
    e(f"v_lshlrev_b32 v{vt+1}, 3, v0")
    e(f"ds_write_b64 v{vt+1}, v[{vG}:{vG+1}] offset:{L_QB}")
    e("s_mov_b32 exec_hi, -1")
    e(f"v_mov_b32 v{vt+2}, s{sTA}"); e(f"v_mov_b32 v{vt+3}, s{sTB}")
    e(f"ds_write_b64 v{vZero}, v[{vt+2}:{vt+3}] offset:{L_EP}")
    stamp(2)
    for b in range(4):
        e(f"s_mov_b32 s{sJ}, {J1 + b}")
        e(f"s_mov_b32 s{sB+b}, {(J1 + b) << 8}")
        addr_local(); issue(b, False, thr, gran)
    def proj(n, coef, data):
        for r in range(4): e(f"v_and_b32 v{vA+r}, v{coef}, v{vMk+r}")
        for t in range(n):
            A4, A4n = (vA, vA2) if (t & 1) == 0 else (vA2, vA)
            if t + 1 < n:
                for r in range(4): e(f"v_and_b32 v{A4n+r}, v{coef+t+1}, v{vMk+r}")
            else: e("s_nop 0")
            c = "0" if t == 0 else v4(vS)
            e(f"v_mfma_f32_16x16x32_bf16 {v4(vS)}, {v4(A4)}, {v4(data+t*4)}, {c}")
    def proj_publish(base):
        e(f"s_lshl_b32 s{T}, s{sS}, 14")
        e(f"s_lshl_b32 s{T+1}, s{sH}, 9")
        e(f"s_add_u32 s{T}, s{T}, s{T+1}")
        e(f"s_add_u32 s{T}, s{T}, {base}")
        e(f"v_and_b32 v{vt}, 0x1ff, v{vSt}")
        e(f"v_mov_b32 v{vD2+1}, s{sTA}"); e(f"v_mov_b32 v{vD2+3}, s{sTB}")
        e("s_nop 1")
        e(f"v_permlane32_swap_b32 v{vS}, v{vS+2}")
        e(f"v_permlane32_swap_b32 v{vS+1}, v{vS+3}")
        e("s_nop 1")
        e(f"v_add_f32_dpp v{vD2}, v{vS+2}, v{vS} {dpp('row_ror:8')}")
        e(f"v_add_f32_dpp v{vD2+2}, v{vS+3}, v{vS+1} {dpp('row_ror:8')}")
        e("s_mov_b32 exec_lo, 0x00ff00ff"); e("s_mov_b32 exec_hi, 0x00ff00ff")
        e(f"buffer_store_dwordx4 {v4(vD2)}, v{vt}, s[{sWS}:{sWS+3}], s{T} offen sc1")
        e("s_mov_b64 exec, -1")
    build_bq()
    e.label("L_stream")
    stamp(3)
    e(f"s_lshl_b32 s{sTk}, s{sS}, 2")
    e(f"s_add_u32 s{sTk}, s{sTk}, s{sWave}")
    req_local()
    e(f"s_mov_b32 s{sCnt}, 4")
    e.label("L_K0")
    for b in range(4):
        e("s_waitcnt vmcnt(8)")
        qk(b)
        e("s_waitcnt lgkmcnt(0)")
        e(f"v_readfirstlane_b32 s{sJ}, v{vJ}")
        e(f"v_add_u32 v{vAd}, s{sB+b}, v{vL4}")
        e(f"s_cmp_ge_u32 s{sJ}, {N}")
        e(f"s_cbranch_scc1 L_T1m{b}")
        req_local(); addr_local()
        e(f"s_lshl_b32 s{sB+b}, s{sJ}, 8")
        score_store()
        issue(b, False, thr, gran)
    e("s_branch L_K0")
    for b in range(4):
        e.label(f"L_T1s{b}")
        e(f"s_sub_u32 s{sCnt}, s{sCnt}, 1")
        e(f"s_cmp_eq_u32 s{sCnt}, 0")
        e(f"s_cbranch_scc1 L_sync{b}")
        e("s_waitcnt vmcnt(8)")
        qk(b)
        e("s_waitcnt lgkmcnt(0)")
        e(f"v_readfirstlane_b32 s{sJ}, v{vJ}")
        e(f"v_add_u32 v{vAd}, s{sB+b}, v{vL4}")
        e.label(f"L_T1m{b}")
        req_local()
        e(f"s_sub_u32 s{sJ}, s{sJ}, {N}")
        e(f"s_cmp_lt_u32 s{sJ}, {N}")
        e(f"s_cselect_b32 s{sV+2}, 0x10000000, 0")
        e(f"s_min_u32 s{sJ}, s{sJ}, {N}")
        addr_local()
        e(f"s_lshl_b32 s{sB+b}, s{sJ}, 8")
        score_store()
        e(f"s_cmp_lg_u32 s{sCnt}, 1")
        e(f"s_cbranch_scc1 L_T1n{b}")
        e("s_nop 0")
        wave_max(vP, vM)
        e(f"s_lshl_b32 s{T}, s{sWave}, 2")
        e(f"v_mov_b32 v{vT}, s{T}")
        e("s_mov_b64 exec, 1")
        e(f"ds_write_b32 v{vT}, v{vP} offset:{L_WM}")
        e(f"ds_add_u32 v{vZero}, v{vOne} offset:{L_DN}")
        e("s_mov_b64 exec, -1")
        e.label(f"L_T1n{b}")
        issue(b, True, thrv, gran)
    e("s_branch L_T1s0")
    for b in range(4):
        e.label(f"L_sync{b}")
        e(f"ds_read_b32 v{vT}, v{vZero} offset:{L_DN}")
        e(f"ds_read_b128 {v4(vA)}, v{vZero} offset:{L_WM}")
        e("s_waitcnt lgkmcnt(0)")
        e(f"v_cmp_ne_u32 vcc, 4, v{vT}")
        e(f"s_cbranch_vccnz L_sync{b}")
        e(f"v_max_f32 v{vM}, v{vA}, v{vA+1}")
        e(f"v_max3_f32 v{vM}, v{vA+2}, v{vA+3}, v{vM}")
        e(f"s_mov_b32 s{sV+2}, 0x10000000")
        if ts:
            e(f"s_cmp_eq_u32 s{sWave}, 0"); e(f"s_cbranch_scc1 L_V{b}")
            stamp(5)
        e(f"s_branch L_V{b}")
    def vloop(tag, lim, target, th):
        for b in range(4):
            e.label(f"L_{tag}{b}")
            e(f"v_add_u32 v{vAd}, s{sB+b}, v{vL4}")
            e(f"ds_read_b32 v{vT}, v{vAd} offset:{L_S}")
            e("s_waitcnt vmcnt(12) lgkmcnt(0)")
            e(f"v_readfirstlane_b32 s{sJ}, v{vJ}")
            prob(vT)
            e("s_nop 0")
            e(f"s_sub_u32 s{sJ}, s{sJ}, {N}")
            pv(b)
            e.label(f"L_{tag}m{b}")
            e(f"s_cmp_ge_u32 s{sJ}, {lim}")
            e(f"s_cbranch_scc1 L_{target}{b}")
            req_local(); addr_local()
            e(f"s_lshl_b32 s{sB+b}, s{sJ}, 8")
            issue(b, True, th, gran)
        e(f"s_branch L_{tag}0")
    if VF:
        vloop("V", N-VF, "VE", thrv)
        for b in range(4):
            e.label(f"L_VE{b}")
            e(f"s_mov_b32 s{sTk}, 1")
            e(f"s_atomic_add s{sTk}, s[{sTKa}:{sTKa+1}], 0x0 glc")
            e(f"s_branch L_Wm{b}")
        vloop("W", N, "T2_", thre)
    else:
        vloop("V", N, "T2_", thrv)
    for b in range(4):
        e.label(f"L_T2_{b}")
        rest = [(b+i) & 3 for i in (1, 2, 3)]
        for i, c in enumerate(rest):
            e(f"v_add_u32 v{vAd}, s{sB+c}, v{vL4}")
            e(f"ds_read_b32 v{vt+i}, v{vAd} offset:{L_S}")
        if ts:
            e(f"s_cmp_eq_u32 s{sWave}, 0"); e(f"s_cbranch_scc1 L_T2x{b}")
            stamp(1)
            e.label(f"L_T2x{b}")
        e("s_waitcnt lgkmcnt(0)")
        nt = 0
        if b % 2 == 0:
            take_dyn(1); nt = 1; issue(b, False, thrd, gran)
        for i, c in enumerate(rest):
            prob(vt+i)
            e("s_waitcnt vmcnt(8)")
            e("s_nop 0")
            pv(c)
            if c % 2 == 0: nt += 1; take_dyn(nt)
            issue(c, c % 2 == 1, thrd, gran)
        if b % 2 == 1: issue(b, True, thrd, gran)
        first = b // 2 if b % 2 == 0 else ((b+1) & 3) // 2
        e(f"s_branch L_dyn{first}")
    for d in range(D): dyn_group(d)
    e("s_branch L_dyn0")
    e.label("L_done")
    if nost: e(f"s_mov_b32 s{sWS+2}, {WS_END}")
    stamp(4)
    e(f"s_lshl_b32 s{T+1}, s{sWave}, 9")
    e(f"v_lshl_add_u32 v{vT}, v{vb}, 2, v{vn}")
    e(f"v_lshl_add_u32 v{vT}, v{vT}, 5, s{T+1}")
    e(f"s_lshl_b32 s{T+1}, s{sWave}, 3")
    e(f"v_mov_b32 v{vP}, s{T+1}")
    e("s_nop 2")
    e(f"v_add_f32_dpp v{vM+1}, v{vLa}, v{vLa} {dpp('row_shl:4')}")
    for u in range(1, 4):
        for j in range(8): e(f"v_add_f32_dpp v{vO+j}, v{vO+8*u+j}, v{vO+j} {dpp(f'row_shl:{4*u}')}")
        if u > 1: e(f"v_add_f32_dpp v{vM+1}, v{vLa}, v{vM+1} {dpp(f'row_shl:{4*u}')}")
    e("s_mov_b32 exec_lo, 0x000f000f"); e("s_mov_b32 exec_hi, 0x000f000f")
    e(f"ds_write_b128 v{vT}, {v4(vO)} offset:{L_O}")
    e(f"ds_write_b128 v{vT}, {v4(vO+4)} offset:{L_O+16}")
    e("s_mov_b64 exec, 1")
    e(f"ds_write_b64 v{vP}, v[{vM}:{vM+1}] offset:{L_ML}")
    e("s_mov_b64 exec, -1")
    e("s_waitcnt lgkmcnt(0)")
    e("s_barrier")
    e(f"s_cmp_eq_u32 s{sWave}, 0")
    e("s_cbranch_scc1 L_tail0")
    e(f"s_cmp_eq_u32 s{sWave}, 2")
    e("s_cbranch_scc1 L_tail2")
    e(f"s_cmp_eq_u32 s{sWave}, 1")
    e("s_cbranch_scc0 L_exit")
    e(f"s_cmp_lt_u32 s{sH}, 4")
    e("s_cbranch_scc0 L_exit")
    e(f"ds_read_b64 v[{vA}:{vA+1}], v{vZero} offset:{L_EP}")
    srd(e, sOUT, 20, 1024)
    e(f"v_lshrrev_b32 v{vt}, 3, v0")
    e(f"v_and_b32 v{vt+1}, 7, v0")
    e(f"v_lshlrev_b32 v{vt+2}, 4, v{vt+1}")
    e(f"v_lshl_add_u32 v{vt}, v{vt}, 9, v{vt+2}")
    e(f"s_lshl_b32 s{T}, s{sS}, 14")
    e(f"s_lshl_b32 s{T+1}, s{sH}, 7")
    e(f"s_add_u32 s{T}, s{T}, s{T+1}")
    e(f"s_add_u32 s{T}, s{T}, {YP}")
    for j in range(1, 4): e(f"s_add_u32 s{T+j}, s{T}, {j*4096}")
    e(f"s_lshl_b32 s{T+4}, s{sS}, 7")
    e(f"s_lshl_b32 s{T+5}, s{sH}, 5")
    e(f"s_add_u32 s{T+4}, s{T+4}, s{T+5}")
    e(f"v_lshl_add_u32 v{vt+1}, v{vt+1}, 2, s{T+4}")
    e(f"buffer_load_dword v{vt+3}, v{vt+1}, s[{sX}:{sX+3}], 0 offen")
    e("s_waitcnt lgkmcnt(0)")
    e(f"v_readfirstlane_b32 s{sTA}, v{vA}")
    e(f"v_readfirstlane_b32 s{sTB}, v{vA+1}")
    e(f"v_add_u32 v{vt+2}, {ZP-YP}, v{vt}")
    poll("yz", [f"buffer_load_dwordx4 {v4(vG+4*j)}, v{vt+2}, s[{sWS}:{sWS+3}], s{T+j} offen sc1" for j in range(4)] +
               [f"buffer_load_dwordx4 {v4(vG+16+4*j)}, v{vt}, s[{sWS}:{sWS+3}], s{T+j} offen sc1" for j in range(4)],
         [vG+4*j for j in range(8)])
    for q in range(2):
        g = vG + 16*q
        for k in (0, 2):
            e(f"v_add_f32 v{g+k}, v{g+k}, v{g+4+k}")
            e(f"v_add_f32 v{g+8+k}, v{g+8+k}, v{g+12+k}")
    for q in range(2):
        g = vG + 16*q
        e(f"v_add_f32 v{vS+2*q}, v{g}, v{g+8}")
        e(f"v_add_f32 v{vS+2*q+1}, v{g+2}, v{g+10}")
    e("s_nop 0")
    for k in range(4): e(f"v_add_f32_dpp v{vS+k}, v{vS+k}, v{vS+k} {dpp('row_ror:8')}")
    for swap in ("v_permlane16_swap_b32", "v_permlane32_swap_b32"):
        for k in range(4): e(f"v_mov_b32 v{vG+k}, v{vS+k}")
        e("s_nop 0")
        for k in range(4): e(f"{swap} v{vS+k}, v{vG+k}")
        for k in range(4): e(f"v_add_f32 v{vS+k}, v{vS+k}, v{vG+k}")
    for k in range(4): e(f"v_cvt_pk_bf16_f32 v{vS+k}, v{vS+k}, v{vS+k}")
    for k in range(4): e(f"v_and_b32 v{vS+k}, 0xffff0000, v{vS+k}")
    for k in range(2): e(f"v_mul_f32 v{vA+k}, {f32(-1.4426950408889634)}, v{vS+k}")
    for k in range(2): e(f"v_exp_f32 v{vA+k}, v{vA+k}")
    e(f"v_lshlrev_b32 v{vA+2}, 16, v{vt+3}")
    for k in range(2): e(f"v_add_f32 v{vA+k}, 1.0, v{vA+k}")
    for k in range(2): e(f"v_rcp_f32 v{vA+k}, v{vA+k}")
    e(f"v_and_b32 v{vA+3}, 0xffff0000, v{vt+3}")
    for k in range(2): e(f"v_mul_f32 v{vA+k}, v{vS+k}, v{vA+k}")
    for k in range(2): e(f"v_cvt_pk_bf16_f32 v{vA+k}, v{vA+k}, v{vA+k}")
    for k in range(2): e(f"v_and_b32 v{vA+k}, 0xffff0000, v{vA+k}")
    for k in range(2): e(f"v_mul_f32 v{vS+k}, v{vS+2+k}, v{vA+k}")
    for k in range(2): e(f"v_cvt_pk_bf16_f32 v{vS+k}, v{vS+k}, v{vS+k}")
    for k in range(2): e(f"v_and_b32 v{vS+k}, 0xffff0000, v{vS+k}")
    for k in range(2): e(f"v_add_f32 v{vS+k}, v{vA+2+k}, v{vS+k}")
    e(f"v_cvt_pk_bf16_f32 v{vS}, v{vS}, v{vS+1}")
    e("s_mov_b64 exec, 0xff")
    e(f"buffer_store_dword v{vS}, v{vt+1}, s[{sOUT}:{sOUT+3}], 0 offen {opol}")
    e("s_mov_b64 exec, -1")
    e("s_branch L_exit")
    e.label("L_tail2")
    e(f"ds_read_b64 v[{vA}:{vA+1}], v{vZero} offset:{L_EP}")
    e(f"s_lshl_b32 s{T+2}, s{sC0}, 5")
    e(f"s_add_u32 s{T+2}, s{T+2}, {HP}")
    e(f"s_lshl_b32 s{T+3}, s{sNC}, 1")
    for r in range(4): e(f"v_mov_b32 v{vG+r}, 0")
    e("s_waitcnt lgkmcnt(0)")
    e(f"v_readfirstlane_b32 s{sTA}, v{vA}")
    e(f"v_readfirstlane_b32 s{sTB}, v{vA+1}")
    e(f"s_bfm_b64 exec, s{T+3}, 0")
    poll("h", [f"buffer_load_dwordx4 {v4(vG)}, v{vVo}, s[{sWS}:{sWS+3}], s{T+2} offen sc1"], [vG])
    e("s_mov_b64 exec, 0xffff")
    e(f"v_mov_b32 v{vG+1}, v{vG+2}")
    e(f"v_lshlrev_b32 v{vt+4}, 3, v0")
    e(f"ds_write_b64 v{vt+4}, v[{vG}:{vG+1}] offset:{L_HT}")
    e("s_mov_b64 exec, -1")
    e(f"v_lshrrev_b32 v{vt+5}, 3, v0")
    e(f"v_lshlrev_b32 v{vt+5}, 1, v{vt+5}")
    for t in range(6): e(f"ds_read_u16 v{vG+4+t}, v{vt+5} offset:{L_HT+16*t}")
    e("s_waitcnt lgkmcnt(0)")
    for t in range(6): e(f"v_lshl_or_b32 v{vG+4+t}, v{vG+4+t}, 16, v{vG+4+t}")
    proj(6, vG+4, vW2)
    proj_publish(ZP)
    e("s_branch L_exit")
    e.label("L_tail0")
    ml = vO; op = vO + 8
    e(f"ds_read_b128 {v4(ml)}, v{vZero} offset:{L_ML}")
    e(f"ds_read_b128 {v4(ml+4)}, v{vZero} offset:{L_ML+16}")
    e(f"v_lshlrev_b32 v{vP}, 3, v0")
    for p in range(4): e(f"ds_read_b64 v[{op+2*p}:{op+2*p+1}], v{vP} offset:{L_O+p*512}")
    e(f"v_mov_b32 v{vA+1}, s{sTA}"); e(f"v_mov_b32 v{vA+3}, s{sTB}")
    e(f"v_mov_b32 v{vA2+1}, s{sTA}"); e(f"v_mov_b32 v{vA2+3}, s{sTB}")
    e(f"s_lshl_b32 s{T}, s{sP}, 10"); e(f"s_add_u32 s{T}, s{T}, {OP}")
    e(f"s_lshl_b32 s{T+1}, s{sP}, 4"); e(f"s_add_u32 s{T+1}, s{T+1}, {MLP}")
    e("s_waitcnt lgkmcnt(4)")
    e(f"v_max_f32 v{vA2}, v{ml}, v{ml+2}")
    e(f"v_max3_f32 v{vA2}, v{ml+4}, v{ml+6}, v{vA2}")
    for p in range(4): e(f"v_sub_f32 v{ml+2*p}, v{ml+2*p}, v{vA2}")
    for p in range(4): e(f"v_exp_f32 v{ml+2*p}, v{ml+2*p}")
    e("s_waitcnt lgkmcnt(0)")
    e(f"v_mul_f32 v{vA}, v{ml}, v{op}")
    e(f"v_mul_f32 v{vA+2}, v{ml}, v{op+1}")
    for p in range(1, 4):
        e(f"v_fmac_f32 v{vA}, v{ml+2*p}, v{op+2*p}")
        e(f"v_fmac_f32 v{vA+2}, v{ml+2*p}, v{op+2*p+1}")
    e(f"buffer_store_dwordx4 {v4(vA)}, v{vVo}, s[{sWS}:{sWS+3}], s{T} offen sc1")
    e(f"v_mul_f32 v{vA2+2}, v{ml}, v{ml+1}")
    for p in range(1, 4): e(f"v_fmac_f32 v{vA2+2}, v{ml+2*p}, v{ml+2*p+1}")
    e("s_mov_b64 exec, 1")
    e(f"buffer_store_dwordx4 {v4(vA2)}, v{vZero}, s[{sWS}:{sWS+3}], s{T+1} offen sc1")
    e("s_mov_b64 exec, -1")
    stamp(5)
    e(f"s_lshl_b32 s{T}, s{sH}, 13"); e(f"s_add_u32 s{T}, s{T}, {OP}")
    e(f"s_add_u32 s{T+1}, s{T}, 4096")
    e(f"s_lshl_b32 s{T+2}, s{sH}, 7"); e(f"s_add_u32 s{T+2}, s{T+2}, {MLP}")
    e(f"v_and_b32 v{vt}, 7, v0")
    e(f"v_lshlrev_b32 v{vt}, 4, v{vt}")
    poll("o", [f"buffer_load_dwordx4 {v4(vG+4*j)}, v{vVo}, s[{sWS}:{sWS+3}], s{T + (j>>2)} offen offset:{(j&3)*1024} sc1" for j in range(8)] +
              [f"buffer_load_dwordx4 {v4(vG+32)}, v{vt}, s[{sWS}:{sWS+3}], s{T+2} offen sc1"],
         [vG+4*j for j in range(9)])
    stamp(6)
    mm, ll = vG+32, vG+34
    cs = ("quad_perm:[1,0,3,2]", "quad_perm:[2,3,0,1]", "row_half_mirror")
    e(f"v_max_f32_dpp v{vT}, v{mm}, v{mm} {dpp(cs[0])}")
    for c in cs[1:]:
        e("s_nop 1")
        e(f"v_max_f32_dpp v{vT}, v{vT}, v{vT} {dpp(c)}")
    e(f"v_sub_f32 v{vT}, v{mm}, v{vT}")
    e(f"v_exp_f32 v{vT}, v{vT}")
    e("s_nop 0")
    e(f"v_mul_f32 v{vP}, v{vT}, v{ll}")
    e(f"v_lshlrev_b32 v{vt+1}, 3, v0")
    for k in range(2): e(f"v_mul_f32_dpp v{vA+k}, v{vT}, v{vG+2*k} {dpp('row_newbcast:0')}")
    for j in range(1, 8):
        if j <= 3: e(f"v_add_f32_dpp v{vP}, v{vP}, v{vP} {dpp(cs[j-1])}")
        if j == 5: e(f"v_rcp_f32 v{vP}, v{vP}")
        for k in range(2):
            e(f"v_fmac_f32_dpp v{vA+k}, v{vT}, v{vG+4*j+2*k} {dpp(f'row_newbcast:{j}')}")
    for k in range(2): e(f"v_mul_f32 v{vA+k}, v{vA+k}, v{vP}")
    for k in range(2): e(f"v_cvt_pk_bf16_f32 v{vA+k}, v{vA+k}, v{vA+k}")
    e(f"ds_write_b64 v{vt+1}, v[{vA}:{vA+1}] offset:{L_OC}")
    e(f"v_lshrrev_b32 v{vP}, 3, v0")
    e(f"v_lshlrev_b32 v{vP}, 6, v{vP}")
    for q in range(4): e(f"ds_read_b128 {v4(vG+4*q)}, v{vP} offset:{L_OC+16*q}")
    e("s_waitcnt lgkmcnt(0)")
    proj(16, vG, vW)
    proj_publish(YP)
    e.label("L_exit")
    if ts:
        stamp(7)
        e("s_lshl_b32 s88, s2, 2"); e(f"s_add_u32 s88, s88, s{sWave}"); e("s_lshl_b32 s88, s88, 5")
        e("s_add_u32 s88, s88, 0x20000000")
        e("s_add_u32 s24, s24, s88"); e("s_addc_u32 s25, s25, 0")
        e("s_mov_b64 exec, 1")
        e(f"global_store_dwordx4 v{vZero}, {v4(vTS)}, s[24:25]")
        e(f"global_store_dwordx4 v{vZero}, {v4(vTS+4)}, s[24:25] offset:16")
    e.label("L_end")
    e("s_endpgm")
    for d in resc:
        e.label(f"L_resc{d}")
        e("s_nop 0")
        e(f"v_max_f32_dpp v{vP}, v{vT}, v{vT} {dpp('row_ror:4')}")
        e("s_nop 1")
        e(f"v_max_f32_dpp v{vP}, v{vP}, v{vP} {dpp('row_ror:8')}")
        e("s_nop 0")
        for i in range(4): e(f"v_readlane_b32 s{sRL+i}, v{vP}, {16*i}")
        e("s_nop 1")
        e(f"v_max_f32 v{vP}, s{sRL}, v{vM}")
        for i in range(1, 4): e(f"v_max_f32 v{vP}, s{sRL+i}, v{vP}")
        e(f"v_sub_f32 v{vA}, v{vM}, v{vP}")
        e(f"v_exp_f32 v{vA}, v{vA}")
        e(f"v_mov_b32 v{vM}, v{vP}")
        e(f"v_mul_f32 v{vLa}, v{vLa}, v{vA}")
        for i in range(0, 32, 2): e(f"v_pk_mul_f32 v[{vO+i}:{vO+i+1}], v[{vO+i}:{vO+i+1}], v[{vA}:{vA+1}] op_sel_hi:[1,0]")
        e(f"s_branch L_back{d}")

def desc(name, nv, ns, acc):
    return f""".amdhsa_kernel {name}
  .amdhsa_next_free_vgpr {nv}
  .amdhsa_next_free_sgpr {ns}
  .amdhsa_accum_offset {acc}
  .amdhsa_group_segment_fixed_size 0
  .amdhsa_kernarg_size 88
  .amdhsa_user_sgpr_count 2
  .amdhsa_user_sgpr_kernarg_segment_ptr 1
  .amdhsa_system_sgpr_workgroup_id_x 1
  .amdhsa_float_denorm_mode_32 3
.end_amdhsa_kernel
"""

def build(**kw):
    e = E()
    e.raw(HEADER.rstrip())
    lds = L_S + (4*kw.get("NS", 60) + 1)*256
    e.raw(f"; @launch grid=(256,1,1) block=(256,1,1) lds={lds}")
    e.raw('.amdgcn_target "amdgcn-amd-amdhsa--gfx950"')
    e.raw(".text")
    gen_main(e, **kw)
    e.raw('.section .rodata,"a"'); e.raw(".p2align 6")
    e.raw(desc(KNAME, 512, 102, 256))
    return e.text()

if __name__ == "__main__":
    out = sys.argv[1]
    kw = eval("dict(%s)" % (sys.argv[2] if len(sys.argv) > 2 else ""))
    open(out, "w").write(build(**kw))
```

```python
import sys, struct
KNAME = "recurrent_scan__gqa_block_cached__dense_activation_relu__decode_kernel"
HEADER = open("recurrent_scan__gqa_block_cached__dense_activation_relu__decode.s.ref").read().split("; Override launch")[0]

def f32(x): return "0x%08x" % struct.unpack("<I", struct.pack("<f", x))[0]

class E:
    def __init__(self): self.L = []; self.vm = []
    def __call__(self, s): self.L.append("  " + s)
    def label(self, s): self.L.append(s + ":")
    def raw(self, s): self.L.append(s)
    def c(self, s): self.L.append("  ; " + s)
    def mem(self, s, tag):
        self.L.append("  " + s); self.vm.append(tag)
    def wait(self, tag, gen=None):
        idxs = [i for i, t in enumerate(self.vm) if t == tag]
        idx = idxs[-1] if gen is None else idxs[4*gen+3]
        n = len(self.vm) - 1 - idx
        self(f"s_waitcnt vmcnt({min(59, n)})")
    def text(self): return "\n".join(self.L) + "\n"

QP, HP, OP, MLP, YP, ZP, TK, WS_END = 0x0, 0x40000, 0x60000, 0xA0000, 0xB0000, 0xD0000, 0xF0000, 0x1B0000
LOC = 0x100000
L_FL, L_F2 = 0x120, 0x124
L_QB, L_EP, L_CT, L_DN, L_WM, L_HT, L_O, L_ML, L_OC, L_S = 0x0, 0x100, 0x108, 0x10C, 0x110, 0x140, 0x400, 0xC00, 0xD00, 0x1000
OOB = 0x40000000
POLL_MAX = 400000

def dpp(ctrl): return f"{ctrl} row_mask:0xf bank_mask:0xf"

def wave_sum(e, v, sa):
    for c in ("quad_perm:[1,0,3,2]", "quad_perm:[2,3,0,1]", "row_half_mirror", "row_mirror"):
        e("s_nop 1")
        e(f"v_add_f32_dpp v{v}, v{v}, v{v} {dpp(c)}")
    e("s_nop 0")
    for i in range(4): e(f"v_readlane_b32 s{sa+i}, v{v}, {16*i}")
    e("s_nop 1")
    e(f"v_mov_b32 v{v}, s{sa}")
    for i in range(1, 4): e(f"v_add_f32 v{v}, s{sa+i}, v{v}")

def round_bf16(e, vd, vs):
    e(f"v_cvt_pk_bf16_f32 v{vd}, v{vs}, v{vs}")
    e(f"v_and_b32 v{vd}, 0xffff0000, v{vd}")

def srd(e, d, b, nbytes):
    e(f"s_mov_b32 s{d}, s{b}"); e(f"s_mov_b32 s{d+1}, s{b+1}")
    e(f"s_mov_b32 s{d+2}, {nbytes}"); e(f"s_mov_b32 s{d+3}, 0x00020000")

def gen_main(e, G=1, NS=60, DA=16, thrf=6, thr=6, thrv=6, thrd=12, ts=False, noex=False, now='', rotr=False, pg='r', gran=1, granf=1, nost=False, nocomp=False, BU=8, upol='nt', VF=16, thre=12, opol='', st0=False, pre=2, late=6, tlb=1, pubw=3, loc=1, NLOC=80, lpol='nt', nofb=False, finh=0, nowf2=False):
    D = 2; N = 4*NS
    if thrv is None: thrv = thr
    if thrd is None: thrd = thr
    m = 8 // G; lg = G.bit_length()-1; lm = m.bit_length()-1
    DYN = NS*32
    sK, sV, sWQ, sWO, sX, sW1, sW2, sWS, sOUT = 28, 32, 36, 40, 44, 48, 52, 56, 76
    sH, sS, sWave = 60, 61, 3
    sU, sCnt, sNC = 62, 64, 65
    sB = 36
    T = 66
    sHB, sP = 74, 75
    sTA, sTB = 80, 81
    sTk, sC0, sTKa = 84, 85, 86
    sEnd, sEnd2, sPos, sJ, sO = 88, 89, 90, 91, 92
    sRL = 96
    sTS = 100
    vZero, vKo, vVo, vM, vC, vT, vP, vM0, vM1, vSt = 1, 2, 3, 4, 6, 7, 8, 9, 10, 11
    vB = 12; vb, vn = 14, 15
    vS = 16; vMk = 20; vA = 24; vA2 = 28; vD2 = 32
    vBq = 36; vO = 52; vW = 84
    vW2 = 148; vG = 172
    vLa = 220
    vOnes = 224
    vJ, vOne, vWOo, vPP = 226, 227, 228, 229
    vL4, vAd = 230, 231
    vX4 = 232
    vHG = 232
    vt = 236
    vTS = 248
    def stamp(i):
        if ts:
            e(f"s_memrealtime s[{sTS}:{sTS+1}]")
            e("s_waitcnt lgkmcnt(0)")
            e(f"v_mov_b32 v{vTS+i}, s{sTS}")
    def bbase(b, i):
        if b < 16: return "a", b*16 + i*4
        return "v", vW + (b-16)*16 + i*4
    def buf(b, i): c, r = bbase(b, i); return f"{c}[{r}:{r+3}]"
    def bufh(b, i, half): c, r = bbase(b, i); r += 2*half; return f"{c}[{r}:{r+1}]"
    def v4(r): return f"v[{r}:{r+3}]"
    def a4(r): return f"a[{r}:{r+3}]"
    assert 4 <= DA <= 20
    rounds = []
    cur = list(range(DA))
    while True:
        if len(cur) <= 8:
            step = (len(cur)-1) / 3
            keep = [cur[round(i*step)] for i in range(4)]
        else: keep = cur[0::2]
        rounds.append([(p, p in keep) for p in cur])
        cur = keep
        if len(cur) == 4: break
    buf_of = {p: i for i, p in enumerate(cur)}
    nxt = 4
    for p in range(DA):
        if p not in buf_of: buf_of[p] = nxt; nxt += 1
    assert buf_of[0] == 0
    NREF = sum(r for rd in rounds for _, r in rd)
    J1 = 3*DA
    J2 = J1
    J3 = J2 + 3*NREF
    assert J3 <= N

    e.raw(f".globl {KNAME}"); e.raw(".p2align 8"); e.raw(f".type {KNAME},@function"); e.label(KNAME)
    e("s_cmp_ge_u32 s2, 256")
    e("s_cbranch_scc1 L_end")
    e("s_load_dwordx16 s[4:19], s[0:1], 0")
    e("s_load_dwordx4 s[20:23], s[0:1], 64")
    e("s_load_dwordx2 s[24:25], s[0:1], 80")
    e(f"s_memrealtime s[{sTA}:{sTA+1}]")
    e("v_lshrrev_b32 v1, 6, v0")
    e("v_and_b32 v0, 63, v0")
    e(f"s_and_b32 s{T}, s2, 7")
    e(f"v_readfirstlane_b32 s{sWave}, v1")
    e(f"s_lshr_b32 s{T+1}, s2, 3")
    e(f"s_lshr_b32 s{T+2}, s{T}, {lg}")
    e(f"s_and_b32 s{T+3}, s{T}, {G-1}")
    e(f"s_lshr_b32 s{sH}, s{T+1}, {lm}")
    e(f"s_and_b32 s{T+4}, s{T+1}, {m-1}")
    e(f"s_mul_i32 s{sH}, s{sH}, {8//G}")
    e(f"s_add_u32 s{sH}, s{sH}, s{T+2}")
    e(f"s_mul_i32 s{sS}, s{T+3}, {m}")
    e(f"s_add_u32 s{sS}, s{sS}, s{T+4}")
    e(f"s_lshl_b32 s{sHB}, s{sH}, 23")
    if G == 8: e(f"s_add_u32 s{sPos}, s{sS}, s{sH}")
    else: e(f"s_mov_b32 s{sPos}, s{sS}")
    e(f"s_and_b32 s{sPos}, s{sPos}, 7")
    sCw = 63
    e(f"s_lshr_b32 s{sCw}, s{sH}, 3")
    e(f"v_lshrrev_b32 v{vb}, 4, v0")
    e(f"v_and_b32 v{vn}, 15, v0")
    e(f"v_lshlrev_b32 v{vVo}, 4, v0")
    e(f"v_bfe_u32 v{vt}, v0, 2, 2")
    e(f"v_lshlrev_b32 v{vKo}, 8, v{vt}")
    e(f"v_lshl_add_u32 v{vKo}, v{vb}, 6, v{vKo}")
    e(f"v_and_b32 v{vt+1}, 3, v0")
    e(f"v_lshl_add_u32 v{vKo}, v{vt+1}, 4, v{vKo}")
    e(f"v_mov_b32 v{vZero}, 0")
    e(f"v_mov_b32 v{vt}, 0"); e(f"v_mov_b32 v{vt+1}, 0"); e(f"v_mov_b32 v{vt+2}, {J3}"); e(f"v_mov_b32 v{vt+3}, 0")
    e(f"ds_write_b128 v{vZero}, {v4(vt)} offset:{L_EP}")
    e(f"ds_write_b64 v{vZero}, v[{vt}:{vt+1}] offset:{L_FL}")
    e(f"v_lshlrev_b32 v{vt+4}, 2, v0")
    e(f"v_add_u32 v{vt+4}, {N*256}, v{vt+4}")
    e(f"v_mov_b32 v{vt+5}, {f32(-3.0e38)}")
    e(f"ds_write_b32 v{vt+4}, v{vt+5} offset:{L_S}")

    def addr_local():
        if BU == 8:
            assert pg == 'r' and not rotr and N % 8 == 0
            e(f"s_lshr_b32 s{sO+1}, s{sJ}, 3")
            e(f"s_lshl_b32 s{sO+1}, s{sO+1}, 3")
            e(f"s_add_u32 s{sO+1}, s{sO+1}, s{sPos}")
            e(f"s_lshl_b32 s{sO+1}, s{sO+1}, 1")
            e(f"s_lshl_b32 s{sO+2}, s{sCw}, 1")
            e(f"s_add_u32 s{sO+2}, s{sJ}, s{sO+2}")
            e(f"s_and_b32 s{sO+2}, s{sO+2}, 7")
            blk_addr(); return
        e(f"s_lshr_b32 s{sO+1}, s{sJ}, 2")
        if G == 8 and rotr:
            e(f"s_add_u32 s{sO+2}, s{sO+1}, s{sPos}")
            e(f"s_and_b32 s{sO+2}, s{sO+2}, 7")
            e(f"s_lshl_b32 s{sO+1}, s{sO+1}, 3")
            e(f"s_add_u32 s{sO+1}, s{sO+1}, s{sO+2}")
        else:
            e(f"s_lshl_b32 s{sO+1}, s{sO+1}, 3")
            e(f"s_add_u32 s{sO+1}, s{sO+1}, s{sPos}")
        if pg:
            e(f"s_add_u32 s{sO+2}, s{sJ}, s{sCw}")
            e(f"s_and_b32 s{sO+2}, s{sO+2}, 3")
        else:
            e(f"s_and_b32 s{sO+2}, s{sJ}, 3")
        blk_addr()
    def blk_addr():
        e(f"s_lshl_b32 s{sO+1}, s{sO+1}, 14")
        e(f"s_lshl_b32 s{sO+2}, s{sO+2}, {10 if pg == 'x' else 12}")
        e(f"s_add_u32 s{sO+1}, s{sO+1}, s{sO+2}")
        e(f"s_add_u32 s{sO}, s{sO+1}, s{sHB}")
        if pg == 'x':
            for i in range(1, 4): e(f"s_xor_b32 s{sO+i}, s{sO}, {i*5120}")
    def so(i): return f"s{sO+i} offen" if pg == 'x' else f"s{sO} offen offset:{i*1024}"
    def req_local():
        e("s_mov_b64 exec, 1")
        e(f"ds_add_rtn_u32 v{vJ}, v{vZero}, v{vOne} offset:{L_CT}")
        e("s_mov_b64 exec, -1")
    def issue(b, isV, th=None, gr=1):
        vo, sr = (vVo, sV) if isV else (vKo, sK)
        for i in range(4):
            if th is not None and i % gr == 0: e(f"s_waitcnt vmcnt({th[i] if isinstance(th, (list, tuple)) else th})")
            e.mem(f"buffer_load_dwordx4 {buf(b,i)}, v{vo}, s[{sr}:{sr+3}], {so(i)} nt", f"B{b}")

    def consts():
        t = vt+8
        e(f"v_and_b32 v{t}, 1, v0")
        e(f"v_lshlrev_b32 v{t}, 4, v{t}")
        e(f"v_mov_b32 v{t+1}, 0xffff")
        e(f"v_lshlrev_b32 v{t+1}, v{t}, v{t+1}")
        e(f"v_and_b32 v{t+2}, 2, v0")
        e(f"v_cmp_eq_u32 vcc, 0, v{t+2}")
        e(f"v_bfe_u32 v{t+2}, v0, 1, 2")
        e("s_nop 0")
        e(f"v_cndmask_b32 v{vM0}, 0, v{t+1}, vcc")
        e(f"v_cndmask_b32 v{vM1}, v{t+1}, 0, vcc")
        for r in range(4):
            e(f"v_cmp_eq_u32 vcc, {r}, v{t+2}")
            e("s_nop 1")
            e(f"v_cndmask_b32 v{vMk+r}, 0, v{t+1}, vcc")
        e(f"v_mov_b32 v{vC}, {f32((128**-0.5)*1.4426950408889634)}")
        e(f"v_mov_b32 v{vM}, {f32(-3.0e38)}")
        for i in range(4): e(f"v_mov_b32 v{vLa+i}, 0")
        e(f"v_mov_b32 v{vOnes}, 0x3f803f80"); e(f"v_mov_b32 v{vOnes+1}, 0x3f803f80")
        for i in range(32): e(f"v_mov_b32 v{vO+i}, 0")
        e(f"v_mov_b32 v{vOne}, 1")
        e(f"v_lshlrev_b32 v{vL4}, 2, v0")
        e(f"v_lshlrev_b32 v{vSt}, 6, v{vn}")
        e(f"v_and_b32 v{t}, 1, v{vb}")
        e(f"v_lshl_add_u32 v{vSt}, v{t}, 5, v{vSt}")
        e(f"v_lshrrev_b32 v{t}, 1, v{vb}")
        e(f"v_lshl_add_u32 v{vSt}, v{t}, 4, v{vSt}")
        srd(e, sWS, 24, 0 if nost else WS_END); srd(e, sX, 4, 1024)
        e(f"s_mov_b32 s{sEnd}, 0x7fffffff")
        e(f"s_lshl_b32 s{sP}, s{sH}, 3")
        e(f"s_add_u32 s{sP}, s{sP}, s{sS}")
    def ffn_range():
        e(f"s_min_u32 s{T}, s{sH}, 12")
        e(f"s_mul_i32 s{sC0}, s{sH}, 5")
        e(f"s_add_u32 s{sC0}, s{sC0}, s{T}")
        e(f"s_cmp_lt_u32 s{sH}, 12")
        e(f"s_cselect_b32 s{sNC}, 6, 5")
    def tk_addr():
        e(f"s_lshl_b32 s{T}, s{sH}, 8")
        e(f"s_add_u32 s{T}, s{T}, {TK}")
        e(f"s_add_u32 s{sTKa}, s24, s{T}")
        e(f"s_addc_u32 s{sTKa+1}, s25, 0")

    def tagcheck(regs, acc, tmp):
        for k, r in enumerate(regs):
            e(f"v_xor_b32 v{tmp}, s{sTA}, v{r+1}")
            e(f"v_xor_b32 v{tmp+1}, s{sTB}, v{r+3}")
            if k == 0: e(f"v_or_b32 v{acc}, v{tmp}, v{tmp+1}")
            else: e(f"v_or3_b32 v{acc}, v{tmp}, v{tmp+1}, v{acc}")
        e(f"v_cmp_ne_u32 vcc, 0, v{acc}")
    def poll(name, loads, regs, after=None, nafter=0):
        if noex and name in ("q", "h"):
            e("s_waitcnt vmcnt(0)"); return
        if after is not None:
            for l in loads: e(l)
            after()
            e(f"s_waitcnt vmcnt({nafter})")
            tagcheck(regs, vt+10, vt+8)
            e(f"s_cbranch_vccz L_polld_{name}")
        e(f"s_mov_b32 s{T+7}, {POLL_MAX}")
        e.label(f"L_poll_{name}")
        for l in loads: e(l)
        e(f"s_sub_u32 s{T+7}, s{T+7}, 1")
        e("s_waitcnt vmcnt(0)")
        tagcheck(regs, vt+10, vt+8)
        e(f"s_cbranch_vccz L_polld_{name}")
        e(f"s_cmp_lg_u32 s{T+7}, 0")
        e(f"s_cbranch_scc1 L_poll_{name}")
        e.label(f"L_polld_{name}")

    def build_bq():
        u0 = vt
        e(f"v_and_b32 v{u0}, 3, v0")
        e(f"v_lshl_add_u32 v{u0}, v{vb}, 2, v{u0}")
        e(f"v_lshlrev_b32 v{u0}, 4, v{u0}")
        e(f"ds_read_b128 {v4(vA)}, v{u0} offset:{L_QB}")
        e(f"v_bfe_u32 v{u0+1}, v0, 2, 2")
        e("s_waitcnt lgkmcnt(0)")
        for u in range(4):
            e(f"v_cmp_eq_u32 vcc, {u}, v{u0+1}")
            e("s_nop 1")
            for r in range(4): e(f"v_cndmask_b32 v{vBq+4*u+r}, 0, v{vA+r}, vcc")

    resc = []
    def qk(b):
        if nocomp: return
        for u in range(4):
            c = "0" if u == 0 else v4(vS)
            e(f"v_mfma_f32_16x16x32_bf16 {v4(vS)}, {buf(b,u)}, {v4(vBq+4*u)}, {c}")
    def score():
        for r in range(4):
            e(f"v_mul_f32_dpp v{vA+r}, v{vS+r}, v{vC} {dpp(f'quad_perm:[{r},{r},{r},{r}]')}")
        e(f"v_add_f32 v{vA}, v{vA}, v{vA+1}")
        e(f"v_add_f32 v{vA+2}, v{vA+2}, v{vA+3}")
        e(f"v_add_f32 v{vT}, v{vA}, v{vA+2}")
    def score_store():
        score()
        e(f"v_max_f32 v{vM}, v{vM}, v{vT}")
        e(f"ds_write_b32 v{vAd}, v{vT} offset:{L_S}")
    def prob(src):
        e(f"v_sub_f32 v{vP}, v{src}, v{vM}")
        e(f"v_exp_f32 v{vP}, v{vP}")
        e("s_nop 0")
        e(f"v_cvt_pk_bf16_f32 v{vP}, v{vP}, v{vP}")
        e(f"v_and_b32 v{vB}, v{vP}, v{vM0}")
        e(f"v_and_b32 v{vB+1}, v{vP}, v{vM1}")
    def pv(b):
        if nocomp: return
        e(f"v_mfma_f32_16x16x16_bf16 {v4(vLa)}, v[{vOnes}:{vOnes+1}], v[{vB}:{vB+1}], {v4(vLa)}")
        for u in range(4):
            for hf in range(2):
                o = vO + (u*2+hf)*4
                e(f"v_mfma_f32_16x16x16_bf16 {v4(o)}, {bufh(b,u,hf)}, v[{vB}:{vB+1}], {v4(o)}")
    def wave_max(dst, src):
        e(f"v_max_f32_dpp v{dst}, v{src}, v{src} {dpp('row_ror:4')}")
        e("s_nop 1")
        e(f"v_max_f32_dpp v{dst}, v{dst}, v{dst} {dpp('row_ror:8')}")
        e("s_nop 0")
        for i in range(4): e(f"v_readlane_b32 s{sRL+i}, v{dst}, {16*i}")
        e("s_nop 1")
        e(f"v_mov_b32 v{dst}, s{sRL}")
        for i in range(1, 4): e(f"v_max_f32 v{dst}, s{sRL+i}, v{dst}")
    uniq = [0]
    stubs = []
    def take_dyn(slot, endval=2):
        uniq[0] += 1
        e("s_waitcnt lgkmcnt(0)")
        e(f"s_cmp_lt_u32 s{sTk}, {2048-DYN}")
        e(f"s_cselect_b32 s{sK+2}, 0x10000000, 0")
        e(f"s_cselect_b32 s{sV+2}, 0x10000000, 0")
        e(f"s_cselect_b32 s{sEnd2}, s{sEnd}, {endval}")
        e(f"s_cselect_b32 s{sU}, s{sTk}, 0")
        e(f"s_cbranch_scc0 L_inv{uniq[0]}")
        e(f"s_mov_b32 s{sTk}, 1")
        e(f"s_atomic_add s{sTk}, s[{sTKa}:{sTKa+1}], 0x0 glc")
        e.label(f"L_notk{uniq[0]}")
        e(f"s_min_u32 s{sEnd}, s{sEnd}, s{sEnd2}")
        e(f"s_add_u32 s{sU}, s{sU}, {DYN}")
        e(f"s_lshr_b32 s{sO+1}, s{sU}, 2")
        e(f"s_and_b32 s{sO+2}, s{sU}, 3")
        blk_addr()
        e.label(f"L_tkd{uniq[0]}")
        stubs.append((uniq[0], slot))
    def dyn_group(d):
        e.label(f"L_dyn{d}")
        e(f"s_sub_u32 s{sEnd}, s{sEnd}, 1")
        e(f"s_cmp_eq_u32 s{sEnd}, 0")
        e("s_cbranch_scc1 L_done")
        e("s_waitcnt vmcnt(12)")
        qk(2*d)
        take_dyn(d)
        issue(2*d, False, thrd, gran)
        score()
        e(f"v_cmp_gt_f32 vcc, v{vT}, v{vM}")
        e(f"s_cbranch_vccnz L_rescd{d}")
        e.label(f"L_backd{d}")
        resc.append(f"d{d}")
        prob(vT)
        e("s_waitcnt vmcnt(12)")
        e("s_nop 0")
        pv(2*d+1)
        issue(2*d+1, True, thrd, gran)
    def k_static(b, gen, jcur, jref):
        e.wait(f"B{b}", gen)
        qk(b)
        e(f"s_add_u32 s{T}, s{sWave}, {jcur-1}")
        e(f"s_lshl_b32 s{T}, s{T}, 8")
        e(f"v_add_u32 v{vAd}, s{T}, v{vL4}")
        if jref is not None:
            e(f"s_add_u32 s{sJ}, s{sWave}, {jref-1}")
            addr_local()
            if b < 4: e(f"s_lshl_b32 s{sB+b}, s{sJ}, 8")
        else: e("s_nop 4")
        score_store()
        if jref is not None: issue(b, False, thr, gran)

    e(f"s_cmp_eq_u32 s{sWave}, 0")
    e("s_cbranch_scc1 L_wave0")
    e(f"s_add_u32 s{sJ}, s{sWave}, -1")
    addr_local()
    e("s_waitcnt lgkmcnt(0)")
    if ts:
        e(f"v_mov_b32 v{vTS}, s{sTA}")
        for i in range(1, 8): e(f"v_mov_b32 v{vTS+i}, 0")
    srd(e, sK, 6, 0x10000000); srd(e, sV, 8, 0x10000000)
    if st0: stamp(6)
    issue(0, False)
    e(f"s_add_u32 s{sJ}, s{sWave}, 2")
    addr_local(); issue(buf_of[1], False)
    e("s_barrier")
    consts(); tk_addr()
    if st0:
        e("s_waitcnt vmcnt(7)"); stamp(3)
    for p in range(2, DA):
        e(f"s_add_u32 s{sJ}, s{sWave}, {3*p - 1}")
        addr_local(); issue(buf_of[p], False, thrf if p >= pre else None, granf)
    e.label("L_waitq")
    e(f"ds_read_b64 v[{vt+2}:{vt+3}], v{vZero} offset:{L_EP}")
    e("s_waitcnt lgkmcnt(0)")
    e(f"v_or_b32 v{vt+4}, v{vt+2}, v{vt+3}")
    e(f"v_cmp_eq_u32 vcc, 0, v{vt+4}")
    e("s_cbranch_vccnz L_waitq")
    e(f"v_readfirstlane_b32 s{sTA}, v{vt+2}")
    e(f"v_readfirstlane_b32 s{sTB}, v{vt+3}")
    build_bq()
    stamp(2)
    k = 0
    jc = {p: 3*p for p in range(DA)}
    for gi, rd in enumerate(rounds):
        for p, rf in rd:
            k_static(buf_of[p], gi, jc[p], J2 + 3*k if rf else None)
            if rf: jc[p] = J2 + 3*k
            k += rf
    def w2_loads():
        ffn_range()
        srd(e, sW2, 18, 0 if "2" in now else 1376*512*2)
        vE = vt+5
        e(f"v_lshrrev_b32 v{vE}, 3, v0")
        e(f"v_and_b32 v{vt+6}, 7, v0")
        e(f"v_lshlrev_b32 v{vt+6}, 4, v{vt+6}")
        e(f"v_lshl_add_u32 v{vt+7}, v{vE}, 10, v{vt+6}")
        e(f"s_lshl_b32 s{T}, s{sC0}, 13")
        e(f"s_lshl_b32 s{T+1}, s{sS}, 7")
        e(f"s_add_u32 s{T}, s{T}, s{T+1}")
        for t in range(6):
            if t == 5:
                e(f"s_cmp_eq_u32 s{sNC}, 6")
                e(f"s_cselect_b32 s{sW2+2}, s{sW2+2}, 0")
                e(f"s_cselect_b32 s{T}, s{T}, 0")
            e(f"buffer_load_dwordx4 {v4(vW2+t*4)}, v{vt+7}, s[{sW2}:{sW2+3}], s{T} offen nt")
            if t < 5: e(f"s_add_u32 s{T}, s{T}, 8192")
    if not late:
        e(f"s_cmp_lg_u32 s{sWave}, 2")
        e("s_cbranch_scc1 L_stream")
        w2_loads()
    e("s_branch L_stream")
    e.label("L_wave0")
    e.vm = []
    aU = 128
    sStr, sPub, sFlo = sW1, sW1+1, sW1+2
    e(f"s_and_b32 s{T}, s2, 7")
    e(f"s_lshr_b32 s{T+1}, s2, 3")
    if G < 8:
        e(f"s_and_b32 s{T+2}, s{T+1}, {m-1}")
        e(f"s_mul_i32 s{T+2}, s{T+2}, {32//m}")
        e(f"s_lshr_b32 s{T+1}, s{T+1}, {lm}")
        e(f"s_add_u32 s{T+1}, s{T+1}, s{T+2}")
    e(f"s_lshl_b32 s{T+2}, s{T}, 2")
    e(f"s_add_u32 s{T+1}, s{T+1}, s{T+2}")
    e(f"s_and_b32 s{T+1}, s{T+1}, 31")
    e(f"s_lshl_b32 s{T+2}, s{T}, 4")
    e(f"s_add_u32 s{T+2}, s{T+2}, s{T+1}")
    e(f"s_mul_i32 s{T+3}, s{T}, 6")
    e(f"s_add_u32 s{T+3}, s{T+3}, s{T+1}")
    e(f"s_sub_u32 s{T+3}, s{T+3}, 16")
    e(f"s_mov_b32 s{sStr}, 2752")
    e(f"s_mov_b32 s{sWQ+2}, {0 if '1' in now else 512*1376*2}")
    e(f"s_cmp_lt_u32 s{T+1}, 22")
    e(f"s_cselect_b32 s{T+6}, s{T+3}, 99")
    e(f"s_cmp_lt_u32 s{T+1}, 16")
    e(f"s_cselect_b32 s{T+6}, 0, s{T+6}")
    e(f"s_cselect_b32 s{T+3}, s{T+2}, s{T+3}")
    e(f"s_cselect_b32 s{sStr}, 8192, s{sStr}")
    e(f"s_cselect_b32 s{sPub}, {QP}, {HP}")
    e(f"s_cselect_b32 s{sFlo}, 0xff800000, 0")
    e(f"s_cselect_b32 s{sWQ+2}, {0 if 'q' in now else 512*4096*2}, s{sWQ+2}")
    e(f"s_cselect_b32 s{T+7}, s{T+2}, 1")
    e(f"s_lshl_b32 s{T}, s{T+3}, 7")
    e(f"s_add_u32 s{sPub}, s{sPub}, s{T}")
    e(f"s_lshl_b32 s{T+3}, s{T+3}, 6")
    e(f"s_lshl_b32 s{T}, s{sStr}, 5")
    e(f"v_lshrrev_b32 v{vt}, 2, v0")
    e(f"v_mul_lo_u32 v{vt}, v{vt}, s{T}")
    e(f"v_and_b32 v{vt+1}, 3, v0")
    e(f"v_lshl_add_u32 v{vt}, v{vt+1}, 4, v{vt}")
    e(f"v_and_b32 v{vt+6}, 7, v0")
    e(f"v_lshlrev_b32 v{vt+6}, 4, v{vt+6}")
    if late == 5:
        e(f"v_lshrrev_b32 v{vt+7}, 3, v0")
        e(f"v_lshl_add_u32 v{vWOo}, v{vt+7}, 14, v{vt+6}")
    else:
        e(f"v_lshl_add_u32 v{vWOo}, v{vb}, 15, v{vt+6}")
        e(f"v_bfe_u32 v{vt+7}, v0, 3, 1")
        e(f"v_lshl_add_u32 v{vWOo}, v{vt+7}, 11, v{vWOo}")
    e(f"s_cmp_lt_u32 s{T+1}, 16")
    e("s_waitcnt lgkmcnt(0)")
    e(f"s_cselect_b32 s{sWQ}, s10, s16")
    e(f"s_cselect_b32 s{sWQ+1}, s11, s17")
    e(f"s_mov_b32 s{sWQ+3}, 0x00020000")
    if ts:
        e(f"v_mov_b32 v{vTS}, s{sTA}")
        for i in range(1, 8): e(f"v_mov_b32 v{vTS+i}, 0")
    e(f"s_mov_b32 s{T+4}, s{sTA}"); e(f"s_mov_b32 s{T+5}, s{sTA+1}")
    def resolve_epoch(n):
        e("s_waitcnt lgkmcnt(0)")
        e(f"s_or_b32 s{T}, s{sTA}, s{sTA+1}")
        e(f"s_cmp_lg_u32 s{T}, 0")
        e(f"s_cbranch_scc1 L_haveep{n}")
        e(f"s_mov_b32 s{sTA}, s{T+4}"); e(f"s_mov_b32 s{sTA+1}, s{T+5}")
        e(f"s_mov_b32 s{sTA+2}, 0"); e(f"s_mov_b32 s{sTA+3}, 0")
        e(f"s_atomic_cmpswap_x2 s[{sTA}:{sTA+3}], s[22:23], 0x0 glc")
        e("s_waitcnt lgkmcnt(0)")
        e(f"s_or_b32 s{T}, s{sTA}, s{sTA+1}")
        e(f"s_cmp_eq_u32 s{T}, 0")
        e(f"s_cselect_b32 s{sTA}, s{T+4}, s{sTA}")
        e(f"s_cselect_b32 s{sTB}, s{T+5}, s{sTB}")
        e.label(f"L_haveep{n}")
    def w0_fills(bs):
        for b in bs:
            e(f"s_mov_b32 s{sJ}, {J1 + b}")
            e(f"s_mov_b32 s{sB+b}, {(J1 + b) << 8}")
            addr_local(); issue(b, False, thr if b >= 2 else None, gran)
    def wo_loads():
        srd(e, sWO, 12, 0 if "o" in now else 4096*512*2)
        e(f"s_lshl_b32 s{T}, s{sH}, 17")
        e(f"s_lshl_b32 s{T+1}, s{sS}, 7")
        e(f"s_add_u32 s{T}, s{T}, s{T+1}")
        for t8 in range(8):
            dT = 8*(t8 & 3) + 4*(t8 >> 2)
            e(f"s_add_u32 s{T+1}, s{T}, {dT*1024}")
            e(f"buffer_load_dwordx4 {v4(vW+t8*4)}, v{vWOo}, s[{sWO}:{sWO+3}], s{T+1} offen nt")
            e(f"buffer_load_dwordx4 {v4(vW+(t8+8)*4)}, v{vWOo}, s[{sWO}:{sWO+3}], s{T+1} offen offset:1024 nt")
    e(f"s_cmp_lt_u32 s{T+6}, 43")
    e("s_cbranch_scc1 L_task")
    e("s_barrier")
    if not late: wo_loads()
    srd(e, sK, 6, 0x10000000); srd(e, sV, 8, 0x10000000)
    consts(); tk_addr()
    e(f"buffer_load_dword v{vG+8}, v{vZero}, s[{sV}:{sV+3}], s{sHB} offen nt")
    e("s_waitcnt vmcnt(0)")
    e(f"s_load_dwordx2 s[{sTA}:{sTA+1}], s[22:23], 0x0")
    resolve_epoch(0)
    e("s_branch L_join")
    e.label("L_task")
    srd(e, sX, 4, 1024)
    e.mem(f"buffer_load_dwordx4 {v4(vX4)}, v{vVo}, s[{sX}:{sX+3}], 0 offen", "x4")
    for i in range(32):
        e.mem(f"buffer_load_dwordx4 {a4(aU+i*4)}, v{vt}, s[{sWQ}:{sWQ+3}], s{T+3} offen {upol}", f"u{i}")
        if i < 31: e(f"s_add_u32 s{T+3}, s{T+3}, s{sStr}")
        if i == 3:
            e(f"s_mov_b32 s{sTA+2}, 0"); e(f"s_mov_b32 s{sTA+3}, 0")
            e("s_cmp_ge_u32 s2, 8")
            e("s_cbranch_scc1 L_nocas0")
            e(f"s_atomic_cmpswap_x2 s[{sTA}:{sTA+3}], s[22:23], 0x0 glc")
            e.label("L_nocas0")
            e("s_barrier")
    e(f"s_and_b32 s{T}, s{T+7}, 3")
    e(f"s_cmp_lg_u32 s{T}, 0")
    e("s_cbranch_scc1 L_notk")
    e(f"s_lshl_b32 s{T}, s{T+7}, 6")
    e(f"s_add_u32 s{T}, s{T}, {TK}")
    e(f"s_add_u32 s{sTKa}, s24, s{T}")
    e(f"s_addc_u32 s{sTKa+1}, s25, 0")
    e(f"s_mov_b32 s{sTk}, {0 if VF else 32}")
    e(f"s_atomic_swap s{sTk}, s[{sTKa}:{sTKa+1}], 0x0 glc")
    e.label("L_notk")
    srd(e, sK, 6, 0x10000000); srd(e, sV, 8, 0x10000000)
    consts(); tk_addr()
    e.wait("x4")
    x = vt; a, b_ = vt+8, vt+9
    vPp = vG
    for i in range(4):
        e(f"v_lshlrev_b32 v{vPp+2*i}, 16, v{vX4+i}")
        e(f"v_and_b32 v{vPp+2*i+1}, 0xffff0000, v{vX4+i}")
    e(f"v_add_f32 v{a}, v{vPp}, v{vPp+1}")
    for i in range(2, 8): e(f"v_add_f32 v{a}, v{a}, v{vPp+i}")
    wave_sum(e, a, sRL)
    e(f"v_mul_f32 v{a}, {f32(1/512)}, v{a}")
    e(f"v_mov_b32 v{b_}, 0")
    for i in range(8):
        e(f"v_sub_f32 v{x+i}, v{vPp+i}, v{a}")
        e(f"v_fmac_f32 v{b_}, v{x+i}, v{x+i}")
    wave_sum(e, b_, sRL)
    e(f"v_mul_f32 v{b_}, {f32(1/512)}, v{b_}")
    round_bf16(e, a, a)
    round_bf16(e, b_, b_)
    e(f"v_add_f32 v{b_}, {f32(1e-5)}, v{b_}")
    round_bf16(e, b_, b_)
    e(f"v_sqrt_f32 v{b_}, v{b_}")
    e("s_nop 0")
    round_bf16(e, b_, b_)
    e(f"v_rcp_f32 v{b_}, v{b_}")
    for i in range(8): e(f"v_sub_f32 v{vPp+i}, v{vPp+i}, v{a}")
    for i in range(8): round_bf16(e, vPp+i, vPp+i)
    for i in range(8): e(f"v_mul_f32 v{vPp+i}, v{vPp+i}, v{b_}")
    for i in range(8): e(f"v_cvt_pk_bf16_f32 v{vPp+i}, v{vPp+i}, v{vPp+i}")
    e("s_waitcnt lgkmcnt(0)")
    e(f"s_load_dwordx2 s[{sTA}:{sTA+1}], s[22:23], 0x0")
    def coef(i):
        t, ee = i >> 3, i & 7
        d = vA + 2*(i & 1)
        e(f"v_and_b32_dpp v{d}, v{vPp+ee}, v{vM0} {dpp(f'quad_perm:[{t},{t},{t},{t}]')}")
        e(f"v_and_b32_dpp v{d+1}, v{vPp+ee}, v{vM1} {dpp(f'quad_perm:[{t},{t},{t},{t}]')}")
    coef(0)
    for i in range(32):
        if i + 1 < 32: coef(i+1)
        if i % 4 == 0: e.wait(f"u{i+3}")
        d = vA + 2*(i & 1)
        for hf, acc in ((0, vS), (1, vD2)):
            c = "0" if i == 0 else v4(acc)
            e(f"v_mfma_f32_16x16x16_bf16 {v4(acc)}, v[{d}:{d+1}], a[{aU+i*4+2*hf}:{aU+i*4+2*hf+1}], {c}")
    e(f"v_and_b32 v{x}, 3, v0")
    e(f"v_lshlrev_b32 v{x}, 5, v{x}")
    e(f"v_lshl_add_u32 v{x}, v{vb}, 7, v{x}")
    e(f"v_and_b32 v{x+1}, 7, v0")
    e(f"v_lshlrev_b32 v{x+1}, 4, v{x+1}")
    resolve_epoch(1)
    e("s_mov_b32 exec_lo, 0x00f0000f"); e("s_mov_b32 exec_hi, 0xf0000f00")
    e(f"ds_write_b128 v{x}, {v4(vS)} offset:{L_O}")
    e(f"ds_write_b128 v{x}, {v4(vD2)} offset:{L_O+16}")
    e("s_mov_b64 exec, -1")
    for p in range(4): e(f"ds_read_b128 {v4(vG+4*p)}, v{x+1} offset:{L_O+p*128}")
    e(f"v_mov_b32 v{vA+1}, s{sTA}"); e(f"v_mov_b32 v{vA+3}, s{sTB}")
    e("s_waitcnt lgkmcnt(0)")
    for r in range(4):
        e(f"v_add_f32 v{vG+r}, v{vG+r}, v{vG+4+r}")
        e(f"v_add_f32 v{vG+8+r}, v{vG+8+r}, v{vG+12+r}")
    for r in range(4): e(f"v_add_f32 v{vG+r}, v{vG+r}, v{vG+8+r}")
    for r in range(4): e(f"v_max_f32 v{vG+r}, s{sFlo}, v{vG+r}")
    e(f"v_cvt_pk_bf16_f32 v{vA}, v{vG}, v{vG+1}")
    e(f"v_cvt_pk_bf16_f32 v{vA+2}, v{vG+2}, v{vG+3}")
    e("s_mov_b64 exec, 0xff")
    e(f"buffer_store_dwordx4 {v4(vA)}, v{vVo}, s[{sWS}:{sWS+3}], s{sPub} offen sc1")
    e("s_mov_b64 exec, -1")
    stamp(1)
    e.label("L_join")
    if tlb:
        srd(e, sWO, 12, 4096*512*2); srd(e, sW2, 18, 1376*512*2)
        e(f"s_lshl_b32 s{T}, s{sH}, 17")
        e(f"s_mul_i32 s{T+1}, s{sH}, {40*1024}")
        e("s_mov_b64 exec, 1")
        e(f"buffer_load_dword v{vG+8}, v{vZero}, s[{sWO}:{sWO+3}], s{T} offen nt")
        e(f"buffer_load_dword v{vG+9}, v{vZero}, s[{sW2}:{sW2+3}], s{T+1} offen nt")
        e("s_mov_b64 exec, -1")
    e(f"s_lshl_b32 s{T}, s{sH}, 9")
    e("s_mov_b32 exec_hi, 0")
    poll("q", [f"buffer_load_dwordx4 {v4(vG)}, v{vVo}, s[{sWS}:{sWS+3}], s{T} offen sc1"], [vG])
    e(f"v_mov_b32 v{vG+1}, v{vG+2}")
    e(f"v_lshlrev_b32 v{vt+1}, 3, v0")
    e(f"ds_write_b64 v{vt+1}, v[{vG}:{vG+1}] offset:{L_QB}")
    e("s_mov_b32 exec_hi, -1")
    e(f"v_mov_b32 v{vt+2}, s{sTA}"); e(f"v_mov_b32 v{vt+3}, s{sTB}")
    e(f"ds_write_b64 v{vZero}, v[{vt+2}:{vt+3}] offset:{L_EP}")
    stamp(2)
    def proj(n, coef, data, rf=None):
        rf = rf or v4
        for r in range(4): e(f"v_and_b32 v{vA+r}, v{coef}, v{vMk+r}")
        for t in range(n):
            A4, A4n = (vA, vA2) if (t & 1) == 0 else (vA2, vA)
            if t + 1 < n:
                for r in range(4): e(f"v_and_b32 v{A4n+r}, v{coef+t+1}, v{vMk+r}")
            else: e("s_nop 0")
            c = "0" if t == 0 else v4(vS)
            e(f"v_mfma_f32_16x16x32_bf16 {v4(vS)}, {v4(A4)}, {rf(data+t*4)}, {c}")
    def proj_publish(base, dst=None, store=True):
        dst = vD2 if dst is None else dst
        e(f"s_lshl_b32 s{T}, s{sS}, 14")
        e(f"s_lshl_b32 s{T+1}, s{sH}, 9")
        e(f"s_add_u32 s{T}, s{T}, s{T+1}")
        e(f"s_add_u32 s{T}, s{T}, {base}")
        e(f"v_and_b32 v{vt}, 0x1ff, v{vSt}")
        e(f"v_mov_b32 v{dst+1}, s{sTA}"); e(f"v_mov_b32 v{dst+3}, s{sTB}")
        e("s_nop 1")
        e(f"v_permlane32_swap_b32 v{vS}, v{vS+2}")
        e(f"v_permlane32_swap_b32 v{vS+1}, v{vS+3}")
        e("s_nop 1")
        e(f"v_add_f32_dpp v{dst}, v{vS+2}, v{vS} {dpp('row_ror:8')}")
        e(f"v_add_f32_dpp v{dst+2}, v{vS+3}, v{vS+1} {dpp('row_ror:8')}")
        if not store: return
        e("s_mov_b32 exec_lo, 0x00ff00ff"); e("s_mov_b32 exec_hi, 0x00ff00ff")
        e(f"buffer_store_dwordx4 {v4(dst)}, v{vt}, s[{sWS}:{sWS+3}], s{T} offen sc1")
        e("s_mov_b64 exec, -1")
    ffn_range()
    e(f"s_lshl_b32 s{T+2}, s{sC0}, 5")
    e(f"s_add_u32 s{T+2}, s{T+2}, {HP}")
    e(f"s_lshl_b32 s{T+3}, s{sNC}, 1")
    for r in range(4): e(f"v_mov_b32 v{vG+r}, 0")
    e(f"s_bfm_b64 exec, s{T+3}, 0")
    poll("h", [f"buffer_load_dwordx4 {v4(vG)}, v{vVo}, s[{sWS}:{sWS+3}], s{T+2} offen sc1"], [vG])
    e("s_mov_b64 exec, 0xffff")
    e(f"v_mov_b32 v{vG+1}, v{vG+2}")
    e(f"v_lshlrev_b32 v{vt+4}, 3, v0")
    e(f"ds_write_b64 v{vt+4}, v[{vG}:{vG+1}] offset:{L_HT}")
    e("s_mov_b64 exec, -1")
    e(f"v_lshrrev_b32 v{vt+5}, 3, v0")
    e(f"v_lshlrev_b32 v{vt+5}, 1, v{vt+5}")
    for t in range(6): e(f"ds_read_u16 v{vG+4+t}, v{vt+5} offset:{L_HT+16*t}")
    e("s_waitcnt lgkmcnt(0)")
    for t in range(6): e(f"v_lshl_or_b32 v{vG+4+t}, v{vG+4+t}, 16, v{vG+4+t}")
    e.label("L_waitfl")
    e("s_sleep 4")
    e(f"ds_read_b32 v{vt}, v{vZero} offset:{L_FL}")
    e("s_waitcnt lgkmcnt(0)")
    e(f"v_cmp_eq_u32 vcc, 0, v{vt}")
    e("s_cbranch_vccnz L_waitfl")
    stamp(3)
    w2_loads()
    wo_loads()
    e("s_waitcnt vmcnt(16)")
    proj(6, vG+4, vW2)
    proj_publish(ZP, vHG, False)
    e(f"s_mov_b32 s{sU}, s{T}")
    e("s_branch L_tail0b")
    e.label("L_stream")
    if not st0: stamp(3)
    assert VF
    req_local()
    e(f"s_mov_b32 s{sCnt}, 4")
    e.label("L_K0")
    for b in range(4):
        e("s_waitcnt vmcnt(8)")
        qk(b)
        e("s_waitcnt lgkmcnt(0)")
        e(f"v_readfirstlane_b32 s{sJ}, v{vJ}")
        e(f"v_add_u32 v{vAd}, s{sB+b}, v{vL4}")
        e(f"s_cmp_ge_u32 s{sJ}, {N}")
        e(f"s_cbranch_scc1 L_T1m{b}")
        req_local(); addr_local()
        e(f"s_lshl_b32 s{sB+b}, s{sJ}, 8")
        score_store()
        issue(b, False, thr, gran)
    e("s_branch L_K0")
    for b in range(4):
        e.label(f"L_T1s{b}")
        e(f"s_sub_u32 s{sCnt}, s{sCnt}, 1")
        e(f"s_cmp_eq_u32 s{sCnt}, 0")
        e(f"s_cbranch_scc1 L_sync{b}")
        e("s_waitcnt vmcnt(8)")
        qk(b)
        e("s_waitcnt lgkmcnt(0)")
        e(f"v_readfirstlane_b32 s{sJ}, v{vJ}")
        e(f"v_add_u32 v{vAd}, s{sB+b}, v{vL4}")
        e.label(f"L_T1m{b}")
        req_local()
        e(f"s_sub_u32 s{sJ}, s{sJ}, {N}")
        e(f"s_cmp_lt_u32 s{sJ}, {N}")
        e(f"s_cselect_b32 s{sV+2}, 0x10000000, 0")
        e(f"s_min_u32 s{sJ}, s{sJ}, {N}")
        addr_local()
        e(f"s_lshl_b32 s{sB+b}, s{sJ}, 8")
        score_store()
        e(f"s_cmp_lg_u32 s{sCnt}, 1")
        e(f"s_cbranch_scc1 L_T1n{b}")
        e("s_nop 0")
        wave_max(vP, vM)
        e(f"s_lshl_b32 s{T}, s{sWave}, 2")
        e(f"v_mov_b32 v{vT}, s{T}")
        e("s_mov_b64 exec, 1")
        e(f"ds_write_b32 v{vT}, v{vP} offset:{L_WM}")
        e(f"ds_add_u32 v{vZero}, v{vOne} offset:{L_DN}")
        e("s_mov_b64 exec, -1")
        e.label(f"L_T1n{b}")
        issue(b, True, thrv, gran)
    e("s_branch L_T1s0")
    for b in range(4):
        e.label(f"L_sync{b}")
        e(f"ds_read_b32 v{vT}, v{vZero} offset:{L_DN}")
        e(f"ds_read_b128 {v4(vA)}, v{vZero} offset:{L_WM}")
        e("s_waitcnt lgkmcnt(0)")
        e(f"v_cmp_gt_u32 vcc, 3, v{vT}")
        e(f"s_cbranch_vccnz L_sync{b}")
        e(f"v_max3_f32 v{vM}, v{vA+1}, v{vA+2}, v{vA+3}")
        e(f"s_mov_b32 s{sV+2}, 0x10000000")
        if ts:
            e(f"s_cmp_eq_u32 s{sWave}, 0"); e(f"s_cbranch_scc1 L_V{b}")
            stamp(5)
        e(f"s_branch L_V{b}")
    def vloop(tag, lim, target, th):
        for b in range(4):
            e.label(f"L_{tag}{b}")
            e(f"v_add_u32 v{vAd}, s{sB+b}, v{vL4}")
            e(f"ds_read_b32 v{vT}, v{vAd} offset:{L_S}")
            e("s_waitcnt vmcnt(12) lgkmcnt(0)")
            e(f"v_readfirstlane_b32 s{sJ}, v{vJ}")
            prob(vT)
            e("s_nop 0")
            e(f"s_sub_u32 s{sJ}, s{sJ}, {N}")
            pv(b)
            e.label(f"L_{tag}m{b}")
            e(f"s_cmp_ge_u32 s{sJ}, {lim}")
            e(f"s_cbranch_scc1 L_{target}{b}")
            req_local(); addr_local()
            e(f"s_lshl_b32 s{sB+b}, s{sJ}, 8")
            issue(b, True, th, gran)
        e(f"s_branch L_{tag}0")
    if VF:
        vloop("V", N-VF, "VE", thrv)
        for b in range(4):
            e.label(f"L_VE{b}")
            e(f"s_mov_b32 s{sTk}, 1")
            e(f"s_atomic_add s{sTk}, s[{sTKa}:{sTKa+1}], 0x0 glc")
            e(f"s_branch L_Wm{b}")
        vloop("W", N, "T2_", thre)
    else:
        vloop("V", N, "T2_", thrv)
    for b in range(4):
        e.label(f"L_T2_{b}")
        rest = [(b+i) & 3 for i in (1, 2, 3)]
        for i, c in enumerate(rest):
            e(f"v_add_u32 v{vAd}, s{sB+c}, v{vL4}")
            e(f"ds_read_b32 v{vt+i}, v{vAd} offset:{L_S}")
        if ts:
            e(f"s_cmp_eq_u32 s{sWave}, 0"); e(f"s_cbranch_scc1 L_T2x{b}")
            stamp(1)
            e.label(f"L_T2x{b}")
        e("s_waitcnt lgkmcnt(0)")
        nt = 0
        if b % 2 == 0:
            take_dyn(b//2, 1); nt = 1; issue(b, False, thrd, gran)
        for i, c in enumerate(rest):
            prob(vt+i)
            e("s_waitcnt vmcnt(8)")
            e("s_nop 0")
            pv(c)
            if c % 2 == 0: nt += 1; take_dyn(c//2, nt)
            issue(c, c % 2 == 1, thrd, gran)
        if b % 2 == 1: issue(b, True, thrd, gran)
        first = b // 2 if b % 2 == 0 else ((b+1) & 3) // 2
        e(f"s_branch L_dyn{first}")
    for d in range(D): dyn_group(d)
    e("s_branch L_dyn0")
    e.label("L_done")
    if nost: e(f"s_mov_b32 s{sWS+2}, {WS_END}")
    stamp(4)
    if late == 2:
        e(f"s_cmp_lg_u32 s{sWave}, 0")
        e("s_cbranch_scc1 L_nowo")
        wo_loads()
        e.label("L_nowo")
    e(f"s_lshl_b32 s{T+1}, s{sWave}, 9")
    e(f"v_lshl_add_u32 v{vT}, v{vb}, 2, v{vn}")
    e(f"v_lshl_add_u32 v{vT}, v{vT}, 5, s{T+1}")
    e(f"s_lshl_b32 s{T+1}, s{sWave}, 3")
    e(f"v_mov_b32 v{vP}, s{T+1}")
    e("s_nop 2")
    e(f"v_add_f32_dpp v{vM+1}, v{vLa}, v{vLa} {dpp('row_shl:4')}")
    for u in range(1, 4):
        for j in range(8): e(f"v_add_f32_dpp v{vO+j}, v{vO+8*u+j}, v{vO+j} {dpp(f'row_shl:{4*u}')}")
        if u > 1: e(f"v_add_f32_dpp v{vM+1}, v{vLa}, v{vM+1} {dpp(f'row_shl:{4*u}')}")
    e("s_mov_b32 exec_lo, 0x000f000f"); e("s_mov_b32 exec_hi, 0x000f000f")
    e(f"ds_write_b128 v{vT}, {v4(vO)} offset:{L_O}")
    e(f"ds_write_b128 v{vT}, {v4(vO+4)} offset:{L_O+16}")
    e("s_mov_b64 exec, 1")
    e(f"ds_write_b64 v{vP}, v[{vM}:{vM+1}] offset:{L_ML}")
    e(f"ds_add_rtn_u32 v{vJ}, v{vZero}, v{vOne} offset:{L_DN}")
    e("s_mov_b64 exec, -1")
    e("s_waitcnt lgkmcnt(0)")
    e(f"v_readfirstlane_b32 s{T}, v{vJ}")
    e("s_nop 0")
    e(f"s_cmp_eq_u32 s{T}, 5")
    e("s_cbranch_scc1 L_tail0")
    e.label("L_fin")
    e(f"s_cmp_eq_u32 s{sWave}, 1")
    e("s_cbranch_scc0 L_exit")
    e(f"s_cmp_lt_u32 s{sH}, 4")
    e("s_cbranch_scc0 L_exit")
    srd(e, sOUT, 20, 1024)
    e(f"v_lshrrev_b32 v{vt}, 3, v0")
    e(f"v_and_b32 v{vt+1}, 7, v0")
    e(f"v_lshlrev_b32 v{vt+2}, 4, v{vt+1}")
    e(f"v_lshl_add_u32 v{vt}, v{vt}, 9, v{vt+2}")
    e(f"s_lshl_b32 s{T}, s{sS}, 14")
    e(f"s_lshl_b32 s{T+1}, s{sH}, 7")
    e(f"s_add_u32 s{T}, s{T}, s{T+1}")
    e(f"s_add_u32 s{T}, s{T}, {YP}")
    for j in range(1, 4): e(f"s_add_u32 s{T+j}, s{T}, {j*4096}")
    e(f"s_lshl_b32 s{T+4}, s{sS}, 7")
    e(f"s_lshl_b32 s{T+5}, s{sH}, 5")
    e(f"s_add_u32 s{T+4}, s{T+4}, s{T+5}")
    e(f"v_lshl_add_u32 v{vt+1}, v{vt+1}, 2, s{T+4}")
    e.label("L_waitf2")
    e(f"ds_read_b32 v{vt+3}, v{vZero} offset:{L_F2}")
    e("s_waitcnt lgkmcnt(0)")
    e(f"v_cmp_ne_u32 vcc, 2, v{vt+3}")
    if not nowf2: e("s_cbranch_vccnz L_waitf2")
    e(f"buffer_load_dword v{vt+3}, v{vt+1}, s[{sX}:{sX+3}], 0 offen")
    e(f"v_add_u32 v{vt+2}, {ZP-YP}, v{vt}")
    poll("yz", [f"buffer_load_dwordx4 {v4(vG+4*j)}, v{vt+2}, s[{sWS}:{sWS+3}], s{T+j} offen sc1" for j in range(4)] +
               [f"buffer_load_dwordx4 {v4(vG+16+4*j)}, v{vt}, s[{sWS}:{sWS+3}], s{T+j} offen sc1" for j in range(4)],
         [vG+4*j for j in range(8)])
    for q in range(2):
        g = vG + 16*q
        for k in (0, 2):
            e(f"v_add_f32 v{g+k}, v{g+k}, v{g+4+k}")
            e(f"v_add_f32 v{g+8+k}, v{g+8+k}, v{g+12+k}")
    for q in range(2):
        g = vG + 16*q
        e(f"v_add_f32 v{vS+2*q}, v{g}, v{g+8}")
        e(f"v_add_f32 v{vS+2*q+1}, v{g+2}, v{g+10}")
    e("s_nop 0")
    for k in range(4): e(f"v_add_f32_dpp v{vS+k}, v{vS+k}, v{vS+k} {dpp('row_ror:8')}")
    for swap in ("v_permlane16_swap_b32", "v_permlane32_swap_b32"):
        for k in range(4): e(f"v_mov_b32 v{vG+k}, v{vS+k}")
        e("s_nop 0")
        for k in range(4): e(f"{swap} v{vS+k}, v{vG+k}")
        for k in range(4): e(f"v_add_f32 v{vS+k}, v{vS+k}, v{vG+k}")
    for k in range(4): e(f"v_cvt_pk_bf16_f32 v{vS+k}, v{vS+k}, v{vS+k}")
    for k in range(4): e(f"v_and_b32 v{vS+k}, 0xffff0000, v{vS+k}")
    for k in range(2): e(f"v_mul_f32 v{vA+k}, {f32(-1.4426950408889634)}, v{vS+k}")
    for k in range(2): e(f"v_exp_f32 v{vA+k}, v{vA+k}")
    e(f"v_lshlrev_b32 v{vA+2}, 16, v{vt+3}")
    for k in range(2): e(f"v_add_f32 v{vA+k}, 1.0, v{vA+k}")
    for k in range(2): e(f"v_rcp_f32 v{vA+k}, v{vA+k}")
    e(f"v_and_b32 v{vA+3}, 0xffff0000, v{vt+3}")
    for k in range(2): e(f"v_mul_f32 v{vA+k}, v{vS+k}, v{vA+k}")
    for k in range(2): e(f"v_cvt_pk_bf16_f32 v{vA+k}, v{vA+k}, v{vA+k}")
    for k in range(2): e(f"v_and_b32 v{vA+k}, 0xffff0000, v{vA+k}")
    for k in range(2): e(f"v_mul_f32 v{vS+k}, v{vS+2+k}, v{vA+k}")
    for k in range(2): e(f"v_cvt_pk_bf16_f32 v{vS+k}, v{vS+k}, v{vS+k}")
    for k in range(2): e(f"v_and_b32 v{vS+k}, 0xffff0000, v{vS+k}")
    for k in range(2): e(f"v_add_f32 v{vS+k}, v{vA+2+k}, v{vS+k}")
    e(f"v_cvt_pk_bf16_f32 v{vS}, v{vS}, v{vS+1}")
    e("s_mov_b64 exec, 0xff")
    e(f"buffer_store_dword v{vS}, v{vt+1}, s[{sOUT}:{sOUT+3}], 0 offen {opol}")
    e("s_mov_b64 exec, -1")
    e("s_branch L_exit")
    e.label("L_tail0")
    ml = vO; op = vO + 8
    e(f"ds_read_b64 v[{ml+2}:{ml+3}], v{vZero} offset:{L_ML+8}")
    e(f"ds_read_b128 {v4(ml+4)}, v{vZero} offset:{L_ML+16}")
    e(f"v_lshlrev_b32 v{vP}, 3, v0")
    for p in range(1, 4): e(f"ds_read_b64 v[{op+2*p}:{op+2*p+1}], v{vP} offset:{L_O+p*512}")
    e(f"v_mov_b32 v{vA+1}, s{sTA}"); e(f"v_mov_b32 v{vA+3}, s{sTB}")
    e(f"v_mov_b32 v{vA2+1}, s{sTA}"); e(f"v_mov_b32 v{vA2+3}, s{sTB}")
    e(f"s_lshl_b32 s{T}, s{sP}, 10"); e(f"s_add_u32 s{T}, s{T}, {OP}")
    e(f"s_lshl_b32 s{T+1}, s{sP}, 4"); e(f"s_add_u32 s{T+1}, s{T+1}, {MLP}")
    e(f"s_add_u32 s{T+2}, s{T}, {LOC}"); e(f"s_add_u32 s{T+3}, s{T+1}, {LOC}")
    e("s_waitcnt lgkmcnt(3)")
    e(f"v_max3_f32 v{vA2}, v{ml+2}, v{ml+4}, v{ml+6}")
    for p in range(1, 4): e(f"v_sub_f32 v{ml+2*p}, v{ml+2*p}, v{vA2}")
    for p in range(1, 4): e(f"v_exp_f32 v{ml+2*p}, v{ml+2*p}")
    e("s_waitcnt lgkmcnt(0)")
    e(f"v_mul_f32 v{vA}, v{ml+2}, v{op+2}")
    e(f"v_mul_f32 v{vA+2}, v{ml+2}, v{op+3}")
    for p in range(2, 4):
        e(f"v_fmac_f32 v{vA}, v{ml+2*p}, v{op+2*p}")
        e(f"v_fmac_f32 v{vA+2}, v{ml+2*p}, v{op+2*p+1}")
    if loc: e(f"buffer_store_dwordx4 {v4(vA)}, v{vVo}, s[{sWS}:{sWS+3}], s{T+2} offen")
    else: e(f"buffer_store_dwordx4 {v4(vA)}, v{vVo}, s[{sWS}:{sWS+3}], s{T} offen sc1")
    e(f"v_mul_f32 v{vA2+2}, v{ml+2}, v{ml+3}")
    for p in range(2, 4): e(f"v_fmac_f32 v{vA2+2}, v{ml+2*p}, v{ml+2*p+1}")
    e("s_mov_b64 exec, 1")
    if loc: e(f"buffer_store_dwordx4 {v4(vA2)}, v{vZero}, s[{sWS}:{sWS+3}], s{T+3} offen")
    if not nofb: e(f"buffer_store_dwordx4 {v4(vA2)}, v{vZero}, s[{sWS}:{sWS+3}], s{T+1} offen sc1")
    e("s_mov_b64 exec, -1")
    if loc and not nofb: e(f"buffer_store_dwordx4 {v4(vA)}, v{vVo}, s[{sWS}:{sWS+3}], s{T} offen sc1")
    if pubw == 3:
        stamp(6)
        e("s_branch L_fin")
        e.label("L_tail0b")
    stamp(5)
    if late == 1: wo_loads()
    e(f"s_lshl_b32 s{T+3}, s{sH}, 13"); e(f"s_add_u32 s{T+3}, s{T+3}, {OP}")
    e(f"s_add_u32 s{T+4}, s{T+3}, 4096")
    e(f"s_lshl_b32 s{T+2}, s{sH}, 7"); e(f"s_add_u32 s{T+2}, s{T+2}, {MLP}")
    e(f"v_and_b32 v{vt}, 7, v0")
    e(f"v_lshlrev_b32 v{vt}, 4, v{vt}")
    e(f"v_lshlrev_b32 v{vVo}, 4, v0")
    e(f"v_lshlrev_b32 v{vt+1}, 7, v{vb}")
    e(f"v_and_b32 v{vt+2}, 1, v0")
    e(f"v_lshl_add_u32 v{vt+1}, v{vt+2}, 6, v{vt+1}")
    e(f"v_bfe_u32 v{vt+2}, v0, 1, 1")
    e(f"v_lshl_add_u32 v{vt+1}, v{vt+2}, 4, v{vt+1}")
    e(f"v_bfe_u32 v{vt+2}, v0, 2, 2")
    e(f"v_lshl_add_u32 v{vt+1}, v{vt+2}, 2, v{vt+1}")
    def oloads(vo, vm, pol):
        return [f"buffer_load_dwordx4 {v4(vG+4*j)}, v{vo}, s[{sWS}:{sWS+3}], s{T + 3 + (j>>2)} offen offset:{(j&3)*1024} {pol}" for j in range(8)] + \
               [f"buffer_load_dwordx4 {v4(vG+32)}, v{vm}, s[{sWS}:{sWS+3}], s{T+2} offen {pol}"]
    oregs = [vG+4*j for j in range(9)]
    if loc:
        e(f"v_add_u32 v{vt+3}, {LOC}, v{vVo}")
        e(f"v_add_u32 v{vt+4}, {LOC}, v{vt}")
        e(f"s_mov_b32 s{T+7}, {NLOC}")
        e.label("L_poll_l")
        for l in oloads(vt+3, vt+4, lpol): e(l)
        e(f"s_sub_u32 s{T+7}, s{T+7}, 1")
        e("s_waitcnt vmcnt(0)")
        tagcheck(oregs, vt+10, vt+8)
        e("s_cbranch_vccz L_polld_o")
        e(f"s_cmp_lg_u32 s{T+7}, 0")
        e("s_cbranch_scc1 L_poll_l")
    poll("o", oloads(vVo, vt, "sc1"), oregs, wo_loads if late == 3 else None, 16)
    e(f"v_mov_b32 v{vt+5}, 2")
    e(f"ds_write_b32 v{vZero}, v{vt+5} offset:{L_F2}")
    e("s_mov_b32 exec_lo, 0x00ff00ff"); e("s_mov_b32 exec_hi, 0x00ff00ff")
    e(f"buffer_store_dwordx4 {v4(vHG)}, v{vSt}, s[{sWS}:{sWS+3}], s{sU} offen sc1")
    e("s_mov_b64 exec, -1")
    stamp(6)
    mm, ll = vG+32, vG+34
    cs = ("quad_perm:[1,0,3,2]", "quad_perm:[2,3,0,1]", "row_half_mirror")
    e(f"v_max_f32_dpp v{vT}, v{mm}, v{mm} {dpp(cs[0])}")
    for c in cs[1:]:
        e("s_nop 1")
        e(f"v_max_f32_dpp v{vT}, v{vT}, v{vT} {dpp(c)}")
    e(f"v_sub_f32 v{vT}, v{mm}, v{vT}")
    e(f"v_exp_f32 v{vT}, v{vT}")
    e("s_nop 0")
    e(f"v_mul_f32 v{vP}, v{vT}, v{ll}")
    if late != 5: e(f"v_lshlrev_b32 v{vt+1}, 3, v0")
    else: e("s_nop 0")
    for j in range(8):
        if 1 <= j <= 3: e(f"v_add_f32_dpp v{vP}, v{vP}, v{vP} {dpp(cs[j-1])}")
        if j == 5: e(f"v_rcp_f32 v{vP}, v{vP}")
        for k in range(2):
            e(f"v_{'mul' if j < 2 else 'fmac'}_f32_dpp v{vA+2*(j&1)+k}, v{vT}, v{vG+4*j+2*k} {dpp(f'row_newbcast:{j}')}")
    for k in range(2): e(f"v_add_f32 v{vA+k}, v{vA+k}, v{vA+2+k}")
    for k in range(2): e(f"v_mul_f32 v{vA+k}, v{vA+k}, v{vP}")
    for k in range(2): e(f"v_cvt_pk_bf16_f32 v{vA+k}, v{vA+k}, v{vA+k}")
    if late == 5:
        e(f"ds_write_b32 v{vt+1}, v{vA} offset:{L_OC}")
        e(f"ds_write_b32 v{vt+1}, v{vA+1} offset:{L_OC+32}")
    else: e(f"ds_write_b64 v{vt+1}, v[{vA}:{vA+1}] offset:{L_OC}")
    e(f"v_lshrrev_b32 v{vP}, 3, v0")
    e(f"v_lshlrev_b32 v{vP}, 6, v{vP}")
    for q in range(4): e(f"ds_read_b128 {v4(vG+4*q)}, v{vP} offset:{L_OC+16*q}")
    e("s_waitcnt lgkmcnt(0)")
    if late == 5: proj(16, vG, 0, a4)
    else: proj(16, vG, vW)
    proj_publish(YP)
    e.label("L_exit")
    if ts:
        stamp(7)
        e("s_lshl_b32 s88, s2, 2"); e(f"s_add_u32 s88, s88, s{sWave}"); e("s_lshl_b32 s88, s88, 5")
        e("s_add_u32 s88, s88, 0x20000000")
        e("s_add_u32 s24, s24, s88"); e("s_addc_u32 s25, s25, 0")
        e("s_mov_b64 exec, 1")
        e(f"global_store_dwordx4 v{vZero}, {v4(vTS)}, s[24:25]")
        e(f"global_store_dwordx4 v{vZero}, {v4(vTS+4)}, s[24:25] offset:16")
    e.label("L_end")
    e("s_endpgm")
    for u, slot in stubs:
        e.label(f"L_inv{u}")
        e(f"ds_write_b32 v{vZero}, v{vOne} offset:{L_FL}")
        e(f"s_branch L_notk{u}")
    for d in resc:
        e.label(f"L_resc{d}")
        e("s_nop 0")
        e(f"v_max_f32_dpp v{vP}, v{vT}, v{vT} {dpp('row_ror:4')}")
        e("s_nop 1")
        e(f"v_max_f32_dpp v{vP}, v{vP}, v{vP} {dpp('row_ror:8')}")
        e("s_nop 0")
        for i in range(4): e(f"v_readlane_b32 s{sRL+i}, v{vP}, {16*i}")
        e("s_nop 1")
        e(f"v_max_f32 v{vP}, s{sRL}, v{vM}")
        for i in range(1, 4): e(f"v_max_f32 v{vP}, s{sRL+i}, v{vP}")
        e(f"v_sub_f32 v{vA}, v{vM}, v{vP}")
        e(f"v_exp_f32 v{vA}, v{vA}")
        e(f"v_mov_b32 v{vM}, v{vP}")
        e(f"v_mul_f32 v{vLa}, v{vLa}, v{vA}")
        for i in range(0, 32, 2): e(f"v_pk_mul_f32 v[{vO+i}:{vO+i+1}], v[{vO+i}:{vO+i+1}], v[{vA}:{vA+1}] op_sel_hi:[1,0]")
        e(f"s_branch L_back{d}")

def desc(name, nv, ns, acc):
    return f""".amdhsa_kernel {name}
  .amdhsa_next_free_vgpr {nv}
  .amdhsa_next_free_sgpr {ns}
  .amdhsa_accum_offset {acc}
  .amdhsa_group_segment_fixed_size 0
  .amdhsa_kernarg_size 88
  .amdhsa_user_sgpr_count 2
  .amdhsa_user_sgpr_kernarg_segment_ptr 1
  .amdhsa_system_sgpr_workgroup_id_x 1
  .amdhsa_float_denorm_mode_32 3
.end_amdhsa_kernel
"""

def build(**kw):
    e = E()
    e.raw(HEADER.rstrip())
    lds = L_S + (4*kw.get("NS", 60) + 1)*256
    e.raw(f"; @launch grid=(256,1,1) block=(256,1,1) lds={lds}")
    e.raw('.amdgcn_target "amdgcn-amd-amdhsa--gfx950"')
    e.raw(".text")
    gen_main(e, **kw)
    e.raw('.section .rodata,"a"'); e.raw(".p2align 6")
    e.raw(desc(KNAME, 512, 102, 256))
    return e.text()

if __name__ == "__main__":
    out = sys.argv[1]
    kw = eval("dict(%s)" % (sys.argv[2] if len(sys.argv) > 2 else ""))
    open(out, "w").write(build(**kw))
```

```python
import sys, struct
KNAME = "recurrent_scan__gqa_block_cached__dense_activation_relu__decode_kernel"
HEADER = open("recurrent_scan__gqa_block_cached__dense_activation_relu__decode.s.ref").read().split("; Override launch")[0]

def f32(x): return "0x%08x" % struct.unpack("<I", struct.pack("<f", x))[0]

class E:
    def __init__(self): self.L = []; self.vm = []
    def __call__(self, s): self.L.append("  " + s)
    def label(self, s): self.L.append(s + ":")
    def raw(self, s): self.L.append(s)
    def c(self, s): self.L.append("  ; " + s)
    def mem(self, s, tag):
        self.L.append("  " + s); self.vm.append(tag)
    def wait(self, tag, gen=None):
        idxs = [i for i, t in enumerate(self.vm) if t == tag]
        idx = idxs[-1] if gen is None else idxs[4*gen+3]
        n = len(self.vm) - 1 - idx
        self(f"s_waitcnt vmcnt({min(59, n)})")
    def text(self): return "\n".join(self.L) + "\n"

QP, HP, OP, MLP, YP, ZP, TK, WS_END = 0x0, 0x40000, 0x60000, 0xA0000, 0xB0000, 0xD0000, 0xF0000, 0x1B0000
LOC = 0x100000
L_FL, L_F2, L_F3, L_G = 0x120, 0x124, 0x128, 0x300
L_QB, L_EP, L_CT, L_DN, L_WM, L_HT, L_O, L_ML, L_OC, L_S = 0x0, 0x100, 0x108, 0x10C, 0x110, 0x140, 0x400, 0xC00, 0xD00, 0x1000
OOB = 0x40000000
POLL_MAX = 400000

def dpp(ctrl): return f"{ctrl} row_mask:0xf bank_mask:0xf"

def wave_sum(e, v, sa):
    for c in ("quad_perm:[1,0,3,2]", "quad_perm:[2,3,0,1]", "row_half_mirror", "row_mirror"):
        e("s_nop 1")
        e(f"v_add_f32_dpp v{v}, v{v}, v{v} {dpp(c)}")
    e("s_nop 0")
    for i in range(4): e(f"v_readlane_b32 s{sa+i}, v{v}, {16*i}")
    e("s_nop 1")
    e(f"v_mov_b32 v{v}, s{sa}")
    for i in range(1, 4): e(f"v_add_f32 v{v}, s{sa+i}, v{v}")

def round_bf16(e, vd, vs):
    e(f"v_cvt_pk_bf16_f32 v{vd}, v{vs}, v{vs}")
    e(f"v_and_b32 v{vd}, 0xffff0000, v{vd}")

def srd(e, d, b, nbytes):
    e(f"s_mov_b32 s{d}, s{b}"); e(f"s_mov_b32 s{d+1}, s{b+1}")
    e(f"s_mov_b32 s{d+2}, {nbytes}"); e(f"s_mov_b32 s{d+3}, 0x00020000")

def gen_main(e, G=1, NS=60, DA=16, thrf=6, thr=(5,6,6,6), thrv=6, thrd=12, ts=False, noex=False, now='', rotr=False, pg='r', gran=1, granf=1, nost=False, nocomp=False, BU=8, upol='nt', VF=8, thre=12, opol='', st0=False, pre=2, late=6, tlb=1, pubw=3, loc=1, NLOC=80, lpol='nt', nofb=False, finh=0, nowf2=False, NSET=1, slp=5, zearly=True, lazy=True):
    D = 2; N = 4*NS
    if thrv is None: thrv = thr
    if thrd is None: thrd = thr
    m = 8 // G; lg = G.bit_length()-1; lm = m.bit_length()-1
    DYN = NS*32
    sK, sV, sWQ, sWO, sX, sW1, sW2, sWS, sOUT = 28, 32, 36, 40, 44, 48, 52, 56, 76
    sH, sS, sWave = 60, 61, 3
    sU, sCnt, sNC = 62, 64, 65
    sB = 36
    T = 66
    sHB, sP = 74, 75
    sTA, sTB = 80, 81
    sTk, sC0, sTKa = 84, 85, 86
    sEnd, sEnd2, sPos, sJ, sO = 88, 89, 90, 91, 92
    sRL = 96
    sTS = 100
    vZero, vKo, vVo, vM, vC, vT, vP, vM0, vM1, vSt = 1, 2, 3, 4, 6, 7, 8, 9, 10, 11
    vB = 12; vb, vn = 14, 15
    vS = 16; vMk = 20; vA = 24; vA2 = 28; vD2 = 32
    vBq = 36; vO = 52; vW = 84
    vW2 = 148; vG = 172
    vLa = 220
    vOnes = 224
    vJ, vOne, vWOo, vPP = 226, 227, 228, 229
    vL4, vAd = 230, 231
    vX4 = 232
    vHG = 232
    vt = 236
    vTS = 248
    def stamp(i):
        if ts:
            e(f"s_memrealtime s[{sTS}:{sTS+1}]")
            e("s_waitcnt lgkmcnt(0)")
            e(f"v_mov_b32 v{vTS+i}, s{sTS}")
    def bbase(b, i):
        if b < 16: return "a", b*16 + i*4
        return "v", vW + (b-16)*16 + i*4
    def buf(b, i): c, r = bbase(b, i); return f"{c}[{r}:{r+3}]"
    def bufh(b, i, half): c, r = bbase(b, i); r += 2*half; return f"{c}[{r}:{r+1}]"
    def v4(r): return f"v[{r}:{r+3}]"
    def a4(r): return f"a[{r}:{r+3}]"
    assert 4 <= DA <= 20
    rounds = []
    cur = list(range(DA))
    while True:
        if len(cur) <= 8:
            step = (len(cur)-1) / 3
            keep = [cur[round(i*step)] for i in range(4)]
        else: keep = cur[0::2]
        rounds.append([(p, p in keep) for p in cur])
        cur = keep
        if len(cur) == 4: break
    buf_of = {p: i for i, p in enumerate(cur)}
    nxt = 4
    for p in range(DA):
        if p not in buf_of: buf_of[p] = nxt; nxt += 1
    assert buf_of[0] == 0
    NREF = sum(r for rd in rounds for _, r in rd)
    J1 = 3*DA
    J2 = J1
    J3 = J2 + 3*NREF
    assert J3 <= N

    e.raw(f".globl {KNAME}"); e.raw(".p2align 8"); e.raw(f".type {KNAME},@function"); e.label(KNAME)
    e("s_cmp_ge_u32 s2, 256")
    e("s_cbranch_scc1 L_end")
    e("s_load_dwordx16 s[4:19], s[0:1], 0")
    e("s_load_dwordx4 s[20:23], s[0:1], 64")
    e("s_load_dwordx2 s[24:25], s[0:1], 80")
    e(f"s_memrealtime s[{sTA}:{sTA+1}]")
    e("v_lshrrev_b32 v1, 6, v0")
    e("v_and_b32 v0, 63, v0")
    e(f"s_and_b32 s{T}, s2, 7")
    e(f"v_readfirstlane_b32 s{sWave}, v1")
    e(f"s_lshr_b32 s{T+1}, s2, 3")
    e(f"s_lshr_b32 s{T+2}, s{T}, {lg}")
    e(f"s_and_b32 s{T+3}, s{T}, {G-1}")
    e(f"s_lshr_b32 s{sH}, s{T+1}, {lm}")
    e(f"s_and_b32 s{T+4}, s{T+1}, {m-1}")
    e(f"s_mul_i32 s{sH}, s{sH}, {8//G}")
    e(f"s_add_u32 s{sH}, s{sH}, s{T+2}")
    e(f"s_mul_i32 s{sS}, s{T+3}, {m}")
    e(f"s_add_u32 s{sS}, s{sS}, s{T+4}")
    e(f"s_lshl_b32 s{sHB}, s{sH}, 23")
    if G == 8: e(f"s_add_u32 s{sPos}, s{sS}, s{sH}")
    else: e(f"s_mov_b32 s{sPos}, s{sS}")
    e(f"s_and_b32 s{sPos}, s{sPos}, 7")
    sCw = 63
    e(f"s_lshr_b32 s{sCw}, s{sH}, 3")
    e(f"v_lshrrev_b32 v{vb}, 4, v0")
    e(f"v_and_b32 v{vn}, 15, v0")
    e(f"v_lshlrev_b32 v{vVo}, 4, v0")
    e(f"v_bfe_u32 v{vt}, v0, 2, 2")
    e(f"v_lshlrev_b32 v{vKo}, 8, v{vt}")
    e(f"v_lshl_add_u32 v{vKo}, v{vb}, 6, v{vKo}")
    e(f"v_and_b32 v{vt+1}, 3, v0")
    e(f"v_lshl_add_u32 v{vKo}, v{vt+1}, 4, v{vKo}")
    e(f"v_mov_b32 v{vZero}, 0")
    e(f"v_mov_b32 v{vt}, 0"); e(f"v_mov_b32 v{vt+1}, 0"); e(f"v_mov_b32 v{vt+2}, {J3}"); e(f"v_mov_b32 v{vt+3}, 0")
    e(f"ds_write_b128 v{vZero}, {v4(vt)} offset:{L_EP}")
    e(f"ds_write_b64 v{vZero}, v[{vt}:{vt+1}] offset:{L_FL}")
    e(f"ds_write_b64 v{vZero}, v[{vt}:{vt+1}] offset:{L_FL+8}")
    e(f"v_lshlrev_b32 v{vt+4}, 2, v0")
    e(f"v_add_u32 v{vt+4}, {N*256}, v{vt+4}")
    e(f"v_mov_b32 v{vt+5}, {f32(-3.0e38)}")
    e(f"ds_write_b32 v{vt+4}, v{vt+5} offset:{L_S}")

    def addr_local():
        if BU == 8:
            assert pg == 'r' and not rotr and N % 8 == 0
            e(f"s_lshr_b32 s{sO+1}, s{sJ}, 3")
            e(f"s_lshl_b32 s{sO+1}, s{sO+1}, 3")
            e(f"s_add_u32 s{sO+1}, s{sO+1}, s{sPos}")
            e(f"s_lshl_b32 s{sO+1}, s{sO+1}, 1")
            e(f"s_lshl_b32 s{sO+2}, s{sCw}, 1")
            e(f"s_add_u32 s{sO+2}, s{sJ}, s{sO+2}")
            e(f"s_and_b32 s{sO+2}, s{sO+2}, 7")
            blk_addr(); return
        e(f"s_lshr_b32 s{sO+1}, s{sJ}, 2")
        if G == 8 and rotr:
            e(f"s_add_u32 s{sO+2}, s{sO+1}, s{sPos}")
            e(f"s_and_b32 s{sO+2}, s{sO+2}, 7")
            e(f"s_lshl_b32 s{sO+1}, s{sO+1}, 3")
            e(f"s_add_u32 s{sO+1}, s{sO+1}, s{sO+2}")
        else:
            e(f"s_lshl_b32 s{sO+1}, s{sO+1}, 3")
            e(f"s_add_u32 s{sO+1}, s{sO+1}, s{sPos}")
        if pg:
            e(f"s_add_u32 s{sO+2}, s{sJ}, s{sCw}")
            e(f"s_and_b32 s{sO+2}, s{sO+2}, 3")
        else:
            e(f"s_and_b32 s{sO+2}, s{sJ}, 3")
        blk_addr()
    def blk_addr():
        e(f"s_lshl_b32 s{sO+1}, s{sO+1}, 14")
        e(f"s_lshl_b32 s{sO+2}, s{sO+2}, {10 if pg == 'x' else 12}")
        e(f"s_add_u32 s{sO+1}, s{sO+1}, s{sO+2}")
        e(f"s_add_u32 s{sO}, s{sO+1}, s{sHB}")
        if pg == 'x':
            for i in range(1, 4): e(f"s_xor_b32 s{sO+i}, s{sO}, {i*5120}")
    def so(i): return f"s{sO+i} offen" if pg == 'x' else f"s{sO} offen offset:{i*1024}"
    def req_local():
        e("s_mov_b64 exec, 1")
        e(f"ds_add_rtn_u32 v{vJ}, v{vZero}, v{vOne} offset:{L_CT}")
        e("s_mov_b64 exec, -1")
    def issue(b, isV, th=None, gr=1):
        vo, sr = (vVo, sV) if isV else (vKo, sK)
        for i in range(4):
            if th is not None and i % gr == 0: e(f"s_waitcnt vmcnt({th[i] if isinstance(th, (list, tuple)) else th})")
            e.mem(f"buffer_load_dwordx4 {buf(b,i)}, v{vo}, s[{sr}:{sr+3}], {so(i)} nt", f"B{b}")

    def consts():
        t = vt+8
        e(f"v_and_b32 v{t}, 1, v0")
        e(f"v_lshlrev_b32 v{t}, 4, v{t}")
        e(f"v_mov_b32 v{t+1}, 0xffff")
        e(f"v_lshlrev_b32 v{t+1}, v{t}, v{t+1}")
        e(f"v_and_b32 v{t+2}, 2, v0")
        e(f"v_cmp_eq_u32 vcc, 0, v{t+2}")
        e(f"v_bfe_u32 v{t+2}, v0, 1, 2")
        e("s_nop 0")
        e(f"v_cndmask_b32 v{vM0}, 0, v{t+1}, vcc")
        e(f"v_cndmask_b32 v{vM1}, v{t+1}, 0, vcc")
        for r in range(4):
            e(f"v_cmp_eq_u32 vcc, {r}, v{t+2}")
            e("s_nop 1")
            e(f"v_cndmask_b32 v{vMk+r}, 0, v{t+1}, vcc")
        e(f"v_mov_b32 v{vC}, {f32((128**-0.5)*1.4426950408889634)}")
        e(f"v_mov_b32 v{vM}, {f32(-3.0e38)}")
        for i in range(4): e(f"v_mov_b32 v{vLa+i}, 0")
        e(f"v_mov_b32 v{vOnes}, 0x3f803f80"); e(f"v_mov_b32 v{vOnes+1}, 0x3f803f80")
        for i in range(32): e(f"v_mov_b32 v{vO+i}, 0")
        e(f"v_mov_b32 v{vOne}, 1")
        e(f"v_lshlrev_b32 v{vL4}, 2, v0")
        e(f"v_lshlrev_b32 v{vSt}, 6, v{vn}")
        e(f"v_and_b32 v{t}, 1, v{vb}")
        e(f"v_lshl_add_u32 v{vSt}, v{t}, 5, v{vSt}")
        e(f"v_lshrrev_b32 v{t}, 1, v{vb}")
        e(f"v_lshl_add_u32 v{vSt}, v{t}, 4, v{vSt}")
        srd(e, sWS, 24, 0 if nost else WS_END); srd(e, sX, 4, 1024)
        e(f"s_mov_b32 s{sEnd}, 0x7fffffff")
        e(f"s_lshl_b32 s{sP}, s{sH}, 3")
        e(f"s_add_u32 s{sP}, s{sP}, s{sS}")
    def ffn_range():
        e(f"s_min_u32 s{T}, s{sH}, 12")
        e(f"s_mul_i32 s{sC0}, s{sH}, 5")
        e(f"s_add_u32 s{sC0}, s{sC0}, s{T}")
        e(f"s_cmp_lt_u32 s{sH}, 12")
        e(f"s_cselect_b32 s{sNC}, 6, 5")
    def tk_addr():
        e(f"s_lshl_b32 s{T}, s{sH}, 8")
        e(f"s_add_u32 s{T}, s{T}, {TK}")
        e(f"s_add_u32 s{sTKa}, s24, s{T}")
        e(f"s_addc_u32 s{sTKa+1}, s25, 0")

    sTL = sTA + 2
    def local_tag():
        e(f"s_getreg_b32 s{sTL}, hwreg(HW_REG_XCC_ID, 0, 4)")
        e(f"s_add_u32 s{sTL}, s{sTL}, 1")
        e(f"s_lshl_b32 s{sTL}, s{sTL}, 24")
        e(f"s_xor_b32 s{sTL}, s{sTL}, s{sTB}")
    def tagcheck(regs, acc, tmp, tb=None):
        tb = sTB if tb is None else tb
        for k, r in enumerate(regs):
            e(f"v_xor_b32 v{tmp}, s{sTA}, v{r+1}")
            e(f"v_xor_b32 v{tmp+1}, s{tb}, v{r+3}")
            if k == 0: e(f"v_or_b32 v{acc}, v{tmp}, v{tmp+1}")
            else: e(f"v_or3_b32 v{acc}, v{tmp}, v{tmp+1}, v{acc}")
        e(f"v_cmp_ne_u32 vcc, 0, v{acc}")
    def poll(name, loads, regs, after=None, nafter=0):
        if noex and name in ("q", "h"):
            e("s_waitcnt vmcnt(0)"); return
        if after is not None:
            for l in loads: e(l)
            after()
            e(f"s_waitcnt vmcnt({nafter})")
            tagcheck(regs, vt+10, vt+8)
            e(f"s_cbranch_vccz L_polld_{name}")
        e(f"s_mov_b32 s{T+7}, {POLL_MAX}")
        e.label(f"L_poll_{name}")
        for l in loads: e(l)
        e(f"s_sub_u32 s{T+7}, s{T+7}, 1")
        e("s_waitcnt vmcnt(0)")
        tagcheck(regs, vt+10, vt+8)
        e(f"s_cbranch_vccz L_polld_{name}")
        e(f"s_cmp_lg_u32 s{T+7}, 0")
        e(f"s_cbranch_scc1 L_poll_{name}")
        e.label(f"L_polld_{name}")

    def build_bq():
        u0 = vt
        e(f"v_and_b32 v{u0}, 3, v0")
        e(f"v_lshl_add_u32 v{u0}, v{vb}, 2, v{u0}")
        e(f"v_lshlrev_b32 v{u0}, 4, v{u0}")
        e(f"ds_read_b128 {v4(vA)}, v{u0} offset:{L_QB}")
        e(f"v_bfe_u32 v{u0+1}, v0, 2, 2")
        e("s_waitcnt lgkmcnt(0)")
        for u in range(4):
            e(f"v_cmp_eq_u32 vcc, {u}, v{u0+1}")
            e("s_nop 1")
            for r in range(4): e(f"v_cndmask_b32 v{vBq+4*u+r}, 0, v{vA+r}, vcc")

    resc = []
    def qk(b):
        if nocomp: return
        for u in range(4):
            c = "0" if u == 0 else v4(vS)
            e(f"v_mfma_f32_16x16x32_bf16 {v4(vS)}, {buf(b,u)}, {v4(vBq+4*u)}, {c}")
    def score():
        for r in range(4):
            e(f"v_mul_f32_dpp v{vA+r}, v{vS+r}, v{vC} {dpp(f'quad_perm:[{r},{r},{r},{r}]')}")
        e(f"v_add_f32 v{vA}, v{vA}, v{vA+1}")
        e(f"v_add_f32 v{vA+2}, v{vA+2}, v{vA+3}")
        e(f"v_add_f32 v{vT}, v{vA}, v{vA+2}")
    def score_store():
        score()
        e(f"v_max_f32 v{vM}, v{vM}, v{vT}")
        e(f"ds_write_b32 v{vAd}, v{vT} offset:{L_S}")
    def prob(src):
        e(f"v_sub_f32 v{vP}, v{src}, v{vM}")
        e(f"v_exp_f32 v{vP}, v{vP}")
        e("s_nop 0")
        e(f"v_cvt_pk_bf16_f32 v{vP}, v{vP}, v{vP}")
        e(f"v_and_b32 v{vB}, v{vP}, v{vM0}")
        e(f"v_and_b32 v{vB+1}, v{vP}, v{vM1}")
    def pv(b):
        if nocomp: return
        e(f"v_mfma_f32_16x16x16_bf16 {v4(vLa)}, v[{vOnes}:{vOnes+1}], v[{vB}:{vB+1}], {v4(vLa)}")
        for u in range(4):
            for hf in range(2):
                o = vO + (u*2+hf)*4
                e(f"v_mfma_f32_16x16x16_bf16 {v4(o)}, {bufh(b,u,hf)}, v[{vB}:{vB+1}], {v4(o)}")
    def wave_max(dst, src):
        e(f"v_max_f32_dpp v{dst}, v{src}, v{src} {dpp('row_ror:4')}")
        e("s_nop 1")
        e(f"v_max_f32_dpp v{dst}, v{dst}, v{dst} {dpp('row_ror:8')}")
        e("s_nop 0")
        for i in range(4): e(f"v_readlane_b32 s{sRL+i}, v{dst}, {16*i}")
        e("s_nop 1")
        e(f"v_mov_b32 v{dst}, s{sRL}")
        for i in range(1, 4): e(f"v_max_f32 v{dst}, s{sRL+i}, v{dst}")
    uniq = [0]
    stubs = []
    def take_dyn(slot, endval=2):
        uniq[0] += 1
        e("s_waitcnt lgkmcnt(0)")
        e(f"s_cmp_lt_u32 s{sTk}, {2048-DYN}")
        e(f"s_cselect_b32 s{sK+2}, 0x10000000, 0")
        e(f"s_cselect_b32 s{sV+2}, 0x10000000, 0")
        e(f"s_cselect_b32 s{sEnd2}, s{sEnd}, {endval}")
        e(f"s_cselect_b32 s{sU}, s{sTk}, 0")
        e(f"s_cbranch_scc0 L_inv{uniq[0]}")
        e(f"s_mov_b32 s{sTk}, 1")
        e(f"s_atomic_add s{sTk}, s[{sTKa}:{sTKa+1}], 0x0 glc")
        e.label(f"L_notk{uniq[0]}")
        e(f"s_min_u32 s{sEnd}, s{sEnd}, s{sEnd2}")
        e(f"s_add_u32 s{sU}, s{sU}, {DYN}")
        e(f"s_lshr_b32 s{sO+1}, s{sU}, 2")
        e(f"s_and_b32 s{sO+2}, s{sU}, 3")
        blk_addr()
        e.label(f"L_tkd{uniq[0]}")
        stubs.append((uniq[0], slot))
    def dyn_group(d):
        e.label(f"L_dyn{d}")
        e(f"s_sub_u32 s{sEnd}, s{sEnd}, 1")
        e(f"s_cmp_eq_u32 s{sEnd}, 0")
        e("s_cbranch_scc1 L_done")
        e("s_waitcnt vmcnt(12)")
        qk(2*d)
        take_dyn(d)
        issue(2*d, False, thrd, gran)
        score()
        e(f"v_cmp_gt_f32 vcc, v{vT}, v{vM}")
        e(f"s_cbranch_vccnz L_rescd{d}")
        e.label(f"L_backd{d}")
        resc.append(f"d{d}")
        prob(vT)
        e("s_waitcnt vmcnt(12)")
        e("s_nop 0")
        pv(2*d+1)
        issue(2*d+1, True, thrd, gran)
    def k_static(b, gen, jcur, jref):
        e.wait(f"B{b}", gen)
        qk(b)
        e(f"s_add_u32 s{T}, s{sWave}, {jcur-1}")
        e(f"s_lshl_b32 s{T}, s{T}, 8")
        e(f"v_add_u32 v{vAd}, s{T}, v{vL4}")
        if jref is not None:
            e(f"s_add_u32 s{sJ}, s{sWave}, {jref-1}")
            addr_local()
            if b < 4: e(f"s_lshl_b32 s{sB+b}, s{sJ}, 8")
        else: e("s_nop 4")
        score_store()
        if jref is not None: issue(b, False, thr, gran)

    e(f"s_cmp_eq_u32 s{sWave}, 0")
    e("s_cbranch_scc1 L_wave0")
    e(f"s_add_u32 s{sJ}, s{sWave}, -1")
    addr_local()
    e("s_waitcnt lgkmcnt(0)")
    if ts:
        e(f"v_mov_b32 v{vTS}, s{sTA}")
        for i in range(1, 8): e(f"v_mov_b32 v{vTS+i}, 0")
    srd(e, sK, 6, 0x10000000); srd(e, sV, 8, 0x10000000)
    if st0: stamp(6)
    issue(0, False)
    e(f"s_add_u32 s{sJ}, s{sWave}, 2")
    addr_local(); issue(buf_of[1], False)
    e("s_barrier")
    consts(); tk_addr()
    if st0:
        e("s_waitcnt vmcnt(7)"); stamp(3)
    for p in range(2, DA):
        e(f"s_add_u32 s{sJ}, s{sWave}, {3*p - 1}")
        addr_local(); issue(buf_of[p], False, thrf if p >= pre else None, granf)
    e.label("L_waitq")
    e(f"ds_read_b64 v[{vt+2}:{vt+3}], v{vZero} offset:{L_EP}")
    e("s_waitcnt lgkmcnt(0)")
    e(f"v_or_b32 v{vt+4}, v{vt+2}, v{vt+3}")
    e(f"v_cmp_eq_u32 vcc, 0, v{vt+4}")
    e("s_cbranch_vccnz L_waitq")
    e(f"v_readfirstlane_b32 s{sTA}, v{vt+2}")
    e(f"v_readfirstlane_b32 s{sTB}, v{vt+3}")
    e("s_nop 0")
    local_tag()
    build_bq()
    stamp(2)
    k = 0
    jc = {p: 3*p for p in range(DA)}
    for gi, rd in enumerate(rounds):
        for p, rf in rd:
            k_static(buf_of[p], gi, jc[p], J2 + 3*k if rf else None)
            if rf: jc[p] = J2 + 3*k
            k += rf
    def w2_loads():
        ffn_range()
        srd(e, sW2, 18, 0 if "2" in now else 1376*512*2)
        vE = vt+5
        e(f"v_lshrrev_b32 v{vE}, 3, v0")
        e(f"v_and_b32 v{vt+6}, 7, v0")
        e(f"v_lshlrev_b32 v{vt+6}, 4, v{vt+6}")
        e(f"v_lshl_add_u32 v{vt+7}, v{vE}, 10, v{vt+6}")
        e(f"s_lshl_b32 s{T}, s{sC0}, 13")
        e(f"s_lshl_b32 s{T+1}, s{sS}, 7")
        e(f"s_add_u32 s{T}, s{T}, s{T+1}")
        for t in range(6):
            if t == 5:
                e(f"s_cmp_eq_u32 s{sNC}, 6")
                e(f"s_cselect_b32 s{sW2+2}, s{sW2+2}, 0")
                e(f"s_cselect_b32 s{T}, s{T}, 0")
            e(f"buffer_load_dwordx4 {v4(vW2+t*4)}, v{vt+7}, s[{sW2}:{sW2+3}], s{T} offen nt")
            if t < 5: e(f"s_add_u32 s{T}, s{T}, 8192")
    if not late:
        e(f"s_cmp_lg_u32 s{sWave}, 2")
        e("s_cbranch_scc1 L_stream")
        w2_loads()
    e("s_branch L_stream")
    e.label("L_wave0")
    e.vm = []
    aU = 128
    sStr, sPub, sFlo = sW1, sW1+1, sW1+2
    e(f"s_and_b32 s{T}, s2, 7")
    e(f"s_lshr_b32 s{T+1}, s2, 3")
    if G < 8:
        e(f"s_and_b32 s{T+2}, s{T+1}, {m-1}")
        e(f"s_mul_i32 s{T+2}, s{T+2}, {32//m}")
        e(f"s_lshr_b32 s{T+1}, s{T+1}, {lm}")
        e(f"s_add_u32 s{T+1}, s{T+1}, s{T+2}")
    e(f"s_lshl_b32 s{T+2}, s{T}, 2")
    e(f"s_add_u32 s{T+1}, s{T+1}, s{T+2}")
    e(f"s_and_b32 s{T+1}, s{T+1}, 31")
    e(f"s_lshl_b32 s{T+2}, s{T}, 4")
    e(f"s_add_u32 s{T+2}, s{T+2}, s{T+1}")
    e(f"s_mul_i32 s{T+3}, s{T}, 6")
    e(f"s_add_u32 s{T+3}, s{T+3}, s{T+1}")
    e(f"s_sub_u32 s{T+3}, s{T+3}, 16")
    e(f"s_mov_b32 s{sStr}, 2752")
    e(f"s_mov_b32 s{sWQ+2}, {0 if '1' in now else 512*1376*2}")
    e(f"s_cmp_lt_u32 s{T+1}, 22")
    e(f"s_cselect_b32 s{T+6}, s{T+3}, 99")
    e(f"s_cmp_lt_u32 s{T+1}, 16")
    e(f"s_cselect_b32 s{T+6}, 0, s{T+6}")
    e(f"s_cselect_b32 s{T+3}, s{T+2}, s{T+3}")
    e(f"s_cselect_b32 s{sStr}, 8192, s{sStr}")
    e(f"s_cselect_b32 s{sPub}, {QP}, {HP}")
    e(f"s_cselect_b32 s{sFlo}, 0xff800000, 0")
    e(f"s_cselect_b32 s{sWQ+2}, {0 if 'q' in now else 512*4096*2}, s{sWQ+2}")
    e(f"s_cselect_b32 s{T+7}, s{T+2}, 1")
    e(f"s_lshl_b32 s{T}, s{T+3}, 7")
    e(f"s_add_u32 s{sPub}, s{sPub}, s{T}")
    e(f"s_lshl_b32 s{T+3}, s{T+3}, 6")
    e(f"s_lshl_b32 s{T}, s{sStr}, 5")
    e(f"v_lshrrev_b32 v{vt}, 2, v0")
    e(f"v_mul_lo_u32 v{vt}, v{vt}, s{T}")
    e(f"v_and_b32 v{vt+1}, 3, v0")
    e(f"v_lshl_add_u32 v{vt}, v{vt+1}, 4, v{vt}")
    e(f"v_and_b32 v{vt+6}, 7, v0")
    e(f"v_lshlrev_b32 v{vt+6}, 4, v{vt+6}")
    if late == 5:
        e(f"v_lshrrev_b32 v{vt+7}, 3, v0")
        e(f"v_lshl_add_u32 v{vWOo}, v{vt+7}, 14, v{vt+6}")
    else:
        e(f"v_lshl_add_u32 v{vWOo}, v{vb}, 15, v{vt+6}")
        e(f"v_bfe_u32 v{vt+7}, v0, 3, 1")
        e(f"v_lshl_add_u32 v{vWOo}, v{vt+7}, 11, v{vWOo}")
    e(f"s_cmp_lt_u32 s{T+1}, 16")
    e("s_waitcnt lgkmcnt(0)")
    e(f"s_cselect_b32 s{sWQ}, s10, s16")
    e(f"s_cselect_b32 s{sWQ+1}, s11, s17")
    e(f"s_mov_b32 s{sWQ+3}, 0x00020000")
    if ts:
        e(f"v_mov_b32 v{vTS}, s{sTA}")
        for i in range(1, 8): e(f"v_mov_b32 v{vTS+i}, 0")
    e(f"s_mov_b32 s{T+4}, s{sTA}"); e(f"s_mov_b32 s{T+5}, s{sTA+1}")
    def resolve_epoch(n):
        e("s_waitcnt lgkmcnt(0)")
        e(f"s_or_b32 s{T}, s{sTA}, s{sTA+1}")
        e(f"s_cmp_lg_u32 s{T}, 0")
        e(f"s_cbranch_scc1 L_haveep{n}")
        e(f"s_mov_b32 s{sTA}, s{T+4}"); e(f"s_mov_b32 s{sTA+1}, s{T+5}")
        e(f"s_mov_b32 s{sTA+2}, 0"); e(f"s_mov_b32 s{sTA+3}, 0")
        e(f"s_atomic_cmpswap_x2 s[{sTA}:{sTA+3}], s[22:23], 0x0 glc")
        e("s_waitcnt lgkmcnt(0)")
        e(f"s_or_b32 s{T}, s{sTA}, s{sTA+1}")
        e(f"s_cmp_eq_u32 s{T}, 0")
        e(f"s_cselect_b32 s{sTA}, s{T+4}, s{sTA}")
        e(f"s_cselect_b32 s{sTB}, s{T+5}, s{sTB}")
        e.label(f"L_haveep{n}")
    def w0_fills(bs):
        for b in bs:
            e(f"s_mov_b32 s{sJ}, {J1 + b}")
            e(f"s_mov_b32 s{sB+b}, {(J1 + b) << 8}")
            addr_local(); issue(b, False, thr if b >= 2 else None, gran)
    def wo_loads():
        srd(e, sWO, 12, 0 if "o" in now else 4096*512*2)
        e(f"s_lshl_b32 s{T}, s{sH}, 17")
        e(f"s_lshl_b32 s{T+1}, s{sS}, 7")
        e(f"s_add_u32 s{T}, s{T}, s{T+1}")
        for t8 in range(8):
            dT = 8*(t8 & 3) + 4*(t8 >> 2)
            e(f"s_add_u32 s{T+1}, s{T}, {dT*1024}")
            e(f"buffer_load_dwordx4 {v4(vW+t8*4)}, v{vWOo}, s[{sWO}:{sWO+3}], s{T+1} offen nt")
            e(f"buffer_load_dwordx4 {v4(vW+(t8+8)*4)}, v{vWOo}, s[{sWO}:{sWO+3}], s{T+1} offen offset:1024 nt")
    e(f"s_cmp_lt_u32 s{T+6}, 43")
    e("s_cbranch_scc1 L_task")
    e("s_barrier")
    if not late: wo_loads()
    srd(e, sK, 6, 0x10000000); srd(e, sV, 8, 0x10000000)
    consts(); tk_addr()
    e(f"buffer_load_dword v{vG+8}, v{vZero}, s[{sV}:{sV+3}], s{sHB} offen nt")
    e("s_waitcnt vmcnt(0)")
    e(f"s_load_dwordx2 s[{sTA}:{sTA+1}], s[22:23], 0x0")
    resolve_epoch(0)
    e("s_branch L_join")
    e.label("L_task")
    srd(e, sX, 4, 1024)
    e.mem(f"buffer_load_dwordx4 {v4(vX4)}, v{vVo}, s[{sX}:{sX+3}], 0 offen", "x4")
    for i in range(32):
        e.mem(f"buffer_load_dwordx4 {a4(aU+i*4)}, v{vt}, s[{sWQ}:{sWQ+3}], s{T+3} offen {upol}", f"u{i}")
        if i < 31: e(f"s_add_u32 s{T+3}, s{T+3}, s{sStr}")
        if i == 3:
            e(f"s_mov_b32 s{sTA+2}, 0"); e(f"s_mov_b32 s{sTA+3}, 0")
            e("s_cmp_ge_u32 s2, 8")
            e("s_cbranch_scc1 L_nocas0")
            e(f"s_atomic_cmpswap_x2 s[{sTA}:{sTA+3}], s[22:23], 0x0 glc")
            e.label("L_nocas0")
            e("s_barrier")
    e(f"s_and_b32 s{T}, s{T+7}, 3")
    e(f"s_cmp_lg_u32 s{T}, 0")
    e("s_cbranch_scc1 L_notk")
    e(f"s_lshl_b32 s{T}, s{T+7}, 6")
    e(f"s_add_u32 s{T}, s{T}, {TK}")
    e(f"s_add_u32 s{sTKa}, s24, s{T}")
    e(f"s_addc_u32 s{sTKa+1}, s25, 0")
    e(f"s_mov_b32 s{sTk}, {0 if VF else 32}")
    e(f"s_atomic_swap s{sTk}, s[{sTKa}:{sTKa+1}], 0x0 glc")
    e.label("L_notk")
    srd(e, sK, 6, 0x10000000); srd(e, sV, 8, 0x10000000)
    consts(); tk_addr()
    e.wait("x4")
    x = vt; a, b_ = vt+8, vt+9
    vPp = vG
    for i in range(4):
        e(f"v_lshlrev_b32 v{vPp+2*i}, 16, v{vX4+i}")
        e(f"v_and_b32 v{vPp+2*i+1}, 0xffff0000, v{vX4+i}")
    e(f"v_add_f32 v{a}, v{vPp}, v{vPp+1}")
    for i in range(2, 8): e(f"v_add_f32 v{a}, v{a}, v{vPp+i}")
    wave_sum(e, a, sRL)
    e(f"v_mul_f32 v{a}, {f32(1/512)}, v{a}")
    e(f"v_mov_b32 v{b_}, 0")
    for i in range(8):
        e(f"v_sub_f32 v{x+i}, v{vPp+i}, v{a}")
        e(f"v_fmac_f32 v{b_}, v{x+i}, v{x+i}")
    wave_sum(e, b_, sRL)
    e(f"v_mul_f32 v{b_}, {f32(1/512)}, v{b_}")
    round_bf16(e, a, a)
    round_bf16(e, b_, b_)
    e(f"v_add_f32 v{b_}, {f32(1e-5)}, v{b_}")
    round_bf16(e, b_, b_)
    e(f"v_sqrt_f32 v{b_}, v{b_}")
    e("s_nop 0")
    round_bf16(e, b_, b_)
    e(f"v_rcp_f32 v{b_}, v{b_}")
    for i in range(8): e(f"v_sub_f32 v{vPp+i}, v{vPp+i}, v{a}")
    for i in range(8): round_bf16(e, vPp+i, vPp+i)
    for i in range(8): e(f"v_mul_f32 v{vPp+i}, v{vPp+i}, v{b_}")
    for i in range(8): e(f"v_cvt_pk_bf16_f32 v{vPp+i}, v{vPp+i}, v{vPp+i}")
    e("s_waitcnt lgkmcnt(0)")
    e(f"s_load_dwordx2 s[{sTA}:{sTA+1}], s[22:23], 0x0")
    def coef(i):
        t, ee = i >> 3, i & 7
        d = vA + 2*(i & 1)
        e(f"v_and_b32_dpp v{d}, v{vPp+ee}, v{vM0} {dpp(f'quad_perm:[{t},{t},{t},{t}]')}")
        e(f"v_and_b32_dpp v{d+1}, v{vPp+ee}, v{vM1} {dpp(f'quad_perm:[{t},{t},{t},{t}]')}")
    coef(0)
    for i in range(32):
        if i + 1 < 32: coef(i+1)
        if i % 4 == 0: e.wait(f"u{i+3}")
        d = vA + 2*(i & 1)
        for hf, acc in ((0, vS), (1, vD2)):
            c = "0" if i == 0 else v4(acc)
            e(f"v_mfma_f32_16x16x16_bf16 {v4(acc)}, v[{d}:{d+1}], a[{aU+i*4+2*hf}:{aU+i*4+2*hf+1}], {c}")
    e(f"v_and_b32 v{x}, 3, v0")
    e(f"v_lshlrev_b32 v{x}, 5, v{x}")
    e(f"v_lshl_add_u32 v{x}, v{vb}, 7, v{x}")
    e(f"v_and_b32 v{x+1}, 7, v0")
    e(f"v_lshlrev_b32 v{x+1}, 4, v{x+1}")
    resolve_epoch(1)
    e("s_mov_b32 exec_lo, 0x00f0000f"); e("s_mov_b32 exec_hi, 0xf0000f00")
    e(f"ds_write_b128 v{x}, {v4(vS)} offset:{L_O}")
    e(f"ds_write_b128 v{x}, {v4(vD2)} offset:{L_O+16}")
    e("s_mov_b64 exec, -1")
    for p in range(4): e(f"ds_read_b128 {v4(vG+4*p)}, v{x+1} offset:{L_O+p*128}")
    e(f"v_mov_b32 v{vA+1}, s{sTA}"); e(f"v_mov_b32 v{vA+3}, s{sTB}")
    e("s_waitcnt lgkmcnt(0)")
    for r in range(4):
        e(f"v_add_f32 v{vG+r}, v{vG+r}, v{vG+4+r}")
        e(f"v_add_f32 v{vG+8+r}, v{vG+8+r}, v{vG+12+r}")
    for r in range(4): e(f"v_add_f32 v{vG+r}, v{vG+r}, v{vG+8+r}")
    for r in range(4): e(f"v_max_f32 v{vG+r}, s{sFlo}, v{vG+r}")
    e(f"v_cvt_pk_bf16_f32 v{vA}, v{vG}, v{vG+1}")
    e(f"v_cvt_pk_bf16_f32 v{vA+2}, v{vG+2}, v{vG+3}")
    e("s_mov_b64 exec, 0xff")
    e(f"buffer_store_dwordx4 {v4(vA)}, v{vVo}, s[{sWS}:{sWS+3}], s{sPub} offen sc1")
    e("s_mov_b64 exec, -1")
    stamp(1)
    e.label("L_join")
    if tlb:
        srd(e, sWO, 12, 4096*512*2); srd(e, sW2, 18, 1376*512*2)
        e(f"s_lshl_b32 s{T}, s{sH}, 17")
        e(f"s_mul_i32 s{T+1}, s{sH}, {40*1024}")
        e("s_mov_b64 exec, 1")
        e(f"buffer_load_dword v{vG+8}, v{vZero}, s[{sWO}:{sWO+3}], s{T} offen nt")
        e(f"buffer_load_dword v{vG+9}, v{vZero}, s[{sW2}:{sW2+3}], s{T+1} offen nt")
        e("s_mov_b64 exec, -1")
    e(f"s_lshl_b32 s{T}, s{sH}, 9")
    e("s_mov_b32 exec_hi, 0")
    poll("q", [f"buffer_load_dwordx4 {v4(vG)}, v{vVo}, s[{sWS}:{sWS+3}], s{T} offen sc1"], [vG])
    e(f"v_mov_b32 v{vG+1}, v{vG+2}")
    e(f"v_lshlrev_b32 v{vt+1}, 3, v0")
    e(f"ds_write_b64 v{vt+1}, v[{vG}:{vG+1}] offset:{L_QB}")
    e("s_mov_b32 exec_hi, -1")
    e(f"v_mov_b32 v{vt+2}, s{sTA}"); e(f"v_mov_b32 v{vt+3}, s{sTB}")
    e(f"ds_write_b64 v{vZero}, v[{vt+2}:{vt+3}] offset:{L_EP}")
    stamp(2)
    def proj(n, coef, data, rf=None):
        rf = rf or v4
        for r in range(4): e(f"v_and_b32 v{vA+r}, v{coef}, v{vMk+r}")
        for t in range(n):
            A4, A4n = (vA, vA2) if (t & 1) == 0 else (vA2, vA)
            if t + 1 < n:
                for r in range(4): e(f"v_and_b32 v{A4n+r}, v{coef+t+1}, v{vMk+r}")
            else: e("s_nop 0")
            c = "0" if t == 0 else v4(vS)
            e(f"v_mfma_f32_16x16x32_bf16 {v4(vS)}, {v4(A4)}, {rf(data+t*4)}, {c}")
    def proj_publish(base, dst=None, store=True):
        dst = vD2 if dst is None else dst
        e(f"s_lshl_b32 s{T}, s{sS}, 14")
        e(f"s_lshl_b32 s{T+1}, s{sH}, 9")
        e(f"s_add_u32 s{T}, s{T}, s{T+1}")
        e(f"s_add_u32 s{T}, s{T}, {base}")
        e(f"v_and_b32 v{vt}, 0x1ff, v{vSt}")
        e(f"v_mov_b32 v{dst+1}, s{sTA}"); e(f"v_mov_b32 v{dst+3}, s{sTB}")
        e("s_nop 1")
        e(f"v_permlane32_swap_b32 v{vS}, v{vS+2}")
        e(f"v_permlane32_swap_b32 v{vS+1}, v{vS+3}")
        e("s_nop 1")
        e(f"v_add_f32_dpp v{dst}, v{vS+2}, v{vS} {dpp('row_ror:8')}")
        e(f"v_add_f32_dpp v{dst+2}, v{vS+3}, v{vS+1} {dpp('row_ror:8')}")
        if not store: return
        e("s_mov_b32 exec_lo, 0x00ff00ff"); e("s_mov_b32 exec_hi, 0x00ff00ff")
        e(f"buffer_store_dwordx4 {v4(dst)}, v{vt}, s[{sWS}:{sWS+3}], s{T} offen sc1")
        e("s_mov_b64 exec, -1")
    ffn_range()
    e(f"s_lshl_b32 s{T+2}, s{sC0}, 5")
    e(f"s_add_u32 s{T+2}, s{T+2}, {HP}")
    e(f"s_lshl_b32 s{T+3}, s{sNC}, 1")
    for r in range(4): e(f"v_mov_b32 v{vG+r}, 0")
    e(f"s_bfm_b64 exec, s{T+3}, 0")
    poll("h", [f"buffer_load_dwordx4 {v4(vG)}, v{vVo}, s[{sWS}:{sWS+3}], s{T+2} offen sc1"], [vG])
    e("s_mov_b64 exec, 0xffff")
    e(f"v_mov_b32 v{vG+1}, v{vG+2}")
    e(f"v_lshlrev_b32 v{vt+4}, 3, v0")
    e(f"ds_write_b64 v{vt+4}, v[{vG}:{vG+1}] offset:{L_HT}")
    e("s_mov_b64 exec, -1")
    e(f"v_lshrrev_b32 v{vt+5}, 3, v0")
    e(f"v_lshlrev_b32 v{vt+5}, 1, v{vt+5}")
    for t in range(6): e(f"ds_read_u16 v{vG+4+t}, v{vt+5} offset:{L_HT+16*t}")
    e("s_waitcnt lgkmcnt(0)")
    for t in range(6): e(f"v_lshl_or_b32 v{vG+4+t}, v{vG+4+t}, 16, v{vG+4+t}")
    local_tag()
    e.label("L_waitfl")
    e("s_sleep 4")
    e(f"ds_read_b32 v{vt}, v{vZero} offset:{L_FL}")
    e("s_waitcnt lgkmcnt(0)")
    e(f"v_cmp_eq_u32 vcc, 0, v{vt}")
    e("s_cbranch_vccnz L_waitfl")
    stamp(3)
    w2_loads()
    wo_loads()
    e("s_waitcnt vmcnt(16)")
    proj(6, vG+4, vW2)
    proj_publish(ZP, vHG, zearly)
    e(f"s_mov_b32 s{sU}, s{T}")
    e("s_branch L_tail0b")
    e.label("L_stream")
    if not st0: stamp(3)
    assert VF
    req_local()
    e(f"s_mov_b32 s{sCnt}, 4")
    e.label("L_K0")
    for b in range(4):
        e("s_waitcnt vmcnt(8)")
        qk(b)
        e("s_waitcnt lgkmcnt(0)")
        e(f"v_readfirstlane_b32 s{sJ}, v{vJ}")
        e(f"v_add_u32 v{vAd}, s{sB+b}, v{vL4}")
        e(f"s_cmp_ge_u32 s{sJ}, {N}")
        e(f"s_cbranch_scc1 L_T1m{b}")
        req_local(); addr_local()
        e(f"s_lshl_b32 s{sB+b}, s{sJ}, 8")
        score_store()
        issue(b, False, thr, gran)
    e("s_branch L_K0")
    for b in range(4):
        e.label(f"L_T1s{b}")
        e(f"s_sub_u32 s{sCnt}, s{sCnt}, 1")
        e(f"s_cmp_eq_u32 s{sCnt}, 0")
        e(f"s_cbranch_scc1 L_sync{b}")
        e("s_waitcnt vmcnt(8)")
        qk(b)
        e("s_waitcnt lgkmcnt(0)")
        e(f"v_readfirstlane_b32 s{sJ}, v{vJ}")
        e(f"v_add_u32 v{vAd}, s{sB+b}, v{vL4}")
        e.label(f"L_T1m{b}")
        req_local()
        e(f"s_sub_u32 s{sJ}, s{sJ}, {N}")
        e(f"s_cmp_lt_u32 s{sJ}, {N}")
        e(f"s_cselect_b32 s{sV+2}, 0x10000000, 0")
        e(f"s_min_u32 s{sJ}, s{sJ}, {N}")
        addr_local()
        e(f"s_lshl_b32 s{sB+b}, s{sJ}, 8")
        score_store()
        e(f"s_cmp_lg_u32 s{sCnt}, 1")
        e(f"s_cbranch_scc1 L_T1n{b}")
        e("s_nop 0")
        wave_max(vP, vM)
        e(f"s_lshl_b32 s{T}, s{sWave}, 2")
        e(f"v_mov_b32 v{vT}, s{T}")
        e("s_mov_b64 exec, 1")
        e(f"ds_write_b32 v{vT}, v{vP} offset:{L_WM}")
        e(f"ds_add_u32 v{vZero}, v{vOne} offset:{L_DN}")
        e("s_mov_b64 exec, -1")
        e.label(f"L_T1n{b}")
        issue(b, True, thrv, gran)
    e("s_branch L_T1s0")
    for b in range(4):
        e.label(f"L_sync{b}")
        e(f"ds_read_b32 v{vT}, v{vZero} offset:{L_DN}")
        e(f"ds_read_b128 {v4(vA)}, v{vZero} offset:{L_WM}")
        e("s_waitcnt lgkmcnt(0)")
        e(f"v_cmp_gt_u32 vcc, 3, v{vT}")
        e(f"s_cbranch_vccnz L_sync{b}")
        e(f"v_max3_f32 v{vM}, v{vA+1}, v{vA+2}, v{vA+3}")
        e(f"s_mov_b32 s{sV+2}, 0x10000000")
        if ts:
            e(f"s_cmp_eq_u32 s{sWave}, 0"); e(f"s_cbranch_scc1 L_V{b}")
            stamp(5)
        e(f"s_branch L_V{b}")
    def vloop(tag, lim, target, th):
        for b in range(4):
            e.label(f"L_{tag}{b}")
            e(f"v_add_u32 v{vAd}, s{sB+b}, v{vL4}")
            e(f"ds_read_b32 v{vT}, v{vAd} offset:{L_S}")
            e("s_waitcnt vmcnt(12) lgkmcnt(0)")
            e(f"v_readfirstlane_b32 s{sJ}, v{vJ}")
            prob(vT)
            e("s_nop 0")
            e(f"s_sub_u32 s{sJ}, s{sJ}, {N}")
            pv(b)
            e.label(f"L_{tag}m{b}")
            e(f"s_cmp_ge_u32 s{sJ}, {lim}")
            e(f"s_cbranch_scc1 L_{target}{b}")
            req_local(); addr_local()
            e(f"s_lshl_b32 s{sB+b}, s{sJ}, 8")
            issue(b, True, th, gran)
        e(f"s_branch L_{tag}0")
    if VF:
        vloop("V", N-VF, "VE", thrv)
        for b in range(4):
            e.label(f"L_VE{b}")
            e(f"s_mov_b32 s{sTk}, 1")
            e(f"s_atomic_add s{sTk}, s[{sTKa}:{sTKa+1}], 0x0 glc")
            e(f"s_branch L_Wm{b}")
        vloop("W", N, "T2_", thre)
    else:
        vloop("V", N, "T2_", thrv)
    for b in range(4):
        e.label(f"L_T2_{b}")
        rest = [(b+i) & 3 for i in (1, 2, 3)]
        for i, c in enumerate(rest):
            e(f"v_add_u32 v{vAd}, s{sB+c}, v{vL4}")
            e(f"ds_read_b32 v{vt+i}, v{vAd} offset:{L_S}")
        if ts:
            e(f"s_cmp_eq_u32 s{sWave}, 0"); e(f"s_cbranch_scc1 L_T2x{b}")
            stamp(1)
            e.label(f"L_T2x{b}")
        e("s_waitcnt lgkmcnt(0)")
        nt = 0
        if b % 2 == 0:
            take_dyn(b//2, 1); nt = 1; issue(b, False, thrd, gran)
        for i, c in enumerate(rest):
            prob(vt+i)
            e("s_waitcnt vmcnt(8)")
            e("s_nop 0")
            pv(c)
            if c % 2 == 0: nt += 1; take_dyn(c//2, nt)
            issue(c, c % 2 == 1, thrd, gran)
        if b % 2 == 1: issue(b, True, thrd, gran)
        first = b // 2 if b % 2 == 0 else ((b+1) & 3) // 2
        e(f"s_branch L_dyn{first}")
    for d in range(D): dyn_group(d)
    e("s_branch L_dyn0")
    e.label("L_done")
    if nost: e(f"s_mov_b32 s{sWS+2}, {WS_END}")
    stamp(4)
    if late == 2:
        e(f"s_cmp_lg_u32 s{sWave}, 0")
        e("s_cbranch_scc1 L_nowo")
        wo_loads()
        e.label("L_nowo")
    e(f"s_lshl_b32 s{T+1}, s{sWave}, 9")
    e(f"v_lshl_add_u32 v{vT}, v{vb}, 2, v{vn}")
    e(f"v_lshl_add_u32 v{vT}, v{vT}, 5, s{T+1}")
    e(f"s_lshl_b32 s{T+1}, s{sWave}, 3")
    e(f"v_mov_b32 v{vP}, s{T+1}")
    e("s_nop 2")
    e(f"v_add_f32_dpp v{vM+1}, v{vLa}, v{vLa} {dpp('row_shl:4')}")
    for u in range(1, 4):
        for j in range(8): e(f"v_add_f32_dpp v{vO+j}, v{vO+8*u+j}, v{vO+j} {dpp(f'row_shl:{4*u}')}")
        if u > 1: e(f"v_add_f32_dpp v{vM+1}, v{vLa}, v{vM+1} {dpp(f'row_shl:{4*u}')}")
    e("s_mov_b32 exec_lo, 0x000f000f"); e("s_mov_b32 exec_hi, 0x000f000f")
    e(f"ds_write_b128 v{vT}, {v4(vO)} offset:{L_O}")
    e(f"ds_write_b128 v{vT}, {v4(vO+4)} offset:{L_O+16}")
    e("s_mov_b64 exec, 1")
    e(f"ds_write_b64 v{vP}, v[{vM}:{vM+1}] offset:{L_ML}")
    e(f"ds_add_rtn_u32 v{vJ}, v{vZero}, v{vOne} offset:{L_DN}")
    e("s_mov_b64 exec, -1")
    e("s_waitcnt lgkmcnt(0)")
    e(f"v_readfirstlane_b32 s{T}, v{vJ}")
    e("s_nop 0")
    e(f"s_cmp_eq_u32 s{T}, 5")
    e("s_cbranch_scc1 L_tail0")
    e.label("L_fin")
    e(f"s_cmp_eq_u32 s{sWave}, 3")
    e("s_cbranch_scc1 L_exit")
    e(f"s_and_b32 s{T}, s{sH}, 7")
    e(f"s_cmp_eq_u32 s{T}, s{sS}")
    e("s_cbranch_scc0 L_exit")
    e(f"s_lshr_b32 s{T+5}, s{sH}, 3")
    e(f"v_lshrrev_b32 v{vt}, 3, v0")
    e(f"v_and_b32 v{vt+1}, 7, v0")
    e(f"v_lshlrev_b32 v{vt+2}, 4, v{vt+1}")
    e(f"v_lshl_add_u32 v{vt}, v{vt}, 9, v{vt+2}")
    e(f"v_lshlrev_b32 v{vt+2}, 3, v{vt+1}")
    e(f"s_mov_b32 s{T+1}, {ZP}")
    e(f"s_cmp_eq_u32 s{sWave}, 1")
    e(f"s_cselect_b32 s{T+1}, {YP}, s{T+1}")
    e(f"s_lshl_b32 s{T}, s{sS}, 14")
    e(f"s_add_u32 s{T}, s{T}, s{T+1}")
    e(f"s_lshl_b32 s{T+1}, s{T+5}, 7")
    e(f"s_add_u32 s{T}, s{T}, s{T+1}")
    for j in range(1, 4): e(f"s_add_u32 s{T+j}, s{T}, {j*4096}")
    def gl(base): return [f"buffer_load_dwordx4 {v4(base+4*j)}, v{vt}, s[{sWS}:{sWS+3}], s{T+j} offen sc1" for j in range(4)]
    def sum4(g):
        for k in (0, 2):
            e(f"v_add_f32 v{g+k}, v{g+k}, v{g+4+k}")
            e(f"v_add_f32 v{g+8+k}, v{g+8+k}, v{g+12+k}")
        e(f"v_add_f32 v{vS}, v{g}, v{g+8}")
        e(f"v_add_f32 v{vS+1}, v{g+2}, v{g+10}")
    def xlane():
        e("s_nop 1")
        for k in range(2): e(f"v_add_f32_dpp v{vS+k}, v{vS+k}, v{vS+k} {dpp('row_ror:8')}")
        for swap in ("v_permlane16_swap_b32", "v_permlane32_swap_b32"):
            for k in range(2): e(f"v_mov_b32 v{vS+2+k}, v{vS+k}")
            e("s_nop 1")
            for k in range(2): e(f"{swap} v{vS+k}, v{vS+2+k}")
            for k in range(2): e(f"v_add_f32 v{vS+k}, v{vS+k}, v{vS+2+k}")
        for k in range(2): e(f"v_cvt_pk_bf16_f32 v{vS+k}, v{vS+k}, v{vS+k}")
        for k in range(2): e(f"v_and_b32 v{vS+k}, 0xffff0000, v{vS+k}")
    e(f"s_cmp_eq_u32 s{sWave}, 1")
    e("s_cbranch_scc1 L_finy")
    poll("z", gl(vG), [vG+4*j for j in range(4)])
    sum4(vG); xlane()
    for k in range(2): e(f"v_mul_f32 v{vA+k}, {f32(-1.4426950408889634)}, v{vS+k}")
    for k in range(2): e(f"v_exp_f32 v{vA+k}, v{vA+k}")
    e("s_nop 0")
    for k in range(2): e(f"v_add_f32 v{vA+k}, 1.0, v{vA+k}")
    for k in range(2): e(f"v_rcp_f32 v{vA+k}, v{vA+k}")
    e("s_nop 0")
    for k in range(2): e(f"v_mul_f32 v{vA+k}, v{vS+k}, v{vA+k}")
    for k in range(2): e(f"v_cvt_pk_bf16_f32 v{vA+k}, v{vA+k}, v{vA+k}")
    for k in range(2): e(f"v_and_b32 v{vA+k}, 0xffff0000, v{vA+k}")
    e(f"ds_write_b64 v{vt+2}, v[{vA}:{vA+1}] offset:{L_G}")
    e(f"ds_write_b32 v{vZero}, v{vOne} offset:{L_F2}")
    e("s_branch L_exit")
    e.label("L_finy")
    srd(e, sOUT, 20, 1024)
    e(f"s_lshl_b32 s{T+4}, s{sS}, 7")
    e(f"s_lshl_b32 s{T+5}, s{T+5}, 5")
    e(f"s_add_u32 s{T+4}, s{T+4}, s{T+5}")
    e(f"v_lshl_add_u32 v{vt+1}, v{vt+1}, 2, s{T+4}")
    e(f"buffer_load_dword v{vt+3}, v{vt+1}, s[{sX}:{sX+3}], 0 offen")
    sets = [vW + 16*k for k in range(NSET)]
    for k in range(NSET):
        for l in gl(sets[k]): e(l)
        if k + 1 < NSET and slp: e(f"s_sleep {slp}")
    e(f"s_mov_b32 s{T+7}, {POLL_MAX}")
    e.label("L_poll_y")
    for k in range(NSET):
        e(f"s_waitcnt vmcnt({4*(NSET-1)})")
        tagcheck([sets[k]+4*j for j in range(4)], vt+10, vt+8)
        e(f"s_cbranch_vccz L_goty{k}")
        for l in gl(sets[k]): e(l)
    e(f"s_sub_u32 s{T+7}, s{T+7}, 1")
    e(f"s_cmp_lg_u32 s{T+7}, 0")
    e("s_cbranch_scc1 L_poll_y")
    e("s_waitcnt vmcnt(0)")
    for k in range(NSET):
        e.label(f"L_goty{k}")
        sum4(sets[k])
        if k + 1 < NSET: e("s_branch L_ysum")
    e.label("L_ysum")
    e(f"ds_read_b32 v{vt+4}, v{vZero} offset:{L_F2}")
    e(f"ds_read_b64 v[{vA}:{vA+1}], v{vt+2} offset:{L_G}")
    xlane()
    e(f"v_lshlrev_b32 v{vA+2}, 16, v{vt+3}")
    e(f"v_and_b32 v{vA+3}, 0xffff0000, v{vt+3}")
    e("s_waitcnt lgkmcnt(0)")
    e(f"v_cmp_ne_u32 vcc, 0, v{vt+4}")
    e("s_cbranch_vccnz L_haveg")
    e.label("L_waitg")
    e(f"ds_read_b32 v{vt+4}, v{vZero} offset:{L_F2}")
    e(f"ds_read_b64 v[{vA}:{vA+1}], v{vt+2} offset:{L_G}")
    e("s_waitcnt lgkmcnt(0)")
    e(f"v_cmp_eq_u32 vcc, 0, v{vt+4}")
    e("s_cbranch_vccnz L_waitg")
    e.label("L_haveg")
    for k in range(2): e(f"v_mul_f32 v{vS+k}, v{vS+k}, v{vA+k}")
    for k in range(2): e(f"v_cvt_pk_bf16_f32 v{vS+k}, v{vS+k}, v{vS+k}")
    for k in range(2): e(f"v_and_b32 v{vS+k}, 0xffff0000, v{vS+k}")
    for k in range(2): e(f"v_add_f32 v{vS+k}, v{vA+2+k}, v{vS+k}")
    e(f"v_cvt_pk_bf16_f32 v{vS}, v{vS}, v{vS+1}")
    e("s_mov_b64 exec, 0xff")
    e(f"buffer_store_dword v{vS}, v{vt+1}, s[{sOUT}:{sOUT+3}], 0 offen {opol}")
    e("s_mov_b64 exec, -1")
    e("s_branch L_exit")
    e.label("L_tail0")
    ml = vO; op = vO + 8
    e(f"ds_read_b64 v[{ml+2}:{ml+3}], v{vZero} offset:{L_ML+8}")
    e(f"ds_read_b128 {v4(ml+4)}, v{vZero} offset:{L_ML+16}")
    e(f"v_lshlrev_b32 v{vP}, 3, v0")
    for p in range(1, 4): e(f"ds_read_b64 v[{op+2*p}:{op+2*p+1}], v{vP} offset:{L_O+p*512}")
    assert loc and lazy
    e(f"v_mov_b32 v{vA+1}, s{sTA}"); e(f"v_mov_b32 v{vA+3}, s{sTL}")
    e(f"v_mov_b32 v{vA2+1}, s{sTA}"); e(f"v_mov_b32 v{vA2+3}, s{sTL}")
    e(f"s_lshl_b32 s{T}, s{sP}, 10"); e(f"s_add_u32 s{T}, s{T}, {OP}")
    e(f"s_lshl_b32 s{T+1}, s{sP}, 4"); e(f"s_add_u32 s{T+1}, s{T+1}, {MLP}")
    e(f"s_add_u32 s{T+2}, s{T}, {LOC}"); e(f"s_add_u32 s{T+3}, s{T+1}, {LOC}")
    e("s_waitcnt lgkmcnt(3)")
    e(f"v_max3_f32 v{vA2}, v{ml+2}, v{ml+4}, v{ml+6}")
    for p in range(1, 4): e(f"v_sub_f32 v{ml+2*p}, v{ml+2*p}, v{vA2}")
    for p in range(1, 4): e(f"v_exp_f32 v{ml+2*p}, v{ml+2*p}")
    e("s_waitcnt lgkmcnt(0)")
    e(f"v_mul_f32 v{vA}, v{ml+2}, v{op+2}")
    e(f"v_mul_f32 v{vA+2}, v{ml+2}, v{op+3}")
    for p in range(2, 4):
        e(f"v_fmac_f32 v{vA}, v{ml+2*p}, v{op+2*p}")
        e(f"v_fmac_f32 v{vA+2}, v{ml+2*p}, v{op+2*p+1}")
    if loc: e(f"buffer_store_dwordx4 {v4(vA)}, v{vVo}, s[{sWS}:{sWS+3}], s{T+2} offen")
    else: e(f"buffer_store_dwordx4 {v4(vA)}, v{vVo}, s[{sWS}:{sWS+3}], s{T} offen sc1")
    e(f"v_mul_f32 v{vA2+2}, v{ml+2}, v{ml+3}")
    for p in range(2, 4): e(f"v_fmac_f32 v{vA2+2}, v{ml+2*p}, v{ml+2*p+1}")
    e("s_mov_b64 exec, 1")
    if loc: e(f"buffer_store_dwordx4 {v4(vA2)}, v{vZero}, s[{sWS}:{sWS+3}], s{T+3} offen")
    e("s_mov_b64 exec, -1")
    stamp(6)
    e.label("L_waitf3")
    e(f"ds_read_b32 v{vT}, v{vZero} offset:{L_F3}")
    e("s_waitcnt lgkmcnt(0)")
    e(f"v_cmp_eq_u32 vcc, 0, v{vT}")
    e("s_cbranch_vccnz L_waitf3")
    e(f"v_cmp_eq_u32 vcc, 1, v{vT}")
    e("s_cbranch_vccnz L_fin")
    e(f"v_mov_b32 v{vA+3}, s{sTB}"); e(f"v_mov_b32 v{vA2+3}, s{sTB}")
    e(f"buffer_store_dwordx4 {v4(vA)}, v{vVo}, s[{sWS}:{sWS+3}], s{T} offen sc1")
    e("s_mov_b64 exec, 1")
    e(f"buffer_store_dwordx4 {v4(vA2)}, v{vZero}, s[{sWS}:{sWS+3}], s{T+1} offen sc1")
    e("s_mov_b64 exec, -1")
    if True:
        e("s_branch L_fin")
        e.label("L_tail0b")
    stamp(5)
    if late == 1: wo_loads()
    e(f"s_lshl_b32 s{T+3}, s{sH}, 13"); e(f"s_add_u32 s{T+3}, s{T+3}, {OP}")
    e(f"s_add_u32 s{T+4}, s{T+3}, 4096")
    e(f"s_lshl_b32 s{T+2}, s{sH}, 7"); e(f"s_add_u32 s{T+2}, s{T+2}, {MLP}")
    e(f"v_and_b32 v{vt}, 7, v0")
    e(f"v_lshlrev_b32 v{vt}, 4, v{vt}")
    e(f"v_lshlrev_b32 v{vVo}, 4, v0")
    e(f"v_lshlrev_b32 v{vt+1}, 7, v{vb}")
    e(f"v_and_b32 v{vt+2}, 1, v0")
    e(f"v_lshl_add_u32 v{vt+1}, v{vt+2}, 6, v{vt+1}")
    e(f"v_bfe_u32 v{vt+2}, v0, 1, 1")
    e(f"v_lshl_add_u32 v{vt+1}, v{vt+2}, 4, v{vt+1}")
    e(f"v_bfe_u32 v{vt+2}, v0, 2, 2")
    e(f"v_lshl_add_u32 v{vt+1}, v{vt+2}, 2, v{vt+1}")
    def oloads(vo, vm, pol):
        return [f"buffer_load_dwordx4 {v4(vG+4*j)}, v{vo}, s[{sWS}:{sWS+3}], s{T + 3 + (j>>2)} offen offset:{(j&3)*1024} {pol}" for j in range(8)] + \
               [f"buffer_load_dwordx4 {v4(vG+32)}, v{vm}, s[{sWS}:{sWS+3}], s{T+2} offen {pol}"]
    oregs = [vG+4*j for j in range(9)]
    if loc:
        e(f"v_add_u32 v{vt+3}, {LOC}, v{vVo}")
        e(f"v_add_u32 v{vt+4}, {LOC}, v{vt}")
        e(f"s_mov_b32 s{T+7}, {NLOC}")
        e(f"s_mov_b32 s{T+6}, {POLL_MAX}")
        e.label("L_poll_l")
        for l in oloads(vt+3, vt+4, lpol): e(l)
        e(f"s_sub_u32 s{T+7}, s{T+7}, 1")
        e("s_waitcnt vmcnt(0)")
        tagcheck(oregs, vt+10, vt+8, sTL)
        e("s_cbranch_vccz L_gotl")
        e(f"s_cmp_gt_i32 s{T+7}, 0")
        e("s_cbranch_scc1 L_poll_l")
        e(f"v_mov_b32 v{vt+5}, 2")
        e(f"ds_write_b32 v{vZero}, v{vt+5} offset:{L_F3}")
        for l in oloads(vVo, vt, "sc1"): e(l)
        e(f"s_sub_u32 s{T+6}, s{T+6}, 1")
        e("s_waitcnt vmcnt(0)")
        tagcheck(oregs, vt+10, vt+8)
        e("s_cbranch_vccz L_polld_o")
        e(f"s_cmp_lg_u32 s{T+6}, 0")
        e("s_cbranch_scc1 L_poll_l")
        e("s_branch L_polld_o")
        e.label("L_gotl")
        e(f"ds_write_b32 v{vZero}, v{vOne} offset:{L_F3}")
        e.label("L_polld_o")
    if not zearly:
        e("s_mov_b32 exec_lo, 0x00ff00ff"); e("s_mov_b32 exec_hi, 0x00ff00ff")
        e(f"buffer_store_dwordx4 {v4(vHG)}, v{vSt}, s[{sWS}:{sWS+3}], s{sU} offen sc1")
        e("s_mov_b64 exec, -1")
    stamp(6)
    mm, ll = vG+32, vG+34
    cs = ("quad_perm:[1,0,3,2]", "quad_perm:[2,3,0,1]", "row_half_mirror")
    e(f"v_max_f32_dpp v{vT}, v{mm}, v{mm} {dpp(cs[0])}")
    for c in cs[1:]:
        e("s_nop 1")
        e(f"v_max_f32_dpp v{vT}, v{vT}, v{vT} {dpp(c)}")
    e(f"v_sub_f32 v{vT}, v{mm}, v{vT}")
    e(f"v_exp_f32 v{vT}, v{vT}")
    e("s_nop 0")
    e(f"v_mul_f32 v{vP}, v{vT}, v{ll}")
    if late != 5: e(f"v_lshlrev_b32 v{vt+1}, 3, v0")
    else: e("s_nop 0")
    for j in range(8):
        if 1 <= j <= 3: e(f"v_add_f32_dpp v{vP}, v{vP}, v{vP} {dpp(cs[j-1])}")
        if j == 5: e(f"v_rcp_f32 v{vP}, v{vP}")
        for k in range(2):
            e(f"v_{'mul' if j < 2 else 'fmac'}_f32_dpp v{vA+2*(j&1)+k}, v{vT}, v{vG+4*j+2*k} {dpp(f'row_newbcast:{j}')}")
    for k in range(2): e(f"v_add_f32 v{vA+k}, v{vA+k}, v{vA+2+k}")
    for k in range(2): e(f"v_mul_f32 v{vA+k}, v{vA+k}, v{vP}")
    for k in range(2): e(f"v_cvt_pk_bf16_f32 v{vA+k}, v{vA+k}, v{vA+k}")
    if late == 5:
        e(f"ds_write_b32 v{vt+1}, v{vA} offset:{L_OC}")
        e(f"ds_write_b32 v{vt+1}, v{vA+1} offset:{L_OC+32}")
    else: e(f"ds_write_b64 v{vt+1}, v[{vA}:{vA+1}] offset:{L_OC}")
    e(f"v_lshrrev_b32 v{vP}, 3, v0")
    e(f"v_lshlrev_b32 v{vP}, 6, v{vP}")
    for q in range(4): e(f"ds_read_b128 {v4(vG+4*q)}, v{vP} offset:{L_OC+16*q}")
    e("s_waitcnt lgkmcnt(0)")
    if late == 5: proj(16, vG, 0, a4)
    else: proj(16, vG, vW)
    proj_publish(YP)
    e.label("L_exit")
    if ts:
        stamp(7)
        e("s_lshl_b32 s88, s2, 2"); e(f"s_add_u32 s88, s88, s{sWave}"); e("s_lshl_b32 s88, s88, 5")
        e("s_add_u32 s88, s88, 0x20000000")
        e("s_add_u32 s24, s24, s88"); e("s_addc_u32 s25, s25, 0")
        e("s_mov_b64 exec, 1")
        e(f"global_store_dwordx4 v{vZero}, {v4(vTS)}, s[24:25]")
        e(f"global_store_dwordx4 v{vZero}, {v4(vTS+4)}, s[24:25] offset:16")
    e.label("L_end")
    e("s_endpgm")
    for u, slot in stubs:
        e.label(f"L_inv{u}")
        e(f"ds_write_b32 v{vZero}, v{vOne} offset:{L_FL}")
        e(f"s_branch L_notk{u}")
    for d in resc:
        e.label(f"L_resc{d}")
        e("s_nop 0")
        e(f"v_max_f32_dpp v{vP}, v{vT}, v{vT} {dpp('row_ror:4')}")
        e("s_nop 1")
        e(f"v_max_f32_dpp v{vP}, v{vP}, v{vP} {dpp('row_ror:8')}")
        e("s_nop 0")
        for i in range(4): e(f"v_readlane_b32 s{sRL+i}, v{vP}, {16*i}")
        e("s_nop 1")
        e(f"v_max_f32 v{vP}, s{sRL}, v{vM}")
        for i in range(1, 4): e(f"v_max_f32 v{vP}, s{sRL+i}, v{vP}")
        e(f"v_sub_f32 v{vA}, v{vM}, v{vP}")
        e(f"v_exp_f32 v{vA}, v{vA}")
        e(f"v_mov_b32 v{vM}, v{vP}")
        e(f"v_mul_f32 v{vLa}, v{vLa}, v{vA}")
        for i in range(0, 32, 2): e(f"v_pk_mul_f32 v[{vO+i}:{vO+i+1}], v[{vO+i}:{vO+i+1}], v[{vA}:{vA+1}] op_sel_hi:[1,0]")
        e(f"s_branch L_back{d}")

def desc(name, nv, ns, acc):
    return f""".amdhsa_kernel {name}
  .amdhsa_next_free_vgpr {nv}
  .amdhsa_next_free_sgpr {ns}
  .amdhsa_accum_offset {acc}
  .amdhsa_group_segment_fixed_size 0
  .amdhsa_kernarg_size 88
  .amdhsa_user_sgpr_count 2
  .amdhsa_user_sgpr_kernarg_segment_ptr 1
  .amdhsa_system_sgpr_workgroup_id_x 1
  .amdhsa_float_denorm_mode_32 3
.end_amdhsa_kernel
"""

def build(**kw):
    e = E()
    e.raw(HEADER.rstrip())
    lds = L_S + (4*kw.get("NS", 60) + 1)*256
    e.raw(f"; @launch grid=(256,1,1) block=(256,1,1) lds={lds}")
    e.raw('.amdgcn_target "amdgcn-amd-amdhsa--gfx950"')
    e.raw(".text")
    gen_main(e, **kw)
    e.raw('.section .rodata,"a"'); e.raw(".p2align 6")
    e.raw(desc(KNAME, 512, 102, 256))
    return e.text()

if __name__ == "__main__":
    out = sys.argv[1]
    kw = eval("dict(%s)" % (sys.argv[2] if len(sys.argv) > 2 else ""))
    open(out, "w").write(build(**kw))
```

```python
import sys, struct
KNAME = "recurrent_scan__gqa_block_cached__dense_activation_relu__decode_kernel"
HEADER = open("recurrent_scan__gqa_block_cached__dense_activation_relu__decode.s.ref").read().split("; Override launch")[0]

def f32(x): return "0x%08x" % struct.unpack("<I", struct.pack("<f", x))[0]

class E:
    def __init__(self): self.L = []; self.vm = []
    def __call__(self, s): self.L.append("  " + s)
    def label(self, s): self.L.append(s + ":")
    def raw(self, s): self.L.append(s)
    def c(self, s): self.L.append("  ; " + s)
    def mem(self, s, tag):
        self.L.append("  " + s); self.vm.append(tag)
    def wait(self, tag, gen=None):
        idxs = [i for i, t in enumerate(self.vm) if t == tag]
        idx = idxs[-1] if gen is None else idxs[4*gen+3]
        n = len(self.vm) - 1 - idx
        self(f"s_waitcnt vmcnt({min(59, n)})")
    def text(self): return "\n".join(self.L) + "\n"

QP, HP, OP, MLP, YP, ZP, TK, WS_END = 0x0, 0x40000, 0x60000, 0xA0000, 0xB0000, 0xD0000, 0xF0000, 0x1B0000
LOC = 0x100000
L_FL, L_F2, L_F3, L_G = 0x120, 0x124, 0x128, 0x300
L_QB, L_EP, L_CT, L_DN, L_WM, L_HT, L_O, L_ML, L_OC, L_S = 0x0, 0x100, 0x108, 0x10C, 0x110, 0x140, 0x400, 0xC00, 0xD00, 0x1000
OOB = 0x40000000
POLL_MAX = 400000

def dpp(ctrl): return f"{ctrl} row_mask:0xf bank_mask:0xf"

def wave_sum(e, v, sa):
    for c in ("quad_perm:[1,0,3,2]", "quad_perm:[2,3,0,1]", "row_half_mirror", "row_mirror"):
        e("s_nop 1")
        e(f"v_add_f32_dpp v{v}, v{v}, v{v} {dpp(c)}")
    e("s_nop 0")
    for i in range(4): e(f"v_readlane_b32 s{sa+i}, v{v}, {16*i}")
    e("s_nop 1")
    e(f"v_mov_b32 v{v}, s{sa}")
    for i in range(1, 4): e(f"v_add_f32 v{v}, s{sa+i}, v{v}")

def round_bf16(e, vd, vs):
    e(f"v_cvt_pk_bf16_f32 v{vd}, v{vs}, v{vs}")
    e(f"v_and_b32 v{vd}, 0xffff0000, v{vd}")

def srd(e, d, b, nbytes):
    e(f"s_mov_b32 s{d}, s{b}"); e(f"s_mov_b32 s{d+1}, s{b+1}")
    e(f"s_mov_b32 s{d+2}, {nbytes}"); e(f"s_mov_b32 s{d+3}, 0x00020000")

def gen_main(e, G=1, NS=60, DA=16, thrf=6, thr=(5,6,6,6), thrv=6, thrd=12, ts=False, noex=False, now='', rotr=False, pg='r', gran=1, granf=1, nost=False, nocomp=False, BU=8, upol='nt', VF=1, thre=12, opol='', st0=False, pre=2, late=6, tlb=1, pubw=3, loc=1, NLOC=80, lpol='nt', nofb=False, finh=0, nowf2=False, NSET=1, slp=5, zearly=True, lazy=True, DL=6, B0=3, fpace=3):
    D = 2; N = 4*NS
    assert G == 1 and BU == 8 and NS*32 + 8*B0 + 3*DL <= 2048
    NMAX = N + B0 + DL
    if thrv is None: thrv = thr
    if thrd is None: thrd = thr
    m = 8 // G; lg = G.bit_length()-1; lm = m.bit_length()-1
    DYN = NS*32 + 8*B0 + 4*DL
    sN, sNV, sXB, sDyn, sPool = 26, 27, 65, 52, 53
    sK, sV, sWQ, sWO, sX, sW1, sW2, sWS, sOUT = 28, 32, 36, 40, 44, 48, 52, 56, 76
    sH, sS, sWave = 60, 61, 3
    sU, sCnt, sNC = 62, 64, 65
    sB = 36
    T = 66
    sHB, sP = 74, 75
    sTA, sTB = 80, 81
    sTk, sC0, sTKa = 84, 85, 86
    sEnd, sEnd2, sPos, sJ, sO = 88, 89, 90, 91, 92
    sRL = 96
    sTS = 100
    vZero, vKo, vVo, vM, vC, vT, vP, vM0, vM1, vSt = 1, 2, 3, 4, 6, 7, 8, 9, 10, 11
    vB = 12; vb, vn = 14, 15
    vS = 16; vMk = 20; vA = 24; vA2 = 28; vD2 = 32
    vBq = 36; vO = 52; vW = 84
    vW2 = 148; vG = 172
    vLa = 220
    vOnes = 224
    vJ, vOne, vWOo, vPP = 226, 227, 228, 229
    vL4, vAd = 230, 231
    vX4 = 232
    vHG = 232
    vt = 236
    vTS = 248
    def stamp(i):
        if ts:
            e(f"s_memrealtime s[{sTS}:{sTS+1}]")
            e("s_waitcnt lgkmcnt(0)")
            e(f"v_mov_b32 v{vTS+i}, s{sTS}")
    def bbase(b, i):
        if b < 16: return "a", b*16 + i*4
        return "v", vW + (b-16)*16 + i*4
    def buf(b, i): c, r = bbase(b, i); return f"{c}[{r}:{r+3}]"
    def bufh(b, i, half): c, r = bbase(b, i); r += 2*half; return f"{c}[{r}:{r+1}]"
    def v4(r): return f"v[{r}:{r+3}]"
    def a4(r): return f"a[{r}:{r+3}]"
    assert 4 <= DA <= 20
    rounds = []
    cur = list(range(DA))
    while True:
        if len(cur) <= 8:
            step = (len(cur)-1) / 3
            keep = [cur[round(i*step)] for i in range(4)]
        else: keep = cur[0::2]
        rounds.append([(p, p in keep) for p in cur])
        cur = keep
        if len(cur) == 4: break
    buf_of = {p: i for i, p in enumerate(cur)}
    nxt = 4
    for p in range(DA):
        if p not in buf_of: buf_of[p] = nxt; nxt += 1
    assert buf_of[0] == 0
    NREF = sum(r for rd in rounds for _, r in rd)
    J1 = 3*DA
    J2 = J1
    J3 = J2 + 3*NREF
    assert J3 <= N

    e.raw(f".globl {KNAME}"); e.raw(".p2align 8"); e.raw(f".type {KNAME},@function"); e.label(KNAME)
    e("s_cmp_ge_u32 s2, 256")
    e("s_cbranch_scc1 L_end")
    e("s_load_dwordx16 s[4:19], s[0:1], 0")
    e("s_load_dwordx4 s[20:23], s[0:1], 64")
    e("s_load_dwordx2 s[24:25], s[0:1], 80")
    e(f"s_memrealtime s[{sTA}:{sTA+1}]")
    e("v_lshrrev_b32 v1, 6, v0")
    e("v_and_b32 v0, 63, v0")
    e(f"s_and_b32 s{T}, s2, 7")
    e(f"v_readfirstlane_b32 s{sWave}, v1")
    e(f"s_lshr_b32 s{T+1}, s2, 3")
    e(f"s_lshr_b32 s{T+2}, s{T}, {lg}")
    e(f"s_and_b32 s{T+3}, s{T}, {G-1}")
    e(f"s_lshr_b32 s{sH}, s{T+1}, {lm}")
    e(f"s_and_b32 s{T+4}, s{T+1}, {m-1}")
    e(f"s_mul_i32 s{sH}, s{sH}, {8//G}")
    e(f"s_add_u32 s{sH}, s{sH}, s{T+2}")
    e(f"s_mul_i32 s{sS}, s{T+3}, {m}")
    e(f"s_add_u32 s{sS}, s{sS}, s{T+4}")
    e(f"s_lshl_b32 s{sHB}, s{sH}, 23")
    if G == 8: e(f"s_add_u32 s{sPos}, s{sS}, s{sH}")
    else: e(f"s_mov_b32 s{sPos}, s{sS}")
    e(f"s_and_b32 s{sPos}, s{sPos}, 7")
    sCw = 63
    e(f"s_lshr_b32 s{sCw}, s{sH}, 3")
    e(f"v_lshrrev_b32 v{vb}, 4, v0")
    e(f"v_and_b32 v{vn}, 15, v0")
    e(f"v_lshlrev_b32 v{vVo}, 4, v0")
    e(f"v_bfe_u32 v{vt}, v0, 2, 2")
    e(f"v_lshlrev_b32 v{vKo}, 8, v{vt}")
    e(f"v_lshl_add_u32 v{vKo}, v{vb}, 6, v{vKo}")
    e(f"v_and_b32 v{vt+1}, 3, v0")
    e(f"v_lshl_add_u32 v{vKo}, v{vt+1}, 4, v{vKo}")
    e(f"v_mov_b32 v{vZero}, 0")
    e(f"v_mov_b32 v{vt}, 0"); e(f"v_mov_b32 v{vt+1}, 0"); e(f"v_mov_b32 v{vt+2}, {J3}"); e(f"v_mov_b32 v{vt+3}, 0")
    e(f"ds_write_b128 v{vZero}, {v4(vt)} offset:{L_EP}")
    e(f"ds_write_b64 v{vZero}, v[{vt}:{vt+1}] offset:{L_FL}")
    e(f"ds_write_b64 v{vZero}, v[{vt}:{vt+1}] offset:{L_FL+8}")
    e(f"s_and_b32 s{T}, s{sH}, 7")
    e(f"s_mul_i32 s{T}, s{T}, 43")
    e(f"s_add_u32 s{T+1}, s{T}, 43")
    e(f"s_lshr_b32 s{T}, s{T}, 3")
    e(f"s_lshr_b32 s{T+1}, s{T+1}, 3")
    e(f"s_sub_u32 s{T+1}, s{T+1}, s{T}")
    e(f"s_add_u32 s{T}, s{sCw}, 4")
    e(f"s_cmp_lt_u32 s{T}, s{T+1}")
    e(f"s_cselect_b32 s{T}, 6, 5")
    e(f"s_cmp_lt_u32 s{sS}, s{T}")
    e(f"s_cselect_b32 s{sN}, 0, {DL}")
    e(f"s_add_u32 s{sN}, s{sN}, {N + B0}")
    e(f"s_sub_u32 s{sNV}, s{sN}, {VF}")
    e(f"s_sub_u32 s{T+1}, 8, s{T}")
    e(f"s_mul_i32 s{T+1}, s{T+1}, {DL}")
    e(f"s_add_u32 s{sDyn}, s{T+1}, {NS*32 + 8*B0}")
    e(f"s_sub_u32 s{sPool}, 2048, s{sDyn}")
    e(f"s_max_u32 s{sXB}, s{sS}, s{T}")
    e(f"s_sub_u32 s{sXB}, s{sXB}, s{T}")
    e(f"s_mul_i32 s{sXB}, s{sXB}, {DL}")
    e(f"s_mul_i32 s{T}, s{sS}, {B0}")
    e(f"s_add_u32 s{sXB}, s{sXB}, s{T}")
    e(f"s_add_u32 s{sXB}, s{sXB}, {NS*32 - N}")
    e(f"s_lshl_b32 s{sXB}, s{sXB}, 12")
    e(f"s_add_u32 s{sXB}, s{sXB}, s{sHB}")
    e(f"s_lshl_b32 s{T}, s{sN}, 8")
    e(f"v_lshlrev_b32 v{vt+4}, 2, v0")
    e(f"v_add_u32 v{vt+4}, s{T}, v{vt+4}")
    e(f"v_mov_b32 v{vt+5}, {f32(-3.0e38)}")
    e(f"ds_write_b32 v{vt+4}, v{vt+5} offset:{L_S}")

    def addr_local(extra=False):
        if BU == 8:
            assert pg == 'r' and not rotr and N % 8 == 0
            e(f"s_lshr_b32 s{sO+1}, s{sJ}, 3")
            e(f"s_lshl_b32 s{sO+1}, s{sO+1}, 3")
            e(f"s_add_u32 s{sO+1}, s{sO+1}, s{sPos}")
            e(f"s_lshl_b32 s{sO+1}, s{sO+1}, 1")
            e(f"s_lshl_b32 s{sO+2}, s{sCw}, 1")
            e(f"s_add_u32 s{sO+2}, s{sJ}, s{sO+2}")
            e(f"s_and_b32 s{sO+2}, s{sO+2}, 7")
            blk_addr()
            if extra:
                e(f"s_lshl_b32 s{sO+1}, s{sJ}, 12")
                e(f"s_add_u32 s{sO+1}, s{sO+1}, s{sXB}")
                e(f"s_cmp_ge_u32 s{sJ}, {N}")
                e(f"s_cselect_b32 s{sO}, s{sO+1}, s{sO}")
            return
        e(f"s_lshr_b32 s{sO+1}, s{sJ}, 2")
        if G == 8 and rotr:
            e(f"s_add_u32 s{sO+2}, s{sO+1}, s{sPos}")
            e(f"s_and_b32 s{sO+2}, s{sO+2}, 7")
            e(f"s_lshl_b32 s{sO+1}, s{sO+1}, 3")
            e(f"s_add_u32 s{sO+1}, s{sO+1}, s{sO+2}")
        else:
            e(f"s_lshl_b32 s{sO+1}, s{sO+1}, 3")
            e(f"s_add_u32 s{sO+1}, s{sO+1}, s{sPos}")
        if pg:
            e(f"s_add_u32 s{sO+2}, s{sJ}, s{sCw}")
            e(f"s_and_b32 s{sO+2}, s{sO+2}, 3")
        else:
            e(f"s_and_b32 s{sO+2}, s{sJ}, 3")
        blk_addr()
    def blk_addr():
        e(f"s_lshl_b32 s{sO+1}, s{sO+1}, 14")
        e(f"s_lshl_b32 s{sO+2}, s{sO+2}, {10 if pg == 'x' else 12}")
        e(f"s_add_u32 s{sO+1}, s{sO+1}, s{sO+2}")
        e(f"s_add_u32 s{sO}, s{sO+1}, s{sHB}")
        if pg == 'x':
            for i in range(1, 4): e(f"s_xor_b32 s{sO+i}, s{sO}, {i*5120}")
    def so(i): return f"s{sO+i} offen" if pg == 'x' else f"s{sO} offen offset:{i*1024}"
    def req_local():
        e("s_mov_b64 exec, 1")
        e(f"ds_add_rtn_u32 v{vJ}, v{vZero}, v{vOne} offset:{L_CT}")
        e("s_mov_b64 exec, -1")
    def issue(b, isV, th=None, gr=1):
        vo, sr = (vVo, sV) if isV else (vKo, sK)
        for i in range(4):
            if th is not None and i % gr == 0: e(f"s_waitcnt vmcnt({th[i] if isinstance(th, (list, tuple)) else th})")
            e.mem(f"buffer_load_dwordx4 {buf(b,i)}, v{vo}, s[{sr}:{sr+3}], {so(i)} nt", f"B{b}")

    def consts():
        t = vt+8
        e(f"v_and_b32 v{t}, 1, v0")
        e(f"v_lshlrev_b32 v{t}, 4, v{t}")
        e(f"v_mov_b32 v{t+1}, 0xffff")
        e(f"v_lshlrev_b32 v{t+1}, v{t}, v{t+1}")
        e(f"v_and_b32 v{t+2}, 2, v0")
        e(f"v_cmp_eq_u32 vcc, 0, v{t+2}")
        e(f"v_bfe_u32 v{t+2}, v0, 1, 2")
        e("s_nop 0")
        e(f"v_cndmask_b32 v{vM0}, 0, v{t+1}, vcc")
        e(f"v_cndmask_b32 v{vM1}, v{t+1}, 0, vcc")
        for r in range(4):
            e(f"v_cmp_eq_u32 vcc, {r}, v{t+2}")
            e("s_nop 1")
            e(f"v_cndmask_b32 v{vMk+r}, 0, v{t+1}, vcc")
        e(f"v_mov_b32 v{vC}, {f32((128**-0.5)*1.4426950408889634)}")
        e(f"v_mov_b32 v{vM}, {f32(-3.0e38)}")
        for i in range(4): e(f"v_mov_b32 v{vLa+i}, 0")
        e(f"v_mov_b32 v{vOnes}, 0x3f803f80"); e(f"v_mov_b32 v{vOnes+1}, 0x3f803f80")
        for i in range(32): e(f"v_mov_b32 v{vO+i}, 0")
        e(f"v_mov_b32 v{vOne}, 1")
        e(f"v_lshlrev_b32 v{vL4}, 2, v0")
        e(f"v_lshlrev_b32 v{vSt}, 6, v{vn}")
        e(f"v_and_b32 v{t}, 1, v{vb}")
        e(f"v_lshl_add_u32 v{vSt}, v{t}, 5, v{vSt}")
        e(f"v_lshrrev_b32 v{t}, 1, v{vb}")
        e(f"v_lshl_add_u32 v{vSt}, v{t}, 4, v{vSt}")
        srd(e, sWS, 24, 0 if nost else WS_END); srd(e, sX, 4, 1024)
        e(f"s_mov_b32 s{sEnd}, 0x7fffffff")
        e(f"s_lshl_b32 s{sP}, s{sH}, 3")
        e(f"s_add_u32 s{sP}, s{sP}, s{sS}")
    def ffn_range():
        e(f"s_min_u32 s{T}, s{sH}, 12")
        e(f"s_mul_i32 s{sC0}, s{sH}, 5")
        e(f"s_add_u32 s{sC0}, s{sC0}, s{T}")
        e(f"s_cmp_lt_u32 s{sH}, 12")
        e(f"s_cselect_b32 s{sNC}, 6, 5")
    def tk_addr():
        e(f"s_lshl_b32 s{T}, s{sH}, 8")
        e(f"s_add_u32 s{T}, s{T}, {TK}")
        e(f"s_add_u32 s{sTKa}, s24, s{T}")
        e(f"s_addc_u32 s{sTKa+1}, s25, 0")

    sTL = sTA + 2
    def local_tag():
        e(f"s_getreg_b32 s{sTL}, hwreg(HW_REG_XCC_ID, 0, 4)")
        e(f"s_add_u32 s{sTL}, s{sTL}, 1")
        e(f"s_lshl_b32 s{sTL}, s{sTL}, 24")
        e(f"s_xor_b32 s{sTL}, s{sTL}, s{sTB}")
    def tagcheck(regs, acc, tmp, tb=None):
        tb = sTB if tb is None else tb
        for k, r in enumerate(regs):
            e(f"v_xor_b32 v{tmp}, s{sTA}, v{r+1}")
            e(f"v_xor_b32 v{tmp+1}, s{tb}, v{r+3}")
            if k == 0: e(f"v_or_b32 v{acc}, v{tmp}, v{tmp+1}")
            else: e(f"v_or3_b32 v{acc}, v{tmp}, v{tmp+1}, v{acc}")
        e(f"v_cmp_ne_u32 vcc, 0, v{acc}")
    def poll(name, loads, regs, after=None, nafter=0):
        if noex and name in ("q", "h"):
            e("s_waitcnt vmcnt(0)"); return
        if after is not None:
            for l in loads: e(l)
            after()
            e(f"s_waitcnt vmcnt({nafter})")
            tagcheck(regs, vt+10, vt+8)
            e(f"s_cbranch_vccz L_polld_{name}")
        e(f"s_mov_b32 s{T+7}, {POLL_MAX}")
        e.label(f"L_poll_{name}")
        for l in loads: e(l)
        e(f"s_sub_u32 s{T+7}, s{T+7}, 1")
        e("s_waitcnt vmcnt(0)")
        tagcheck(regs, vt+10, vt+8)
        e(f"s_cbranch_vccz L_polld_{name}")
        e(f"s_cmp_lg_u32 s{T+7}, 0")
        e(f"s_cbranch_scc1 L_poll_{name}")
        e.label(f"L_polld_{name}")

    def build_bq():
        u0 = vt
        e(f"v_and_b32 v{u0}, 3, v0")
        e(f"v_lshl_add_u32 v{u0}, v{vb}, 2, v{u0}")
        e(f"v_lshlrev_b32 v{u0}, 4, v{u0}")
        e(f"ds_read_b128 {v4(vA)}, v{u0} offset:{L_QB}")
        e(f"v_bfe_u32 v{u0+1}, v0, 2, 2")
        e("s_waitcnt lgkmcnt(0)")
        for u in range(4):
            e(f"v_cmp_eq_u32 vcc, {u}, v{u0+1}")
            e("s_nop 1")
            for r in range(4): e(f"v_cndmask_b32 v{vBq+4*u+r}, 0, v{vA+r}, vcc")

    resc = []
    def qk(b):
        if nocomp: return
        for u in range(4):
            c = "0" if u == 0 else v4(vS)
            e(f"v_mfma_f32_16x16x32_bf16 {v4(vS)}, {buf(b,u)}, {v4(vBq+4*u)}, {c}")
    def score():
        for r in range(4):
            e(f"v_mul_f32_dpp v{vA+r}, v{vS+r}, v{vC} {dpp(f'quad_perm:[{r},{r},{r},{r}]')}")
        e(f"v_add_f32 v{vA}, v{vA}, v{vA+1}")
        e(f"v_add_f32 v{vA+2}, v{vA+2}, v{vA+3}")
        e(f"v_add_f32 v{vT}, v{vA}, v{vA+2}")
    def score_store():
        score()
        e(f"v_max_f32 v{vM}, v{vM}, v{vT}")
        e(f"ds_write_b32 v{vAd}, v{vT} offset:{L_S}")
    def prob(src):
        e(f"v_sub_f32 v{vP}, v{src}, v{vM}")
        e(f"v_exp_f32 v{vP}, v{vP}")
        e("s_nop 0")
        e(f"v_cvt_pk_bf16_f32 v{vP}, v{vP}, v{vP}")
        e(f"v_and_b32 v{vB}, v{vP}, v{vM0}")
        e(f"v_and_b32 v{vB+1}, v{vP}, v{vM1}")
    def pv(b):
        if nocomp: return
        e(f"v_mfma_f32_16x16x16_bf16 {v4(vLa)}, v[{vOnes}:{vOnes+1}], v[{vB}:{vB+1}], {v4(vLa)}")
        for u in range(4):
            for hf in range(2):
                o = vO + (u*2+hf)*4
                e(f"v_mfma_f32_16x16x16_bf16 {v4(o)}, {bufh(b,u,hf)}, v[{vB}:{vB+1}], {v4(o)}")
    def wave_max(dst, src):
        e(f"v_max_f32_dpp v{dst}, v{src}, v{src} {dpp('row_ror:4')}")
        e("s_nop 1")
        e(f"v_max_f32_dpp v{dst}, v{dst}, v{dst} {dpp('row_ror:8')}")
        e("s_nop 0")
        for i in range(4): e(f"v_readlane_b32 s{sRL+i}, v{dst}, {16*i}")
        e("s_nop 1")
        e(f"v_mov_b32 v{dst}, s{sRL}")
        for i in range(1, 4): e(f"v_max_f32 v{dst}, s{sRL+i}, v{dst}")
    uniq = [0]
    stubs = []
    def take_dyn(slot, endval=2):
        uniq[0] += 1
        e("s_waitcnt lgkmcnt(0)")
        e(f"s_cmp_lt_u32 s{sTk}, s{sPool}")
        e(f"s_cselect_b32 s{sK+2}, 0x10000000, 0")
        e(f"s_cselect_b32 s{sV+2}, 0x10000000, 0")
        e(f"s_cselect_b32 s{sEnd2}, s{sEnd}, {endval}")
        e(f"s_cselect_b32 s{sU}, s{sTk}, 0")
        e(f"s_cbranch_scc0 L_inv{uniq[0]}")
        e(f"s_mov_b32 s{sTk}, 1")
        e(f"s_atomic_add s{sTk}, s[{sTKa}:{sTKa+1}], 0x0 glc")
        e.label(f"L_notk{uniq[0]}")
        e(f"s_min_u32 s{sEnd}, s{sEnd}, s{sEnd2}")
        e(f"s_add_u32 s{sU}, s{sU}, s{sDyn}")
        e(f"s_lshr_b32 s{sO+1}, s{sU}, 2")
        e(f"s_and_b32 s{sO+2}, s{sU}, 3")
        blk_addr()
        e.label(f"L_tkd{uniq[0]}")
        stubs.append((uniq[0], slot))
    def dyn_group(d):
        e.label(f"L_dyn{d}")
        e(f"s_sub_u32 s{sEnd}, s{sEnd}, 1")
        e(f"s_cmp_eq_u32 s{sEnd}, 0")
        e("s_cbranch_scc1 L_done")
        e("s_waitcnt vmcnt(12)")
        qk(2*d)
        take_dyn(d)
        issue(2*d, False, thrd, gran)
        score()
        e(f"v_cmp_gt_f32 vcc, v{vT}, v{vM}")
        e(f"s_cbranch_vccnz L_rescd{d}")
        e.label(f"L_backd{d}")
        resc.append(f"d{d}")
        prob(vT)
        e("s_waitcnt vmcnt(12)")
        e("s_nop 0")
        pv(2*d+1)
        issue(2*d+1, True, thrd, gran)
    def k_static(b, gen, jcur, jref):
        e.wait(f"B{b}", gen)
        qk(b)
        e(f"s_add_u32 s{T}, s{sWave}, {jcur-1}")
        e(f"s_lshl_b32 s{T}, s{T}, 8")
        e(f"v_add_u32 v{vAd}, s{T}, v{vL4}")
        if jref is not None:
            e(f"s_add_u32 s{sJ}, s{sWave}, {jref-1}")
            addr_local()
            if b < 4: e(f"s_lshl_b32 s{sB+b}, s{sJ}, 8")
        else: e("s_nop 4")
        score_store()
        if jref is not None: issue(b, False, thr, gran)

    e(f"s_cmp_eq_u32 s{sWave}, 0")
    e("s_cbranch_scc1 L_wave0")
    e(f"s_add_u32 s{sJ}, s{sWave}, -1")
    addr_local()
    e("s_waitcnt lgkmcnt(0)")
    if ts:
        e(f"v_mov_b32 v{vTS}, s{sTA}")
        for i in range(1, 8): e(f"v_mov_b32 v{vTS+i}, 0")
    srd(e, sK, 6, 0x10000000); srd(e, sV, 8, 0x10000000)
    if st0: stamp(6)
    issue(0, False)
    e(f"s_add_u32 s{sJ}, s{sWave}, 2")
    addr_local(); issue(buf_of[1], False)
    e("s_barrier")
    consts(); tk_addr()
    if st0:
        e("s_waitcnt vmcnt(7)"); stamp(3)
    for p in range(2, DA):
        e(f"s_add_u32 s{sJ}, s{sWave}, {3*p - 1}")
        addr_local(); issue(buf_of[p], False, thrf if p >= pre else None, granf)
    e.label("L_waitq")
    e(f"ds_read_b64 v[{vt+2}:{vt+3}], v{vZero} offset:{L_EP}")
    e("s_waitcnt lgkmcnt(0)")
    e(f"v_or_b32 v{vt+4}, v{vt+2}, v{vt+3}")
    e(f"v_cmp_eq_u32 vcc, 0, v{vt+4}")
    e("s_cbranch_vccnz L_waitq")
    e(f"v_readfirstlane_b32 s{sTA}, v{vt+2}")
    e(f"v_readfirstlane_b32 s{sTB}, v{vt+3}")
    e("s_nop 0")
    local_tag()
    build_bq()
    stamp(2)
    k = 0
    jc = {p: 3*p for p in range(DA)}
    for gi, rd in enumerate(rounds):
        for p, rf in rd:
            k_static(buf_of[p], gi, jc[p], J2 + 3*k if rf else None)
            if rf: jc[p] = J2 + 3*k
            k += rf
    def w2_loads():
        ffn_range()
        srd(e, sW2, 18, 0 if "2" in now else 1376*512*2)
        vE = vt+5
        e(f"v_lshrrev_b32 v{vE}, 3, v0")
        e(f"v_and_b32 v{vt+6}, 7, v0")
        e(f"v_lshlrev_b32 v{vt+6}, 4, v{vt+6}")
        e(f"v_lshl_add_u32 v{vt+7}, v{vE}, 10, v{vt+6}")
        e(f"s_lshl_b32 s{T}, s{sC0}, 13")
        e(f"s_lshl_b32 s{T+1}, s{sS}, 7")
        e(f"s_add_u32 s{T}, s{T}, s{T+1}")
        for t in range(6):
            if t == 5:
                e(f"s_cmp_eq_u32 s{sNC}, 6")
                e(f"s_cselect_b32 s{sW2+2}, s{sW2+2}, 0")
                e(f"s_cselect_b32 s{T}, s{T}, 0")
            e(f"buffer_load_dwordx4 {v4(vW2+t*4)}, v{vt+7}, s[{sW2}:{sW2+3}], s{T} offen nt")
            if t < 5: e(f"s_add_u32 s{T}, s{T}, 8192")
    if not late:
        e(f"s_cmp_lg_u32 s{sWave}, 2")
        e("s_cbranch_scc1 L_stream")
        w2_loads()
    e("s_branch L_stream")
    e.label("L_wave0")
    e.vm = []
    aU = 128
    sStr, sPub, sFlo = sW1, sW1+1, sW1+2
    sCol, sHas = sW1+3, sCnt
    e(f"s_and_b32 s{T}, s{sH}, 7")
    e(f"s_lshr_b32 s{T+1}, s{sH}, 3")
    e(f"s_lshl_b32 s{T+2}, s{T}, 2")
    e(f"s_add_u32 s{T+2}, s{T+2}, s{T+1}")
    e(f"s_lshl_b32 s{T+2}, s{T+2}, 2")
    e(f"s_add_u32 s{T+2}, s{T+2}, s{sS}")
    e(f"s_mul_i32 s{T+3}, s{T}, 43")
    e(f"s_add_u32 s{T+6}, s{T+3}, 43")
    e(f"s_lshr_b32 s{T+3}, s{T+3}, 3")
    e(f"s_lshr_b32 s{T+6}, s{T+6}, 3")
    e(f"s_lshl_b32 s{T}, s{sS}, 2")
    e(f"s_add_u32 s{T+3}, s{T+3}, s{T}")
    e(f"s_add_u32 s{T+3}, s{T+3}, s{T+1}")
    e(f"s_sub_u32 s{T+3}, s{T+3}, 16")
    e(f"s_sub_u32 s{sHas}, s{T+6}, s{T+3}")
    e(f"s_mov_b32 s{sStr}, 2752")
    e(f"s_mov_b32 s{sWQ+2}, {0 if '1' in now else 512*1376*2}")
    e(f"s_cmp_lt_u32 s{sS}, 4")
    e(f"s_cselect_b32 s{sHas}, 1, s{sHas}")
    e(f"s_cselect_b32 s{T+3}, s{T+2}, s{T+3}")
    e(f"s_cselect_b32 s{sStr}, 8192, s{sStr}")
    e(f"s_cselect_b32 s{sPub}, {QP}, {HP}")
    e(f"s_cselect_b32 s{sFlo}, 0xff800000, 0")
    e(f"s_cselect_b32 s{sWQ+2}, {0 if 'q' in now else 512*4096*2}, s{sWQ+2}")
    e(f"s_cselect_b32 s{T+7}, s{T+2}, 1")
    e(f"s_lshl_b32 s{T}, s{T+3}, 7")
    e(f"s_add_u32 s{sPub}, s{sPub}, s{T}")
    e(f"s_lshl_b32 s{sCol}, s{T+3}, 6")
    e(f"s_lshl_b32 s{T}, s{sStr}, 5")
    e(f"v_lshrrev_b32 v{vPP}, 2, v0")
    e(f"v_mul_lo_u32 v{vPP}, v{vPP}, s{T}")
    e(f"v_and_b32 v{vt+1}, 3, v0")
    e(f"v_lshl_add_u32 v{vPP}, v{vt+1}, 4, v{vPP}")
    e(f"v_and_b32 v{vt+6}, 7, v0")
    e(f"v_lshlrev_b32 v{vt+6}, 4, v{vt+6}")
    if late == 5:
        e(f"v_lshrrev_b32 v{vt+7}, 3, v0")
        e(f"v_lshl_add_u32 v{vWOo}, v{vt+7}, 14, v{vt+6}")
    else:
        e(f"v_lshl_add_u32 v{vWOo}, v{vb}, 15, v{vt+6}")
        e(f"v_bfe_u32 v{vt+7}, v0, 3, 1")
        e(f"v_lshl_add_u32 v{vWOo}, v{vt+7}, 11, v{vWOo}")
    e(f"s_cmp_lt_u32 s{sS}, 4")
    e("s_waitcnt lgkmcnt(0)")
    e(f"s_cselect_b32 s{sWQ}, s10, s16")
    e(f"s_cselect_b32 s{sWQ+1}, s11, s17")
    e(f"s_mov_b32 s{sWQ+3}, 0x00020000")
    if ts:
        e(f"v_mov_b32 v{vTS}, s{sTA}")
        for i in range(1, 8): e(f"v_mov_b32 v{vTS+i}, 0")
    e(f"s_mov_b32 s{T+4}, s{sTA}"); e(f"s_mov_b32 s{T+5}, s{sTA+1}")
    def resolve_epoch(n):
        e("s_waitcnt lgkmcnt(0)")
        e(f"s_or_b32 s{T}, s{sTA}, s{sTA+1}")
        e(f"s_cmp_lg_u32 s{T}, 0")
        e(f"s_cbranch_scc1 L_haveep{n}")
        e(f"s_mov_b32 s{sTA}, s{T+4}"); e(f"s_mov_b32 s{sTA+1}, s{T+5}")
        e(f"s_mov_b32 s{sTA+2}, 0"); e(f"s_mov_b32 s{sTA+3}, 0")
        e(f"s_atomic_cmpswap_x2 s[{sTA}:{sTA+3}], s[22:23], 0x0 glc")
        e("s_waitcnt lgkmcnt(0)")
        e(f"s_or_b32 s{T}, s{sTA}, s{sTA+1}")
        e(f"s_cmp_eq_u32 s{T}, 0")
        e(f"s_cselect_b32 s{sTA}, s{T+4}, s{sTA}")
        e(f"s_cselect_b32 s{sTB}, s{T+5}, s{sTB}")
        e.label(f"L_haveep{n}")
    def w0_fills(bs):
        for b in bs:
            e(f"s_mov_b32 s{sJ}, {J1 + b}")
            e(f"s_mov_b32 s{sB+b}, {(J1 + b) << 8}")
            addr_local(); issue(b, False, thr if b >= 2 else None, gran)
    def wo_loads():
        srd(e, sWO, 12, 0 if "o" in now else 4096*512*2)
        e(f"s_lshl_b32 s{T}, s{sH}, 17")
        e(f"s_lshl_b32 s{T+1}, s{sS}, 7")
        e(f"s_add_u32 s{T}, s{T}, s{T+1}")
        for t8 in range(8):
            dT = 8*(t8 & 3) + 4*(t8 >> 2)
            e(f"s_add_u32 s{T+1}, s{T}, {dT*1024}")
            e(f"buffer_load_dwordx4 {v4(vW+t8*4)}, v{vWOo}, s[{sWO}:{sWO+3}], s{T+1} offen nt")
            e(f"buffer_load_dwordx4 {v4(vW+(t8+8)*4)}, v{vWOo}, s[{sWO}:{sWO+3}], s{T+1} offen offset:1024 nt")
    e(f"s_cmp_gt_i32 s{sHas}, 0")
    e("s_cbranch_scc1 L_task")
    e("s_barrier")
    if not late: wo_loads()
    srd(e, sK, 6, 0x10000000); srd(e, sV, 8, 0x10000000)
    consts(); tk_addr()
    e(f"buffer_load_dword v{vG+8}, v{vZero}, s[{sV}:{sV+3}], s{sHB} offen nt")
    e("s_waitcnt vmcnt(0)")
    e(f"s_load_dwordx2 s[{sTA}:{sTA+1}], s[22:23], 0x0")
    resolve_epoch(0)
    e("s_branch L_join")
    e.label("L_task")
    def task(first):
        e.vm = []
        srd(e, sX, 4, 1024)
        e.mem(f"buffer_load_dwordx4 {v4(vX4)}, v{vVo}, s[{sX}:{sX+3}], 0 offen", "x4")
        for i in range(32):
            if not first: e(f"s_waitcnt vmcnt({fpace})")
            e.mem(f"buffer_load_dwordx4 {a4(aU+i*4)}, v{vPP}, s[{sWQ}:{sWQ+3}], s{sCol} offen {upol}", f"u{i}")
            if i < 31: e(f"s_add_u32 s{sCol}, s{sCol}, s{sStr}")
            if i == 3 and first:
                e(f"s_mov_b32 s{sTA+2}, 0"); e(f"s_mov_b32 s{sTA+3}, 0")
                e("s_cmp_ge_u32 s2, 8")
                e("s_cbranch_scc1 L_nocas0")
                e(f"s_atomic_cmpswap_x2 s[{sTA}:{sTA+3}], s[22:23], 0x0 glc")
                e.label("L_nocas0")
                e("s_barrier")
        if first:
            e(f"s_and_b32 s{T}, s{T+7}, 3")
            e(f"s_cmp_lg_u32 s{T}, 0")
            e("s_cbranch_scc1 L_notk")
            e(f"s_lshl_b32 s{T}, s{T+7}, 6")
            e(f"s_add_u32 s{T}, s{T}, {TK}")
            e(f"s_add_u32 s{sTKa}, s24, s{T}")
            e(f"s_addc_u32 s{sTKa+1}, s25, 0")
            e(f"s_mov_b32 s{sTk}, {0 if VF else 32}")
            e(f"s_atomic_swap s{sTk}, s[{sTKa}:{sTKa+1}], 0x0 glc")
            e.label("L_notk")
            srd(e, sK, 6, 0x10000000); srd(e, sV, 8, 0x10000000)
            consts(); tk_addr()
        e.wait("x4")
        x = vt; a, b_ = vt+8, vt+9
        vPp = vG
        for i in range(4):
            e(f"v_lshlrev_b32 v{vPp+2*i}, 16, v{vX4+i}")
            e(f"v_and_b32 v{vPp+2*i+1}, 0xffff0000, v{vX4+i}")
        e(f"v_add_f32 v{a}, v{vPp}, v{vPp+1}")
        for i in range(2, 8): e(f"v_add_f32 v{a}, v{a}, v{vPp+i}")
        wave_sum(e, a, sRL)
        e(f"v_mul_f32 v{a}, {f32(1/512)}, v{a}")
        e(f"v_mov_b32 v{b_}, 0")
        for i in range(8):
            e(f"v_sub_f32 v{x+i}, v{vPp+i}, v{a}")
            e(f"v_fmac_f32 v{b_}, v{x+i}, v{x+i}")
        wave_sum(e, b_, sRL)
        e(f"v_mul_f32 v{b_}, {f32(1/512)}, v{b_}")
        round_bf16(e, a, a)
        round_bf16(e, b_, b_)
        e(f"v_add_f32 v{b_}, {f32(1e-5)}, v{b_}")
        round_bf16(e, b_, b_)
        e(f"v_sqrt_f32 v{b_}, v{b_}")
        e("s_nop 0")
        round_bf16(e, b_, b_)
        e(f"v_rcp_f32 v{b_}, v{b_}")
        for i in range(8): e(f"v_sub_f32 v{vPp+i}, v{vPp+i}, v{a}")
        for i in range(8): round_bf16(e, vPp+i, vPp+i)
        for i in range(8): e(f"v_mul_f32 v{vPp+i}, v{vPp+i}, v{b_}")
        for i in range(8): e(f"v_cvt_pk_bf16_f32 v{vPp+i}, v{vPp+i}, v{vPp+i}")
        if first:
            e("s_waitcnt lgkmcnt(0)")
            e(f"s_load_dwordx2 s[{sTA}:{sTA+1}], s[22:23], 0x0")
        else: e("s_nop 1")
        def coef(i):
            t, ee = i >> 3, i & 7
            d = vA + 2*(i & 1)
            e(f"v_and_b32_dpp v{d}, v{vPp+ee}, v{vM0} {dpp(f'quad_perm:[{t},{t},{t},{t}]')}")
            e(f"v_and_b32_dpp v{d+1}, v{vPp+ee}, v{vM1} {dpp(f'quad_perm:[{t},{t},{t},{t}]')}")
        coef(0)
        for i in range(32):
            if i + 1 < 32: coef(i+1)
            if i % 4 == 0: e.wait(f"u{i+3}")
            d = vA + 2*(i & 1)
            for hf, acc in ((0, vS), (1, vD2)):
                c = "0" if i == 0 else v4(acc)
                e(f"v_mfma_f32_16x16x16_bf16 {v4(acc)}, v[{d}:{d+1}], a[{aU+i*4+2*hf}:{aU+i*4+2*hf+1}], {c}")
        e(f"v_and_b32 v{x}, 3, v0")
        e(f"v_lshlrev_b32 v{x}, 5, v{x}")
        e(f"v_lshl_add_u32 v{x}, v{vb}, 7, v{x}")
        e(f"v_and_b32 v{x+1}, 7, v0")
        e(f"v_lshlrev_b32 v{x+1}, 4, v{x+1}")
        if first: resolve_epoch(1)
        else: e("s_nop 3")
        e("s_mov_b32 exec_lo, 0x00f0000f"); e("s_mov_b32 exec_hi, 0xf0000f00")
        e(f"ds_write_b128 v{x}, {v4(vS)} offset:{L_O}")
        e(f"ds_write_b128 v{x}, {v4(vD2)} offset:{L_O+16}")
        e("s_mov_b64 exec, -1")
        for p in range(4): e(f"ds_read_b128 {v4(vG+4*p)}, v{x+1} offset:{L_O+p*128}")
        e(f"v_mov_b32 v{vA+1}, s{sTA}"); e(f"v_mov_b32 v{vA+3}, s{sTB}")
        e("s_waitcnt lgkmcnt(0)")
        for r in range(4):
            e(f"v_add_f32 v{vG+r}, v{vG+r}, v{vG+4+r}")
            e(f"v_add_f32 v{vG+8+r}, v{vG+8+r}, v{vG+12+r}")
        for r in range(4): e(f"v_add_f32 v{vG+r}, v{vG+r}, v{vG+8+r}")
        for r in range(4): e(f"v_max_f32 v{vG+r}, s{sFlo}, v{vG+r}")
        e(f"v_cvt_pk_bf16_f32 v{vA}, v{vG}, v{vG+1}")
        e(f"v_cvt_pk_bf16_f32 v{vA+2}, v{vG+2}, v{vG+3}")
        e("s_mov_b64 exec, 0xff")
        e(f"buffer_store_dwordx4 {v4(vA)}, v{vVo}, s[{sWS}:{sWS+3}], s{sPub} offen sc1")
        e("s_mov_b64 exec, -1")
    task(True)
    stamp(1)
    e.label("L_join")
    if tlb:
        srd(e, sWO, 12, 4096*512*2); srd(e, sW2, 18, 1376*512*2)
        e(f"s_lshl_b32 s{T}, s{sH}, 17")
        e(f"s_mul_i32 s{T+1}, s{sH}, {40*1024}")
        e("s_mov_b64 exec, 1")
        e(f"buffer_load_dword v{vG+8}, v{vZero}, s[{sWO}:{sWO+3}], s{T} offen nt")
        e(f"buffer_load_dword v{vG+9}, v{vZero}, s[{sW2}:{sW2+3}], s{T+1} offen nt")
        e("s_mov_b64 exec, -1")
    e(f"s_lshl_b32 s{T}, s{sH}, 9")
    e("s_mov_b32 exec_hi, 0")
    poll("q", [f"buffer_load_dwordx4 {v4(vG)}, v{vVo}, s[{sWS}:{sWS+3}], s{T} offen sc1"], [vG])
    e(f"v_mov_b32 v{vG+1}, v{vG+2}")
    e(f"v_lshlrev_b32 v{vt+1}, 3, v0")
    e(f"ds_write_b64 v{vt+1}, v[{vG}:{vG+1}] offset:{L_QB}")
    e("s_mov_b32 exec_hi, -1")
    e(f"v_mov_b32 v{vt+2}, s{sTA}"); e(f"v_mov_b32 v{vt+3}, s{sTB}")
    e(f"ds_write_b64 v{vZero}, v[{vt+2}:{vt+3}] offset:{L_EP}")
    stamp(2)
    def proj(n, coef, data, rf=None):
        rf = rf or v4
        for r in range(4): e(f"v_and_b32 v{vA+r}, v{coef}, v{vMk+r}")
        for t in range(n):
            A4, A4n = (vA, vA2) if (t & 1) == 0 else (vA2, vA)
            if t + 1 < n:
                for r in range(4): e(f"v_and_b32 v{A4n+r}, v{coef+t+1}, v{vMk+r}")
            else: e("s_nop 0")
            c = "0" if t == 0 else v4(vS)
            e(f"v_mfma_f32_16x16x32_bf16 {v4(vS)}, {v4(A4)}, {rf(data+t*4)}, {c}")
    def proj_publish(base, dst=None, store=True):
        dst = vD2 if dst is None else dst
        e(f"s_lshl_b32 s{T}, s{sS}, 14")
        e(f"s_lshl_b32 s{T+1}, s{sH}, 9")
        e(f"s_add_u32 s{T}, s{T}, s{T+1}")
        e(f"s_add_u32 s{T}, s{T}, {base}")
        e(f"v_and_b32 v{vt}, 0x1ff, v{vSt}")
        e(f"v_mov_b32 v{dst+1}, s{sTA}"); e(f"v_mov_b32 v{dst+3}, s{sTB}")
        e("s_nop 1")
        e(f"v_permlane32_swap_b32 v{vS}, v{vS+2}")
        e(f"v_permlane32_swap_b32 v{vS+1}, v{vS+3}")
        e("s_nop 1")
        e(f"v_add_f32_dpp v{dst}, v{vS+2}, v{vS} {dpp('row_ror:8')}")
        e(f"v_add_f32_dpp v{dst+2}, v{vS+3}, v{vS+1} {dpp('row_ror:8')}")
        if not store: return
        e("s_mov_b32 exec_lo, 0x00ff00ff"); e("s_mov_b32 exec_hi, 0x00ff00ff")
        e(f"buffer_store_dwordx4 {v4(dst)}, v{vt}, s[{sWS}:{sWS+3}], s{T} offen sc1")
        e("s_mov_b64 exec, -1")
    local_tag()
    e.label("L_waitfl")
    e("s_sleep 4")
    e(f"ds_read_b32 v{vt}, v{vZero} offset:{L_FL}")
    e("s_waitcnt lgkmcnt(0)")
    e(f"v_cmp_eq_u32 vcc, 0, v{vt}")
    e("s_cbranch_vccnz L_waitfl")
    stamp(3)
    ffn_range()
    e(f"s_lshl_b32 s{T+2}, s{sC0}, 5")
    e(f"s_add_u32 s{T+2}, s{T+2}, {HP}")
    e(f"s_lshl_b32 s{T+3}, s{sNC}, 1")
    for r in range(4): e(f"v_mov_b32 v{vG+r}, 0")
    e(f"s_bfm_b64 exec, s{T+3}, 0")
    def hafter():
        e("s_mov_b64 exec, -1")
        w2_loads(); wo_loads()
        e(f"s_bfm_b64 exec, s{T+3}, 0")
    poll("h", [f"buffer_load_dwordx4 {v4(vG)}, v{vVo}, s[{sWS}:{sWS+3}], s{T+2} offen sc1"], [vG], hafter, 22)
    e("s_mov_b64 exec, 0xffff")
    e(f"v_mov_b32 v{vG+1}, v{vG+2}")
    e(f"v_lshlrev_b32 v{vt+4}, 3, v0")
    e(f"ds_write_b64 v{vt+4}, v[{vG}:{vG+1}] offset:{L_HT}")
    e("s_mov_b64 exec, -1")
    e(f"v_lshrrev_b32 v{vt+5}, 3, v0")
    e(f"v_lshlrev_b32 v{vt+5}, 1, v{vt+5}")
    for t in range(6): e(f"ds_read_u16 v{vG+4+t}, v{vt+5} offset:{L_HT+16*t}")
    e("s_waitcnt lgkmcnt(0)")
    for t in range(6): e(f"v_lshl_or_b32 v{vG+4+t}, v{vG+4+t}, 16, v{vG+4+t}")
    e("s_waitcnt vmcnt(16)")
    proj(6, vG+4, vW2)
    proj_publish(ZP, vHG, zearly)
    e(f"s_mov_b32 s{sU}, s{T}")
    e("s_branch L_tail0b")
    e.label("L_stream")
    if not st0: stamp(3)
    assert VF
    req_local()
    e(f"s_mov_b32 s{sCnt}, 4")
    e.label("L_K0")
    for b in range(4):
        e("s_waitcnt vmcnt(8)")
        qk(b)
        e("s_waitcnt lgkmcnt(0)")
        e(f"v_readfirstlane_b32 s{sJ}, v{vJ}")
        e(f"v_add_u32 v{vAd}, s{sB+b}, v{vL4}")
        e(f"s_cmp_ge_u32 s{sJ}, s{sN}")
        e(f"s_cbranch_scc1 L_T1m{b}")
        req_local(); addr_local(True)
        e(f"s_lshl_b32 s{sB+b}, s{sJ}, 8")
        score_store()
        issue(b, False, thr, gran)
    e("s_branch L_K0")
    for b in range(4):
        e.label(f"L_T1s{b}")
        e(f"s_sub_u32 s{sCnt}, s{sCnt}, 1")
        e(f"s_cmp_eq_u32 s{sCnt}, 0")
        e(f"s_cbranch_scc1 L_sync{b}")
        e("s_waitcnt vmcnt(8)")
        qk(b)
        e("s_waitcnt lgkmcnt(0)")
        e(f"v_readfirstlane_b32 s{sJ}, v{vJ}")
        e(f"v_add_u32 v{vAd}, s{sB+b}, v{vL4}")
        e.label(f"L_T1m{b}")
        req_local()
        e(f"s_sub_u32 s{sJ}, s{sJ}, s{sN}")
        e(f"s_cmp_lt_u32 s{sJ}, s{sN}")
        e(f"s_cselect_b32 s{sV+2}, 0x10000000, 0")
        e(f"s_min_u32 s{sJ}, s{sJ}, s{sN}")
        addr_local(True)
        e(f"s_lshl_b32 s{sB+b}, s{sJ}, 8")
        score_store()
        e(f"s_cmp_lg_u32 s{sCnt}, 1")
        e(f"s_cbranch_scc1 L_T1n{b}")
        e("s_nop 0")
        wave_max(vP, vM)
        e(f"s_lshl_b32 s{T}, s{sWave}, 2")
        e(f"v_mov_b32 v{vT}, s{T}")
        e("s_mov_b64 exec, 1")
        e(f"ds_write_b32 v{vT}, v{vP} offset:{L_WM}")
        e(f"ds_add_u32 v{vZero}, v{vOne} offset:{L_DN}")
        e("s_mov_b64 exec, -1")
        e.label(f"L_T1n{b}")
        issue(b, True, thrv, gran)
    e("s_branch L_T1s0")
    for b in range(4):
        e.label(f"L_sync{b}")
        e(f"ds_read_b32 v{vT}, v{vZero} offset:{L_DN}")
        e(f"ds_read_b128 {v4(vA)}, v{vZero} offset:{L_WM}")
        e("s_waitcnt lgkmcnt(0)")
        e(f"v_cmp_gt_u32 vcc, 3, v{vT}")
        e(f"s_cbranch_vccnz L_sync{b}")
        e(f"v_max3_f32 v{vM}, v{vA+1}, v{vA+2}, v{vA+3}")
        e(f"s_mov_b32 s{sV+2}, 0x10000000")
        if ts:
            e(f"s_cmp_eq_u32 s{sWave}, 0"); e(f"s_cbranch_scc1 L_V{b}")
            stamp(5)
        e(f"s_branch L_V{b}")
    def vloop(tag, lim, target, th):
        for b in range(4):
            e.label(f"L_{tag}{b}")
            e(f"v_add_u32 v{vAd}, s{sB+b}, v{vL4}")
            e(f"ds_read_b32 v{vT}, v{vAd} offset:{L_S}")
            e("s_waitcnt vmcnt(12) lgkmcnt(0)")
            e(f"v_readfirstlane_b32 s{sJ}, v{vJ}")
            prob(vT)
            e("s_nop 0")
            e(f"s_sub_u32 s{sJ}, s{sJ}, s{sN}")
            pv(b)
            e.label(f"L_{tag}m{b}")
            e(f"s_cmp_ge_u32 s{sJ}, {lim}")
            e(f"s_cbranch_scc1 L_{target}{b}")
            req_local(); addr_local(True)
            e(f"s_lshl_b32 s{sB+b}, s{sJ}, 8")
            issue(b, True, th, gran)
        e(f"s_branch L_{tag}0")
    if VF:
        vloop("V", f"s{sNV}", "VE", thrv)
        for b in range(4):
            e.label(f"L_VE{b}")
            e(f"s_mov_b32 s{sTk}, 1")
            e(f"s_atomic_add s{sTk}, s[{sTKa}:{sTKa+1}], 0x0 glc")
            e(f"s_branch L_Wm{b}")
        vloop("W", f"s{sN}", "T2_", thre)
    else:
        vloop("V", N, "T2_", thrv)
    for b in range(4):
        e.label(f"L_T2_{b}")
        rest = [(b+i) & 3 for i in (1, 2, 3)]
        for i, c in enumerate(rest):
            e(f"v_add_u32 v{vAd}, s{sB+c}, v{vL4}")
            e(f"ds_read_b32 v{vt+i}, v{vAd} offset:{L_S}")
        if ts:
            e(f"s_cmp_eq_u32 s{sWave}, 0"); e(f"s_cbranch_scc1 L_T2x{b}")
            stamp(1)
            e.label(f"L_T2x{b}")
        e("s_waitcnt lgkmcnt(0)")
        nt = 0
        if b % 2 == 0:
            take_dyn(b//2, 1); nt = 1; issue(b, False, thrd, gran)
        for i, c in enumerate(rest):
            prob(vt+i)
            e("s_waitcnt vmcnt(8)")
            e("s_nop 0")
            pv(c)
            if c % 2 == 0: nt += 1; take_dyn(c//2, nt)
            issue(c, c % 2 == 1, thrd, gran)
        if b % 2 == 1: issue(b, True, thrd, gran)
        first = b // 2 if b % 2 == 0 else ((b+1) & 3) // 2
        e(f"s_branch L_dyn{first}")
    for d in range(D): dyn_group(d)
    e("s_branch L_dyn0")
    e.label("L_done")
    if nost: e(f"s_mov_b32 s{sWS+2}, {WS_END}")
    stamp(4)
    if late == 2:
        e(f"s_cmp_lg_u32 s{sWave}, 0")
        e("s_cbranch_scc1 L_nowo")
        wo_loads()
        e.label("L_nowo")
    e(f"s_lshl_b32 s{T+1}, s{sWave}, 9")
    e(f"v_lshl_add_u32 v{vT}, v{vb}, 2, v{vn}")
    e(f"v_lshl_add_u32 v{vT}, v{vT}, 5, s{T+1}")
    e(f"s_lshl_b32 s{T+1}, s{sWave}, 3")
    e(f"v_mov_b32 v{vP}, s{T+1}")
    e("s_nop 2")
    e(f"v_add_f32_dpp v{vM+1}, v{vLa}, v{vLa} {dpp('row_shl:4')}")
    for u in range(1, 4):
        for j in range(8): e(f"v_add_f32_dpp v{vO+j}, v{vO+8*u+j}, v{vO+j} {dpp(f'row_shl:{4*u}')}")
        if u > 1: e(f"v_add_f32_dpp v{vM+1}, v{vLa}, v{vM+1} {dpp(f'row_shl:{4*u}')}")
    e("s_mov_b32 exec_lo, 0x000f000f"); e("s_mov_b32 exec_hi, 0x000f000f")
    e(f"ds_write_b128 v{vT}, {v4(vO)} offset:{L_O}")
    e(f"ds_write_b128 v{vT}, {v4(vO+4)} offset:{L_O+16}")
    e("s_mov_b64 exec, 1")
    e(f"ds_write_b64 v{vP}, v[{vM}:{vM+1}] offset:{L_ML}")
    e(f"ds_add_rtn_u32 v{vJ}, v{vZero}, v{vOne} offset:{L_DN}")
    e("s_mov_b64 exec, -1")
    e("s_waitcnt lgkmcnt(0)")
    e(f"v_readfirstlane_b32 s{T}, v{vJ}")
    e("s_nop 0")
    e(f"s_cmp_eq_u32 s{T}, 5")
    e("s_cbranch_scc1 L_tail0")
    e.label("L_fin")
    e(f"s_cmp_eq_u32 s{sWave}, 3")
    e("s_cbranch_scc1 L_exit")
    e(f"s_and_b32 s{T}, s{sH}, 7")
    e(f"s_cmp_eq_u32 s{T}, s{sS}")
    e("s_cbranch_scc0 L_exit")
    e(f"s_lshr_b32 s{T+5}, s{sH}, 3")
    e(f"v_lshrrev_b32 v{vt}, 3, v0")
    e(f"v_and_b32 v{vt+1}, 7, v0")
    e(f"v_lshlrev_b32 v{vt+2}, 4, v{vt+1}")
    e(f"v_lshl_add_u32 v{vt}, v{vt}, 9, v{vt+2}")
    e(f"v_lshlrev_b32 v{vt+2}, 3, v{vt+1}")
    e(f"s_mov_b32 s{T+1}, {ZP}")
    e(f"s_cmp_eq_u32 s{sWave}, 1")
    e(f"s_cselect_b32 s{T+1}, {YP}, s{T+1}")
    e(f"s_lshl_b32 s{T}, s{sS}, 14")
    e(f"s_add_u32 s{T}, s{T}, s{T+1}")
    e(f"s_lshl_b32 s{T+1}, s{T+5}, 7")
    e(f"s_add_u32 s{T}, s{T}, s{T+1}")
    for j in range(1, 4): e(f"s_add_u32 s{T+j}, s{T}, {j*4096}")
    def gl(base): return [f"buffer_load_dwordx4 {v4(base+4*j)}, v{vt}, s[{sWS}:{sWS+3}], s{T+j} offen sc1" for j in range(4)]
    def sum4(g):
        for k in (0, 2):
            e(f"v_add_f32 v{g+k}, v{g+k}, v{g+4+k}")
            e(f"v_add_f32 v{g+8+k}, v{g+8+k}, v{g+12+k}")
        e(f"v_add_f32 v{vS}, v{g}, v{g+8}")
        e(f"v_add_f32 v{vS+1}, v{g+2}, v{g+10}")
    def xlane():
        e("s_nop 1")
        for k in range(2): e(f"v_add_f32_dpp v{vS+k}, v{vS+k}, v{vS+k} {dpp('row_ror:8')}")
        for swap in ("v_permlane16_swap_b32", "v_permlane32_swap_b32"):
            for k in range(2): e(f"v_mov_b32 v{vS+2+k}, v{vS+k}")
            e("s_nop 1")
            for k in range(2): e(f"{swap} v{vS+k}, v{vS+2+k}")
            for k in range(2): e(f"v_add_f32 v{vS+k}, v{vS+k}, v{vS+2+k}")
        for k in range(2): e(f"v_cvt_pk_bf16_f32 v{vS+k}, v{vS+k}, v{vS+k}")
        for k in range(2): e(f"v_and_b32 v{vS+k}, 0xffff0000, v{vS+k}")
    e(f"s_cmp_eq_u32 s{sWave}, 1")
    e("s_cbranch_scc1 L_finy")
    poll("z", gl(vG), [vG+4*j for j in range(4)])
    sum4(vG); xlane()
    for k in range(2): e(f"v_mul_f32 v{vA+k}, {f32(-1.4426950408889634)}, v{vS+k}")
    for k in range(2): e(f"v_exp_f32 v{vA+k}, v{vA+k}")
    e("s_nop 0")
    for k in range(2): e(f"v_add_f32 v{vA+k}, 1.0, v{vA+k}")
    for k in range(2): e(f"v_rcp_f32 v{vA+k}, v{vA+k}")
    e("s_nop 0")
    for k in range(2): e(f"v_mul_f32 v{vA+k}, v{vS+k}, v{vA+k}")
    for k in range(2): e(f"v_cvt_pk_bf16_f32 v{vA+k}, v{vA+k}, v{vA+k}")
    for k in range(2): e(f"v_and_b32 v{vA+k}, 0xffff0000, v{vA+k}")
    e(f"ds_write_b64 v{vt+2}, v[{vA}:{vA+1}] offset:{L_G}")
    e(f"ds_write_b32 v{vZero}, v{vOne} offset:{L_F2}")
    e("s_branch L_exit")
    e.label("L_finy")
    srd(e, sOUT, 20, 1024)
    e(f"s_lshl_b32 s{T+4}, s{sS}, 7")
    e(f"s_lshl_b32 s{T+5}, s{T+5}, 5")
    e(f"s_add_u32 s{T+4}, s{T+4}, s{T+5}")
    e(f"v_lshl_add_u32 v{vt+1}, v{vt+1}, 2, s{T+4}")
    e(f"buffer_load_dword v{vt+3}, v{vt+1}, s[{sX}:{sX+3}], 0 offen")
    sets = [vW + 16*k for k in range(NSET)]
    for k in range(NSET):
        for l in gl(sets[k]): e(l)
        if k + 1 < NSET and slp: e(f"s_sleep {slp}")
    e(f"s_mov_b32 s{T+7}, {POLL_MAX}")
    e.label("L_poll_y")
    for k in range(NSET):
        e(f"s_waitcnt vmcnt({4*(NSET-1)})")
        tagcheck([sets[k]+4*j for j in range(4)], vt+10, vt+8)
        e(f"s_cbranch_vccz L_goty{k}")
        for l in gl(sets[k]): e(l)
    e(f"s_sub_u32 s{T+7}, s{T+7}, 1")
    e(f"s_cmp_lg_u32 s{T+7}, 0")
    e("s_cbranch_scc1 L_poll_y")
    e("s_waitcnt vmcnt(0)")
    for k in range(NSET):
        e.label(f"L_goty{k}")
        sum4(sets[k])
        if k + 1 < NSET: e("s_branch L_ysum")
    e.label("L_ysum")
    e(f"ds_read_b32 v{vt+4}, v{vZero} offset:{L_F2}")
    e(f"ds_read_b64 v[{vA}:{vA+1}], v{vt+2} offset:{L_G}")
    xlane()
    e(f"v_lshlrev_b32 v{vA+2}, 16, v{vt+3}")
    e(f"v_and_b32 v{vA+3}, 0xffff0000, v{vt+3}")
    e("s_waitcnt lgkmcnt(0)")
    e(f"v_cmp_ne_u32 vcc, 0, v{vt+4}")
    e("s_cbranch_vccnz L_haveg")
    e.label("L_waitg")
    e(f"ds_read_b32 v{vt+4}, v{vZero} offset:{L_F2}")
    e(f"ds_read_b64 v[{vA}:{vA+1}], v{vt+2} offset:{L_G}")
    e("s_waitcnt lgkmcnt(0)")
    e(f"v_cmp_eq_u32 vcc, 0, v{vt+4}")
    e("s_cbranch_vccnz L_waitg")
    e.label("L_haveg")
    for k in range(2): e(f"v_mul_f32 v{vS+k}, v{vS+k}, v{vA+k}")
    for k in range(2): e(f"v_cvt_pk_bf16_f32 v{vS+k}, v{vS+k}, v{vS+k}")
    for k in range(2): e(f"v_and_b32 v{vS+k}, 0xffff0000, v{vS+k}")
    for k in range(2): e(f"v_add_f32 v{vS+k}, v{vA+2+k}, v{vS+k}")
    e(f"v_cvt_pk_bf16_f32 v{vS}, v{vS}, v{vS+1}")
    e("s_mov_b64 exec, 0xff")
    e(f"buffer_store_dword v{vS}, v{vt+1}, s[{sOUT}:{sOUT+3}], 0 offen {opol}")
    e("s_mov_b64 exec, -1")
    e("s_branch L_exit")
    e.label("L_tail0")
    ml = vO; op = vO + 8
    e(f"ds_read_b64 v[{ml+2}:{ml+3}], v{vZero} offset:{L_ML+8}")
    e(f"ds_read_b128 {v4(ml+4)}, v{vZero} offset:{L_ML+16}")
    e(f"v_lshlrev_b32 v{vP}, 3, v0")
    for p in range(1, 4): e(f"ds_read_b64 v[{op+2*p}:{op+2*p+1}], v{vP} offset:{L_O+p*512}")
    assert loc and lazy
    e(f"v_mov_b32 v{vA+1}, s{sTA}"); e(f"v_mov_b32 v{vA+3}, s{sTL}")
    e(f"v_mov_b32 v{vA2+1}, s{sTA}"); e(f"v_mov_b32 v{vA2+3}, s{sTL}")
    e(f"s_lshl_b32 s{T}, s{sP}, 10"); e(f"s_add_u32 s{T}, s{T}, {OP}")
    e(f"s_lshl_b32 s{T+1}, s{sP}, 4"); e(f"s_add_u32 s{T+1}, s{T+1}, {MLP}")
    e(f"s_add_u32 s{T+2}, s{T}, {LOC}"); e(f"s_add_u32 s{T+3}, s{T+1}, {LOC}")
    e("s_waitcnt lgkmcnt(3)")
    e(f"v_max3_f32 v{vA2}, v{ml+2}, v{ml+4}, v{ml+6}")
    for p in range(1, 4): e(f"v_sub_f32 v{ml+2*p}, v{ml+2*p}, v{vA2}")
    for p in range(1, 4): e(f"v_exp_f32 v{ml+2*p}, v{ml+2*p}")
    e("s_waitcnt lgkmcnt(0)")
    e(f"v_mul_f32 v{vA}, v{ml+2}, v{op+2}")
    e(f"v_mul_f32 v{vA+2}, v{ml+2}, v{op+3}")
    for p in range(2, 4):
        e(f"v_fmac_f32 v{vA}, v{ml+2*p}, v{op+2*p}")
        e(f"v_fmac_f32 v{vA+2}, v{ml+2*p}, v{op+2*p+1}")
    if loc: e(f"buffer_store_dwordx4 {v4(vA)}, v{vVo}, s[{sWS}:{sWS+3}], s{T+2} offen")
    else: e(f"buffer_store_dwordx4 {v4(vA)}, v{vVo}, s[{sWS}:{sWS+3}], s{T} offen sc1")
    e(f"v_mul_f32 v{vA2+2}, v{ml+2}, v{ml+3}")
    for p in range(2, 4): e(f"v_fmac_f32 v{vA2+2}, v{ml+2*p}, v{ml+2*p+1}")
    e("s_mov_b64 exec, 1")
    if loc: e(f"buffer_store_dwordx4 {v4(vA2)}, v{vZero}, s[{sWS}:{sWS+3}], s{T+3} offen")
    e("s_mov_b64 exec, -1")
    stamp(6)
    e.label("L_waitf3")
    e(f"ds_read_b32 v{vT}, v{vZero} offset:{L_F3}")
    e("s_waitcnt lgkmcnt(0)")
    e(f"v_cmp_eq_u32 vcc, 0, v{vT}")
    e("s_cbranch_vccnz L_waitf3")
    e(f"v_cmp_eq_u32 vcc, 1, v{vT}")
    e("s_cbranch_vccnz L_fin")
    e(f"v_mov_b32 v{vA+3}, s{sTB}"); e(f"v_mov_b32 v{vA2+3}, s{sTB}")
    e(f"buffer_store_dwordx4 {v4(vA)}, v{vVo}, s[{sWS}:{sWS+3}], s{T} offen sc1")
    e("s_mov_b64 exec, 1")
    e(f"buffer_store_dwordx4 {v4(vA2)}, v{vZero}, s[{sWS}:{sWS+3}], s{T+1} offen sc1")
    e("s_mov_b64 exec, -1")
    if True:
        e("s_branch L_fin")
        e.label("L_tail0b")
    stamp(5)
    if late == 1: wo_loads()
    e(f"s_lshl_b32 s{T+3}, s{sH}, 13"); e(f"s_add_u32 s{T+3}, s{T+3}, {OP}")
    e(f"s_add_u32 s{T+4}, s{T+3}, 4096")
    e(f"s_lshl_b32 s{T+2}, s{sH}, 7"); e(f"s_add_u32 s{T+2}, s{T+2}, {MLP}")
    e(f"v_and_b32 v{vt}, 7, v0")
    e(f"v_lshlrev_b32 v{vt}, 4, v{vt}")
    e(f"v_lshlrev_b32 v{vVo}, 4, v0")
    e(f"v_lshlrev_b32 v{vt+1}, 7, v{vb}")
    e(f"v_and_b32 v{vt+2}, 1, v0")
    e(f"v_lshl_add_u32 v{vt+1}, v{vt+2}, 6, v{vt+1}")
    e(f"v_bfe_u32 v{vt+2}, v0, 1, 1")
    e(f"v_lshl_add_u32 v{vt+1}, v{vt+2}, 4, v{vt+1}")
    e(f"v_bfe_u32 v{vt+2}, v0, 2, 2")
    e(f"v_lshl_add_u32 v{vt+1}, v{vt+2}, 2, v{vt+1}")
    def oloads(vo, vm, pol):
        return [f"buffer_load_dwordx4 {v4(vG+4*j)}, v{vo}, s[{sWS}:{sWS+3}], s{T + 3 + (j>>2)} offen offset:{(j&3)*1024} {pol}" for j in range(8)] + \
               [f"buffer_load_dwordx4 {v4(vG+32)}, v{vm}, s[{sWS}:{sWS+3}], s{T+2} offen {pol}"]
    oregs = [vG+4*j for j in range(9)]
    if loc:
        e(f"v_add_u32 v{vt+3}, {LOC}, v{vVo}")
        e(f"v_add_u32 v{vt+4}, {LOC}, v{vt}")
        e(f"s_mov_b32 s{T+7}, {NLOC}")
        e(f"s_mov_b32 s{T+6}, {POLL_MAX}")
        e.label("L_poll_l")
        for l in oloads(vt+3, vt+4, lpol): e(l)
        e(f"s_sub_u32 s{T+7}, s{T+7}, 1")
        e("s_waitcnt vmcnt(0)")
        tagcheck(oregs, vt+10, vt+8, sTL)
        e("s_cbranch_vccz L_gotl")
        e(f"s_cmp_gt_i32 s{T+7}, 0")
        e("s_cbranch_scc1 L_poll_l")
        e(f"v_mov_b32 v{vt+5}, 2")
        e(f"ds_write_b32 v{vZero}, v{vt+5} offset:{L_F3}")
        for l in oloads(vVo, vt, "sc1"): e(l)
        e(f"s_sub_u32 s{T+6}, s{T+6}, 1")
        e("s_waitcnt vmcnt(0)")
        tagcheck(oregs, vt+10, vt+8)
        e("s_cbranch_vccz L_polld_o")
        e(f"s_cmp_lg_u32 s{T+6}, 0")
        e("s_cbranch_scc1 L_poll_l")
        e("s_branch L_polld_o")
        e.label("L_gotl")
        e(f"ds_write_b32 v{vZero}, v{vOne} offset:{L_F3}")
        e.label("L_polld_o")
    if not zearly:
        e("s_mov_b32 exec_lo, 0x00ff00ff"); e("s_mov_b32 exec_hi, 0x00ff00ff")
        e(f"buffer_store_dwordx4 {v4(vHG)}, v{vSt}, s[{sWS}:{sWS+3}], s{sU} offen sc1")
        e("s_mov_b64 exec, -1")
    stamp(6)
    mm, ll = vG+32, vG+34
    cs = ("quad_perm:[1,0,3,2]", "quad_perm:[2,3,0,1]", "row_half_mirror")
    e(f"v_max_f32_dpp v{vT}, v{mm}, v{mm} {dpp(cs[0])}")
    for c in cs[1:]:
        e("s_nop 1")
        e(f"v_max_f32_dpp v{vT}, v{vT}, v{vT} {dpp(c)}")
    e(f"v_sub_f32 v{vT}, v{mm}, v{vT}")
    e(f"v_exp_f32 v{vT}, v{vT}")
    e("s_nop 0")
    e(f"v_mul_f32 v{vP}, v{vT}, v{ll}")
    if late != 5: e(f"v_lshlrev_b32 v{vt+1}, 3, v0")
    else: e("s_nop 0")
    for j in range(8):
        if 1 <= j <= 3: e(f"v_add_f32_dpp v{vP}, v{vP}, v{vP} {dpp(cs[j-1])}")
        if j == 5: e(f"v_rcp_f32 v{vP}, v{vP}")
        for k in range(2):
            e(f"v_{'mul' if j < 2 else 'fmac'}_f32_dpp v{vA+2*(j&1)+k}, v{vT}, v{vG+4*j+2*k} {dpp(f'row_newbcast:{j}')}")
    for k in range(2): e(f"v_add_f32 v{vA+k}, v{vA+k}, v{vA+2+k}")
    for k in range(2): e(f"v_mul_f32 v{vA+k}, v{vA+k}, v{vP}")
    for k in range(2): e(f"v_cvt_pk_bf16_f32 v{vA+k}, v{vA+k}, v{vA+k}")
    if late == 5:
        e(f"ds_write_b32 v{vt+1}, v{vA} offset:{L_OC}")
        e(f"ds_write_b32 v{vt+1}, v{vA+1} offset:{L_OC+32}")
    else: e(f"ds_write_b64 v{vt+1}, v[{vA}:{vA+1}] offset:{L_OC}")
    e(f"v_lshrrev_b32 v{vP}, 3, v0")
    e(f"v_lshlrev_b32 v{vP}, 6, v{vP}")
    for q in range(4): e(f"ds_read_b128 {v4(vG+4*q)}, v{vP} offset:{L_OC+16*q}")
    e("s_waitcnt lgkmcnt(0)")
    if late == 5: proj(16, vG, 0, a4)
    else: proj(16, vG, vW)
    proj_publish(YP)
    e.label("L_exit")
    if ts:
        stamp(7)
        e("s_lshl_b32 s88, s2, 2"); e(f"s_add_u32 s88, s88, s{sWave}"); e("s_lshl_b32 s88, s88, 5")
        e("s_add_u32 s88, s88, 0x20000000")
        e("s_add_u32 s24, s24, s88"); e("s_addc_u32 s25, s25, 0")
        e("s_mov_b64 exec, 1")
        e(f"global_store_dwordx4 v{vZero}, {v4(vTS)}, s[24:25]")
        e(f"global_store_dwordx4 v{vZero}, {v4(vTS+4)}, s[24:25] offset:16")
    e.label("L_end")
    e("s_endpgm")
    for u, slot in stubs:
        e.label(f"L_inv{u}")
        e(f"ds_write_b32 v{vZero}, v{vOne} offset:{L_FL}")
        e(f"s_branch L_notk{u}")
    for d in resc:
        e.label(f"L_resc{d}")
        e("s_nop 0")
        e(f"v_max_f32_dpp v{vP}, v{vT}, v{vT} {dpp('row_ror:4')}")
        e("s_nop 1")
        e(f"v_max_f32_dpp v{vP}, v{vP}, v{vP} {dpp('row_ror:8')}")
        e("s_nop 0")
        for i in range(4): e(f"v_readlane_b32 s{sRL+i}, v{vP}, {16*i}")
        e("s_nop 1")
        e(f"v_max_f32 v{vP}, s{sRL}, v{vM}")
        for i in range(1, 4): e(f"v_max_f32 v{vP}, s{sRL+i}, v{vP}")
        e(f"v_sub_f32 v{vA}, v{vM}, v{vP}")
        e(f"v_exp_f32 v{vA}, v{vA}")
        e(f"v_mov_b32 v{vM}, v{vP}")
        e(f"v_mul_f32 v{vLa}, v{vLa}, v{vA}")
        for i in range(0, 32, 2): e(f"v_pk_mul_f32 v[{vO+i}:{vO+i+1}], v[{vO+i}:{vO+i+1}], v[{vA}:{vA+1}] op_sel_hi:[1,0]")
        e(f"s_branch L_back{d}")

def desc(name, nv, ns, acc):
    return f""".amdhsa_kernel {name}
  .amdhsa_next_free_vgpr {nv}
  .amdhsa_next_free_sgpr {ns}
  .amdhsa_accum_offset {acc}
  .amdhsa_group_segment_fixed_size 0
  .amdhsa_kernarg_size 88
  .amdhsa_user_sgpr_count 2
  .amdhsa_user_sgpr_kernarg_segment_ptr 1
  .amdhsa_system_sgpr_workgroup_id_x 1
  .amdhsa_float_denorm_mode_32 3
.end_amdhsa_kernel
"""

def build(**kw):
    e = E()
    e.raw(HEADER.rstrip())
    lds = L_S + (4*kw.get("NS", 60) + kw.get("B0", 3) + kw.get("DL", 6) + 1)*256
    e.raw(f"; @launch grid=(256,1,1) block=(256,1,1) lds={lds}")
    e.raw('.amdgcn_target "amdgcn-amd-amdhsa--gfx950"')
    e.raw(".text")
    gen_main(e, **kw)
    e.raw('.section .rodata,"a"'); e.raw(".p2align 6")
    e.raw(desc(KNAME, 512, 102, 256))
    return e.text()

if __name__ == "__main__":
    out = sys.argv[1]
    kw = eval("dict(%s)" % (sys.argv[2] if len(sys.argv) > 2 else ""))
    open(out, "w").write(build(**kw))
```
